```python
import torch

def _softmax(x, axis=-1):
    return torch.softmax(x, dim=axis)
def _gelu(x):
    return torch.nn.functional.gelu(x, approximate="tanh")
def _silu(x):
    return torch.nn.functional.silu(x)
def _sigmoid(x):
    return torch.sigmoid(x)
def _layernorm(x, axis=-1, eps=1e-5):
    m = x.mean(dim=axis, keepdim=True)
    v = x.var(dim=axis, keepdim=True, unbiased=False)
    return (x - m) / torch.sqrt(v + eps)
def _scatter_add(tgt, idx, src, axis=0):
    return tgt.clone().index_add_(axis, idx, src)
def _segment_sum(src, seg, n):
    out = torch.zeros((n,) + src.shape[1:], dtype=src.dtype)
    return out.index_add_(0, seg, src)
def _pad(x, pw):
    flat = tuple(v for pair in reversed(pw) for v in pair)
    return torch.nn.functional.pad(x, flat)

kernel_name = 'recurrent_scan__ssm_conv_s4__glu_gated_glu__prompt'

def setup_inputs():

    _w = (lambda a: (lambda t: t.to(torch.bfloat16) if t.is_floating_point() else t)(torch.as_tensor(a)))
    def _A_setup():
        B, L, D, N = 1, 2048, 512, 128
        A_re = -(lambda _x: torch.exp(torch.as_tensor(_x)))((lambda *s: torch.randn(*s, dtype=torch.bfloat16) * 6.4)(D, N))
        A_im = torch.pi * (lambda *s: torch.randn(*s, dtype=torch.bfloat16) * 0.05)(D, N)
        B_re = (lambda *s: torch.randn(*s, dtype=torch.bfloat16) * 0.05)(D, N)
        B_im = (lambda *s: torch.randn(*s, dtype=torch.bfloat16) * 0.05)(D, N)
        C_re = (lambda *s: torch.randn(*s, dtype=torch.bfloat16) * 0.05)(D, N)
        C_im = (lambda *s: torch.randn(*s, dtype=torch.bfloat16) * 0.05)(D, N)
        log_dt = (lambda *s: torch.randn(*s, dtype=torch.bfloat16) * 0.05)(D) * 0.5 - 4.0
        Dskip = (lambda *s: torch.randn(*s, dtype=torch.bfloat16) * 0.05)(D)
        return {
            "u": _w((lambda *s: torch.randn(*s, dtype=torch.bfloat16) * 0.05)(B, L, D)),
            "A_re": _w(A_re),
            "A_im": _w(A_im),
            "B_re": _w(B_re),
            "B_im": _w(B_im),
            "C_re": _w(C_re),
            "C_im": _w(C_im),
            "log_dt": _w(log_dt),
            "Dskip": _w(Dskip),
        }
    _A_in = _A_setup()

    def _B_setup():
        B, S, D, F = 1, 2048, 512, 1792
        return {
            "x": _w((lambda *s: torch.randn(*s, dtype=torch.bfloat16) * 0.05)(B, S, D)),
            "w_gate": _w((lambda *s: torch.randn(*s, dtype=torch.bfloat16) * 0.05)(D, F)),
            "w_up": _w((lambda *s: torch.randn(*s, dtype=torch.bfloat16) * 0.05)(D, F)),
            "w_down": _w((lambda *s: torch.randn(*s, dtype=torch.bfloat16) * 0.05)(F, D)),
        }
    _B_in = _B_setup()

    return {
        "A_u": _A_in["u"],
        "A_A_re": _A_in["A_re"],
        "A_A_im": _A_in["A_im"],
        "A_B_re": _A_in["B_re"],
        "A_B_im": _A_in["B_im"],
        "A_C_re": _A_in["C_re"],
        "A_C_im": _A_in["C_im"],
        "A_log_dt": _A_in["log_dt"],
        "A_Dskip": _A_in["Dskip"],
        "B_x": _B_in["x"],
        "B_w_gate": _B_in["w_gate"],
        "B_w_up": _B_in["w_up"],
        "B_w_down": _B_in["w_down"],
    }

def reference(A_u, A_A_re, A_A_im, A_B_re, A_B_im, A_C_re, A_C_im, A_log_dt, A_Dskip, B_x, B_w_gate, B_w_up, B_w_down):
    def _A_ref(u, A_re, A_im, B_re, B_im, C_re, C_im, log_dt, Dskip):
        Bsz, L, D = u.shape
        dt = torch.exp(log_dt)[:, None]
        A = A_re + 1j * A_im
        Bc = B_re + 1j * B_im
        Cc = C_re + 1j * C_im
        logdA = dt * A
        dB = dt * Bc
        l = (lambda x, dt: x.to(dt))(torch.arange(L), A_re.dtype)
        P = torch.exp(logdA[:, :, None] * l[None, None, :])
        K = torch.einsum("dn,dnl,dn->dl", Cc, P, dB).real
        L2 = 2 * L
        Kp = _pad(K, ((0, 0), (0, L)))
        up = (lambda x, *d: x.permute(*d))(u, 0, 2, 1)
        up = _pad(up, ((0, 0), (0, 0), (0, L)))
        Kf = (lambda x, axes=(-2,-1): torch.fft.rfft2(x.float(), dim=axes))(Kp[:, None, :], axes=(-2, -1))
        Uf = (lambda x, axes=(-2,-1): torch.fft.rfft2(x.float(), dim=axes))(up[:, :, None, :], axes=(-2, -1))
        Yf = Uf * Kf[None, :, :, :]
        y = (lambda x, s, axes=(-2,-1): torch.fft.irfft2(x, s=s, dim=axes).to(torch.bfloat16))(Yf, (1, L2), axes=(-2, -1))[:, :, 0, :L]
        y = (lambda x, *d: x.permute(*d))(y, 0, 2, 1) + u * Dskip[None, None, :]
        return y

    def _B_ref(x, w_gate, w_up, w_down):
        g = torch.einsum("bsd,df->bsf", x, w_gate)
        u = torch.einsum("bsd,df->bsf", x, w_up)
        h = _sigmoid(g) * u
        return torch.einsum("bsf,fd->bsd", h, w_down)

    x = A_u
    xn = _layernorm(x, axis=-1)
    s = _A_ref(xn, A_A_re, A_A_im, A_B_re, A_B_im, A_C_re, A_C_im, A_log_dt, A_Dskip)
    g = _silu(_B_ref(xn, B_w_gate, B_w_up, B_w_down))
    return x + s * g
```

```python
class Asm:
    guid = 0
    def __init__(self):
        self.lines = []
    def __call__(self, s):
        for l in s.strip("\n").split("\n"):
            l = l.strip()
            if l:
                self.lines.append("  " + l)
    def label(self, l):
        self.lines.append(l + ":")
    def newlabel(self, base):
        Asm.guid += 1
        return f"L{base}_{Asm.guid}"
    def comment(self, c):
        self.lines.append("  ; " + c)
    def text(self):
        return "\n".join(self.lines) + "\n"

def vr(b, n):
    return f"v[{b}:{b+n-1}]"
def sr(b, n):
    return f"s[{b}:{b+n-1}]"

def kernel_header(name):
    return f".globl {name}\n.p2align 8\n.type {name},@function\n{name}:\n"

def kernel_desc(name, vgpr=256, sgpr=102):
    acc = (vgpr + 3)//4*4
    return f""".p2align 6
.amdhsa_kernel {name}
  .amdhsa_next_free_vgpr {vgpr}
  .amdhsa_next_free_sgpr {sgpr}
  .amdhsa_accum_offset {acc}
  .amdhsa_group_segment_fixed_size 0
  .amdhsa_kernarg_size 128
  .amdhsa_user_sgpr_count 2
  .amdhsa_user_sgpr_kernarg_segment_ptr 1
  .amdhsa_system_sgpr_workgroup_id_x 1
.end_amdhsa_kernel
"""

HEADER_COMMENT = open("recurrent_scan__ssm_conv_s4__glu_gated_glu__prompt.s.ref").read().split("; Override")[0]
```

```python
import sys
from asmlib import *
import asmlib

XQ = 0
HQ = 0x200000
ST = 0x900000
P_X, P_ARE, P_AIM, P_BRE, P_BIM, P_CRE, P_CIM, P_LDT = 16,18,20,22,24,26,28,30
P_DSK, P_BX, P_WG, P_WU, P_WD, P_OUT, P_DBG, P_WS = 32,34,36,38,40,42,44,46

def prologue(a, endlabel):
    a(f"""
    s_cmp_ge_u32 s2, 256
    s_cbranch_scc1 {endlabel}
    s_load_dwordx16 s[16:31], s[0:1], 0
    s_load_dwordx16 s[32:47], s[0:1], 64
    v_lshrrev_b32 v1, 6, v0
    v_and_b32 v0, 63, v0
    v_readfirstlane_b32 s50, v1
    s_and_b32 s4, s2, 7
    s_lshr_b32 s5, s2, 3
    s_lshr_b32 s6, s4, 1
    s_lshl_b32 s6, s6, 2
    s_and_b32 s7, s5, 3
    s_add_u32 s48, s6, s7
    s_and_b32 s6, s4, 1
    s_lshl_b32 s6, s6, 3
    s_lshr_b32 s7, s5, 2
    s_add_u32 s49, s6, s7
    s_waitcnt lgkmcnt(0)
    """)

def wave_reduce(a, v, op="add"):
    for sh in (1,2,4,8):
        a(f"s_nop 1\n v_{op}_f32_dpp v{v}, v{v}, v{v} row_shr:{sh} row_mask:0xf bank_mask:0xf bound_ctrl:0")
    a(f"s_nop 1\n v_{op}_f32_dpp v{v}, v{v}, v{v} row_bcast:15 row_mask:0xa bank_mask:0xf")
    a(f"s_nop 1\n v_{op}_f32_dpp v{v}, v{v}, v{v} row_bcast:31 row_mask:0xc bank_mask:0xf")
    a("s_nop 1")

def bf16_round(a, dst, src):
    a(f"v_cvt_pk_bf16_f32 v{dst}, v{src}, v{src}\n v_lshlrev_b32 v{dst}, 16, v{dst}")

def phase_ln(a, lds_base=0):
    a.comment("==== LN phase ====")
    a(f"""
    s_lshl_b32 s51, s48, 7
    s_lshl_b32 s52, s49, 3
    s_add_u32 s53, s51, s52
    s_add_u32 s51, s53, s50
    s_lshl_b32 s52, s51, 10
    s_add_u32 s54, s{P_X}, s52
    s_addc_u32 s55, s{P_X+1}, 0
    v_lshlrev_b32 v3, 4, v0
    global_load_dwordx4 v[4:7], v3, s[54:55]
    s_waitcnt vmcnt(0)
    """)
    for i in range(4):
        a(f"v_lshlrev_b32 v{8+2*i}, 16, v{4+i}\n v_and_b32 v{9+2*i}, 0xffff0000, v{4+i}")
    a("""
    v_add_f32 v16, v8, v9
    v_add_f32 v17, v10, v11
    v_add_f32 v18, v12, v13
    v_add_f32 v19, v14, v15
    v_add_f32 v16, v16, v17
    v_add_f32 v18, v18, v19
    v_add_f32 v16, v16, v18
    """)
    wave_reduce(a, 16)
    a("""
    v_readlane_b32 s56, v16, 63
    s_nop 3
    v_mov_b32 v17, s56
    v_mul_f32 v17, 0x3b000000, v17
    """)
    for i in range(8):
        a(f"v_sub_f32 v{20+i}, v{8+i}, v17")
    a("v_mul_f32 v16, v20, v20")
    for i in range(1,8):
        a(f"v_fmac_f32 v16, v{20+i}, v{20+i}")
    wave_reduce(a, 16)
    a("""
    v_readlane_b32 s57, v16, 63
    s_nop 3
    v_mov_b32 v18, s57
    v_mul_f32 v18, 0x3b000000, v18
    """)
    bf16_round(a, 18, 18)
    a("v_add_f32 v18, 0x3727c5ac, v18")
    bf16_round(a, 18, 18)
    a("v_sqrt_f32 v18, v18\n s_nop 0")
    bf16_round(a, 18, 18)
    a("v_rcp_f32 v19, v18")
    bf16_round(a, 17, 17)
    for i in range(8):
        a(f"v_sub_f32 v{20+i}, v{8+i}, v17")
    for i in range(4):
        a(f"v_cvt_pk_bf16_f32 v{28+i}, v{20+2*i}, v{21+2*i}")
    for i in range(4):
        a(f"v_lshlrev_b32 v{20+2*i}, 16, v{28+i}\n v_and_b32 v{21+2*i}, 0xffff0000, v{28+i}")
    for i in range(8):
        a(f"""
        v_mul_f32 v{8+i}, v{20+i}, v19
        v_fma_f32 v{32+i}, -v{8+i}, v18, v{20+i}
        v_fma_f32 v{8+i}, v{32+i}, v19, v{8+i}
        """)
    for i in range(4):
        a(f"v_cvt_pk_bf16_f32 v{4+i}, v{8+2*i}, v{9+2*i}")
    a(f"""
    s_mul_i32 s56, s50, 1040
    v_lshlrev_b32 v3, 4, v0
    v_add_u32 v3, s56, v3
    ds_write_b128 v3, v[4:7] offset:{lds_base}
    v_and_b32 v8, 7, v0
    v_lshrrev_b32 v9, 3, v0
    s_lshl_b32 s56, s50, 3
    v_add_u32 v9, s56, v9
    v_mul_u32_u24 v10, 1040, v8
    v_lshl_add_u32 v10, v9, 4, v10
    s_waitcnt lgkmcnt(0)
    s_barrier
    ds_read_b128 v[4:7], v10 offset:{lds_base}
    v_lshlrev_b32 v11, 15, v9
    v_add_u32 v12, s53, v8
    v_lshl_add_u32 v11, v12, 4, v11
    s_add_u32 s54, s{P_WS}, {XQ}
    s_addc_u32 s55, s{P_WS+1}, 0
    s_waitcnt lgkmcnt(0)
    global_store_dwordx4 v11, v[4:7], s[54:55] sc1
    """)

def make_srd(a, s, ptr, nbytes):
    a(f"""
    s_mov_b32 s{s}, s{ptr}
    s_and_b32 s{s+1}, s{ptr+1}, 0xffff
    s_mov_b32 s{s+2}, {nbytes}
    s_mov_b32 s{s+3}, 0x00020000
    """)

G1_R = 8
def g1_dma_setup(a):
    make_srd(a, 52, P_WG, 512*3584)
    make_srd(a, 56, P_WU, 512*3584)
    a("""
    v_lshrrev_b32 v242, 4, v0          ; r_local
    v_bfe_u32 v243, v0, 1, 3           ; chunk'
    v_and_b32 v244, 1, v0              ; half
    v_xor_b32 v245, v243, v242
    v_xor_b32 v246, 4, v245
    v_mul_u32_u24 v242, 3584, v242
    v_lshl_add_u32 v242, v244, 4, v242
    v_lshl_add_u32 v240, v245, 5, v242
    v_lshl_add_u32 v241, v246, 5, v242
    s_mul_i32 s60, s49, 224
    s_mul_i32 s61, s50, 14336
    s_add_u32 s60, s60, s61
    """)

def g1_dma_issue(a, stage, ring_base=0):
    slot = stage % G1_R
    a(f"""
    s_add_u32 s61, s60, {stage*32*3584}
    s_lshl_b32 s62, s50, 10
    s_add_u32 m0, s62, {ring_base + slot*16384}
    s_nop 0
    buffer_load_dwordx4 v240, s[52:55], s61 offen lds
    s_add_u32 m0, s62, {ring_base + slot*16384 + 8192}
    s_nop 0
    buffer_load_dwordx4 v241, s[56:59], s61 offen lds
    """)

def phase_gemm1(a, ring_base=0, prefetched=False):
    a.comment("==== GEMM1 phase ====")
    BF = 8; ACC = 136; AF = 200; AD = 232; AT = 236
    if not prefetched:
        g1_dma_setup(a)
        for s in range(G1_R-1):
            g1_dma_issue(a, s, ring_base)
    a(f"""
    s_and_b32 s63, s50, 3
    s_lshl_b32 s64, s48, 7
    s_lshl_b32 s63, s63, 5
    s_add_u32 s63, s63, s64
    v_and_b32 v1, 31, v0
    v_add_u32 v1, s63, v1          ; token
    v_lshrrev_b32 v2, 5, v0        ; kh
    v_lshlrev_b32 v2, 15, v2
    v_lshl_add_u32 v1, v1, 4, v2
    s_add_u32 s64, s{P_WS}, {XQ}
    s_addc_u32 s65, s{P_WS+1}, 0
    """)
    for ks in range(32):
        a(f"global_load_dwordx4 {vr(BF+4*ks,4)}, v1, s[64:65] sc1")
        if ks < 31:
            a("s_add_u32 s64, s64, 65536\n s_addc_u32 s65, s65, 0")
    a(f"""
    v_lshrrev_b32 v2, 4, v0        ; grp
    v_and_b32 v3, 1, v2            ; region
    v_lshrrev_b32 v2, 1, v2        ; khalf
    v_bfe_u32 v4, v0, 2, 2         ; r4
    v_and_b32 v5, 3, v0            ; cq
    v_lshl_add_u32 v6, v3, 2, v4   ; e = r4 | region<<2
    v_lshlrev_b32 v6, 5, v6        ; e*32
    v_lshl_add_u32 v7, v2, 3, v4   ; 8*khalf + r4
    v_lshlrev_b32 v7, 8, v7        ; *256
    v_lshl_add_u32 v7, v3, 13, v7  ; + region*8192
    v_lshl_add_u32 v7, v5, 3, v7   ; + cq*8
    s_lshr_b32 s66, s50, 2         ; wn
    s_lshl_b32 s67, s66, 7         ; wn*4*32
    """)
    for t in range(4):
        a(f"""
        s_add_u32 s68, s67, {t*32}
        v_xor_b32 v{AD+t}, s68, v6
        v_add_u32 v{AD+t}, v{AD+t}, v7
        """)
    for i in range(64):
        a(f"v_mov_b32 v{ACC+i}, 0")
    Lwn1 = a.newlabel("g1wn1"); Lepi = a.newlabel("g1epi")
    a(f"s_cmp_eq_u32 s66, 1\n s_cbranch_scc1 {Lwn1}")
    for wn in range(2):
        nt = 4 if wn == 0 else 3
        if wn == 1:
            a.label(Lwn1)
        for s in range(16):
            issued = min(s, 16-(G1_R-1))
            nb = (30-2*s) + 2*issued
            if s >= G1_R-1:
                later = issued - (s-(G1_R-1)) - 1
                nb = min(nb, 2*later)
            a(f"s_waitcnt vmcnt({min(nb,63)})\n s_barrier")
            if s + G1_R-1 < 16:
                g1_dma_issue(a, s+G1_R-1, ring_base)
            slot = s % G1_R
            for t in range(nt):
                a(f"v_add_u32 v{AT+t}, {ring_base + slot*16384}, v{AD+t}")
            for k2 in range(2):
                for t in range(nt):
                    for h2 in range(2):
                        a(f"ds_read_b64_tr_b16 {vr(AF+16*k2+4*t+2*h2,2)}, v{AT+t} offset:{k2*4096+h2*1024}")
            for k2 in range(2):
                for t in range(nt):
                    rem = (2*nt*2) - (k2*nt*2 + (t+1)*2)
                    a(f"s_waitcnt lgkmcnt({rem})")
                    a(f"v_mfma_f32_32x32x16_bf16 {vr(ACC+16*t,16)}, {vr(AF+16*k2+4*t,4)}, {vr(BF+4*(2*s+k2),4)}, {vr(ACC+16*t,16)}")
        a("s_nop 15\n s_nop 3")
        a(f"""
        v_and_b32 v1, 31, v0
        v_add_u32 v1, s63, v1
        v_lshrrev_b32 v2, 5, v0
        s_mul_i32 s68, s49, 14
        s_add_u32 s68, s68, {8*wn}
        v_add_u32 v2, s68, v2
        v_lshlrev_b32 v2, 15, v2
        v_lshl_add_u32 v1, v1, 4, v2
        s_add_u32 s64, s{P_WS}, {HQ}
        s_addc_u32 s65, s{P_WS+1}, 0
        s_mov_b32 s69, 0xbfb8aa3b
        """)
        for t in range(nt):
            A = ACC+16*t
            T = 8
            for p in range(4):
                g0 = A+2*p; u0 = A+8+2*p
                b = T + 16*p
                a(f"""
                v_cvt_pk_bf16_f32 v{b}, v{g0}, v{g0+1}
                v_cvt_pk_bf16_f32 v{b+1}, v{u0}, v{u0+1}
                v_lshlrev_b32 v{b+2}, 16, v{b}
                v_and_b32 v{b+3}, 0xffff0000, v{b}
                v_mul_f32 v{b+2}, s69, v{b+2}
                v_mul_f32 v{b+3}, s69, v{b+3}
                v_exp_f32 v{b+2}, v{b+2}
                v_exp_f32 v{b+3}, v{b+3}
                v_lshlrev_b32 v{b+4}, 16, v{b+1}
                v_and_b32 v{b+5}, 0xffff0000, v{b+1}
                v_add_f32 v{b+2}, 1.0, v{b+2}
                v_add_f32 v{b+3}, 1.0, v{b+3}
                v_rcp_f32 v{b+2}, v{b+2}
                v_rcp_f32 v{b+3}, v{b+3}
                s_nop 0
                v_cvt_pk_bf16_f32 v{b+6}, v{b+2}, v{b+3}
                v_lshlrev_b32 v{b+2}, 16, v{b+6}
                v_and_b32 v{b+3}, 0xffff0000, v{b+6}
                v_mul_f32 v{b+2}, v{b+2}, v{b+4}
                v_mul_f32 v{b+3}, v{b+3}, v{b+5}
                v_cvt_pk_bf16_f32 v{80+4*t+p}, v{b+2}, v{b+3}
                """)
            R = 80+4*t
            a(f"""
            s_nop 1
            v_permlane32_swap_b32 v{R}, v{R+2}
            v_permlane32_swap_b32 v{R+1}, v{R+3}
            global_store_dwordx4 v1, {vr(R,4)}, s[64:65] sc1
            """)
            if t < nt-1:
                a("s_add_u32 s64, s64, 65536\n s_addc_u32 s65, s65, 0")
        if wn == 0:
            a(f"s_branch {Lepi}")
    a.label(Lepi)


CV_T = 0
CV_KC = 0
CV_U = 66560
CV_R = 81920
CV_PAR = 90368
LOG2E = 0x3fb8aa3b
INV2PI = 0x3e22f983

def cmul(a, dr, di, ar, ai, br, bi, t):
    a(f"""
    v_mul_f32 v{t}, v{ai}, v{bi}
    v_mul_f32 v{t+1}, v{ai}, v{br}
    v_fma_f32 v{dr}, v{ar}, v{br}, -v{t}
    v_fma_f32 v{di}, v{ar}, v{bi}, v{t+1}
    """)

def cexp(a, dr, di, a2, w, p, t, p_is_lit=False):
    ps = p if p_is_lit else f"v{p}"
    a(f"""
    v_mul_f32 v{t}, {ps}, v{a2}
    v_mul_f32 v{t+1}, {ps}, v{w}
    v_exp_f32 v{t}, v{t}
    v_fract_f32 v{t+1}, v{t+1}
    v_cos_f32 v{dr}, v{t+1}
    v_sin_f32 v{di}, v{t+1}
    s_nop 0
    v_mul_f32 v{dr}, v{dr}, v{t}
    v_mul_f32 v{di}, v{di}, v{t}
    """)

def csplit(a, hi, lo, re, im, t, neg=False):
    n = "-" if neg else ""
    a(f"""
    v_cvt_pk_bf16_f32 v{hi}, v{re}, {n}v{im}
    v_lshlrev_b32 v{t}, 16, v{hi}
    v_and_b32 v{t+1}, 0xffff0000, v{hi}
    v_sub_f32 v{t}, v{re}, v{t}
    v_sub_f32 v{t+1}, {n}v{im}, v{t+1}
    v_cvt_pk_bf16_f32 v{lo}, v{t}, v{t+1}
    """)

def phase_kgen(a):
    a.comment("==== Kgen phase ====")
    a(f"""
    s_lshr_b32 s70, s50, 2
    s_and_b32 s71, s50, 3
    s_lshl_b32 s72, s4, 6
    s_lshl_b32 s73, s5, 1
    s_add_u32 s72, s72, s73
    s_add_u32 s72, s72, s70            ; channel d
    v_and_b32 v1, 31, v0
    s_lshl_b32 s73, s72, 7
    s_lshl_b32 s74, s71, 5
    s_add_u32 s73, s73, s74
    v_add_u32 v1, s73, v1
    v_lshlrev_b32 v1, 1, v1
    s_lshl_b32 s73, s72, 1
    v_mov_b32 v2, s73
    global_load_ushort v8, v1, s[{P_ARE}:{P_ARE+1}]
    global_load_ushort v9, v1, s[{P_AIM}:{P_AIM+1}]
    global_load_ushort v10, v1, s[{P_BRE}:{P_BRE+1}]
    global_load_ushort v11, v1, s[{P_BIM}:{P_BIM+1}]
    global_load_ushort v12, v1, s[{P_CRE}:{P_CRE+1}]
    global_load_ushort v13, v1, s[{P_CIM}:{P_CIM+1}]
    global_load_ushort v14, v2, s[{P_LDT}:{P_LDT+1}]
    s_waitcnt vmcnt(0)
    """)
    for r in range(8,15):
        a(f"v_lshlrev_b32 v{r}, 16, v{r}")
    a(f"""
    s_mov_b32 s74, 0x3fb8aa3b
    s_mov_b32 s75, 0x32a57060
    v_mul_f32 v15, s74, v14
    v_fma_f32 v16, v14, s74, -v15
    v_fma_f32 v16, v14, s75, v16
    v_exp_f32 v15, v15
    v_mul_f32 v16, 0x3f317218, v16
    v_fma_f32 v15, v15, v16, v15
    """)
    bf16_round(a, 15, 15)
    a(f"""
    v_mul_f32 v8, v15, v8      ; ar
    v_mul_f32 v9, v15, v9      ; ai
    v_mul_f32 v10, v15, v10    ; dBr
    v_mul_f32 v11, v15, v11    ; dBi
    """)
    cmul(a, 18, 19, 12, 13, 10, 11, 30)
    a(f"""
    v_mul_f32 v16, s74, v8          ; a2
    v_mul_f32 v17, 0x{INV2PI:08x}, v9      ; w
    """)
    cexp(a, 20, 21, 16, 17, "0x41800000", 30, True)
    cexp(a, 22, 23, 16, 17, "0x44000000", 30, True)
    cexp(a, 24, 25, 16, 17, "0x45000000", 30, True)
    a(f"""
    v_mul_f32 v26, v19, v25
    v_fma_f32 v26, v18, v24, -v26
    v_mul_f32 v27, 0x45000000, v16
    v_max_f32 v27, 0, v27
    v_exp_f32 v27, v27
    v_add_f32 v28, abs(v18), abs(v19)
    v_mul_f32 v27, v27, v28
    v_cmp_gt_u32 vcc, 32, v0
    s_nop 1
    v_cndmask_b32 v26, 0, v26, vcc
    v_cndmask_b32 v27, 0, v27, vcc
    """)
    wave_reduce(a, 26)
    wave_reduce(a, 27)
    a(f"""
    s_lshl_b32 s73, s50, 10
    s_add_u32 s73, s73, {CV_PAR}
    v_and_b32 v1, 31, v0
    v_lshlrev_b32 v1, 5, v1
    v_add_u32 v1, s73, v1
    ds_write_b128 v1, v[16:19]
    ds_write_b128 v1, v[20:23] offset:16
    v_readlane_b32 s76, v26, 63
    v_readlane_b32 s77, v27, 63
    s_mul_i32 s78, s50, 9360
    s_add_u32 s78, s78, {CV_T}
    v_mov_b32 v2, s76
    v_mov_b32 v3, s77
    v_mov_b32 v1, s78
    ds_write_b64 v1, v[2:3] offset:{64*144}
    """)
    ACC = 200
    for i in range(32):
        a(f"v_mov_b32 v{ACC+i}, 0")
    a(f"""
    v_and_b32 v1, 15, v0
    v_cvt_f32_u32 v2, v1              ; p_col = j
    v_mul_f32 v3, 0x42000000, v2      ; p_row = 32 i
    v_lshrrev_b32 v4, 4, v0           ; kq
    v_lshlrev_b32 v4, 7, v4
    v_add_u32 v4, s73, v4
    s_waitcnt lgkmcnt(0)
    """)
    HF = 16
    GF = 32
    for ks in range(2):
        for e in range(4):
            off = (16*ks+e)*32
            a(f"""
            ds_read_b128 v[8:11], v4 offset:{off}
            ds_read_b128 v[12:15], v4 offset:{off+16}
            s_waitcnt lgkmcnt(0)
            """)
            cexp(a, 64, 65, 8, 9, 2, 80)
            cexp(a, 68, 69, 8, 9, 3, 82)
            cmul(a, 66, 67, 64, 65, 12, 13, 80)
            cmul(a, 70, 71, 68, 69, 10, 11, 82)
            cmul(a, 72, 73, 70, 71, 14, 15, 80)
            cmul(a, 74, 75, 72, 73, 14, 15, 82)
            cmul(a, 76, 77, 74, 75, 14, 15, 80)
            for ct in range(2):
                csplit(a, HF+(ct*2)*4+e, HF+(ct*2+1)*4+e, 64+2*ct, 65+2*ct, 80+2*ct, neg=True)
            for rt in range(4):
                csplit(a, GF+(rt*2)*4+e, GF+(rt*2+1)*4+e, 70+2*rt, 71+2*rt, 84+2*(rt&1))
        a("s_nop 1")
        for rt in range(4):
            for ct in range(2):
                D = ACC+(rt*2+ct)*4
                hh = HF+(ct*2)*4; hl = HF+(ct*2+1)*4; gh = GF+(rt*2)*4; gl = GF+(rt*2+1)*4
                a(f"v_mfma_f32_16x16x32_bf16 {vr(D,4)}, {vr(hh,4)}, {vr(gh,4)}, {vr(D,4)}")
        for rt in range(4):
            for ct in range(2):
                D = ACC+(rt*2+ct)*4
                hh = HF+(ct*2)*4; hl = HF+(ct*2+1)*4; gh = GF+(rt*2)*4; gl = GF+(rt*2+1)*4
                a(f"v_mfma_f32_16x16x32_bf16 {vr(D,4)}, {vr(hl,4)}, {vr(gh,4)}, {vr(D,4)}")
        for rt in range(4):
            for ct in range(2):
                D = ACC+(rt*2+ct)*4
                hh = HF+(ct*2)*4; hl = HF+(ct*2+1)*4; gh = GF+(rt*2)*4; gl = GF+(rt*2+1)*4
                a(f"v_mfma_f32_16x16x32_bf16 {vr(D,4)}, {vr(hh,4)}, {vr(gl,4)}, {vr(D,4)}")
    a(f"""
    s_nop 15
    v_and_b32 v1, 15, v0
    v_mul_u32_u24 v1, 144, v1
    v_lshrrev_b32 v4, 4, v0
    v_lshl_add_u32 v1, v4, 4, v1
    v_add_u32 v1, s78, v1
    """)
    for rt in range(4):
        for ct in range(2):
            D = ACC+(rt*2+ct)*4
            a(f"ds_write_b128 v1, {vr(D,4)} offset:{rt*16*144 + ct*64}")
    a("s_waitcnt lgkmcnt(0)\n s_barrier")
    a(f"""
    s_lshl_b32 s73, s71, 6
    v_add_u32 v1, s73, v0             ; z
    v_lshlrev_b32 v2, 3, v1
    v_sub_u32 v2, 2047, v2            ; l for e=0
    s_mul_i32 s79, s70, 37440
    s_add_u32 s79, s79, {CV_T}
    """)
    for e in range(8):
        a(f"""
        v_subrev_u32 v8, {e}, v2
        v_cvt_f32_u32 v8, v8
        v_cvt_pk_bf16_f32 v8, v8, v8
        v_lshlrev_b32 v8, 16, v8
        v_cvt_u32_f32 v8, v8               ; p
        v_lshrrev_b32 v9, 5, v8
        v_and_b32 v10, 31, v8
        v_mul_u32_u24 v9, 144, v9
        v_lshl_add_u32 v9, v10, 2, v9
        v_add_u32 v9, s79, v9
        """)
        for qq in range(4):
            a(f"ds_read_b32 v{16+e*4+qq}, v9 offset:{qq*9360}")
    a(f"v_mov_b32 v9, s79")
    for qq in range(4):
        a(f"ds_read_b32 v{48+qq}, v9 offset:{qq*9360 + 64*144 + 4}")
    a("s_waitcnt lgkmcnt(0)")
    a("""
    v_add_f32 v48, v48, v49
    v_add_f32 v50, v50, v51
    v_add_f32 v48, v48, v50
    v_frexp_exp_i32_f32 v49, v48
    v_sub_u32 v50, 14, v49
    v_subrev_u32 v51, 14, v49
    v_ldexp_f32 v50, 1.0, v50         ; scale
    v_ldexp_f32 v239, 1.0, v51
    """)
    for e in range(8):
        b = 16+e*4
        a(f"""
        v_add_f32 v{b}, v{b}, v{b+1}
        v_add_f32 v{b+2}, v{b+2}, v{b+3}
        v_add_f32 v{b}, v{b}, v{b+2}
        """)
    return

def phase_kgen2(a, kdbg=False):
    if kdbg:
        a(f"""
        s_lshl_b32 s73, s72, 13
        s_add_u32 s74, s{P_WS}, 0x1000000
        s_addc_u32 s75, s{P_WS+1}, 0
        s_add_u32 s74, s74, s73
        s_addc_u32 s75, s75, 0
        """)
        for e in range(8):
            a(f"v_subrev_u32 v8, {e}, v2\n v_lshlrev_b32 v8, 2, v8\n global_store_dword v8, v{16+e*4}, s[74:75]")
    for e in range(8):
        a(f"v_mul_f32 v{16+e*4}, v50, v{16+e*4}")
    for p in range(4):
        a(f"v_cvt_pk_f16_f32 v{52+p}, v{16+8*p}, v{20+8*p}")
    a(f"""
    s_mul_i32 s73, s70, 4224
    s_add_u32 s73, s73, {CV_R}
    v_lshlrev_b32 v3, 4, v1
    v_add_u32 v3, s73, v3
    ds_write_b128 v3, v[52:55] 
    v_mov_b32 v56, 0
    v_mov_b32 v57, 0
    v_mov_b32 v58, 0
    v_mov_b32 v59, 0
    v_mov_b32 v4, s73
    ds_write_b128 v4, v[56:59] offset:4096
    ds_write_b128 v4, v[56:59] offset:4112
    ds_write_b128 v4, v[56:59] offset:4128
    ds_write_b128 v4, v[56:59] offset:4144
    s_waitcnt lgkmcnt(0)
    s_barrier
    """)

def kc_build_one(a, vz):
    a(f"""
    v_lshlrev_b32 v3, 4, v{vz}
    v_add_u32 v3, s73, v3
    ds_read_b128 v[8:11], v3 
    ds_read_b128 v[12:15], v3 offset:16
    s_mul_i32 s74, s70, 33280
    s_add_u32 s74, s74, {CV_KC}
    v_lshlrev_b32 v4, 4, v{vz}
    v_add_u32 v4, s74, v4
    s_waitcnt lgkmcnt(0)
    """)
    for c in range(8):
        sft = 7-c
        dst = 16+4*c
        for k in range(4):
            if sft % 2 == 0:
                a(f"v_mov_b32 v{dst+k}, v{8+sft//2+k}")
            else:
                a(f"v_alignbit_b32 v{dst+k}, v{8+sft//2+k+1}, v{8+sft//2+k}, 16")
        a(f"ds_write_b128 v4, {vr(dst,4)} offset:{c*4160}")

def phase_conv(a):
    a.comment("==== conv phase ====")
    kc_build_one(a, 1)
    Ls = a.newlabel("kcskip")
    a(f"""
    s_cmp_lg_u32 s71, 0
    s_cbranch_scc1 {Ls}
    v_cmp_gt_u32 vcc, 3, v0
    s_and_saveexec_b64 s[76:77], vcc
    v_add_u32 v5, 256, v0
    """)
    kc_build_one(a, 5)
    a("s_mov_b64 exec, s[76:77]")
    a.label(Ls)
    a(f"""
    s_lshl_b32 s73, s50, 6
    v_add_u32 v1, s73, v0             ; tid
    s_lshl_b32 s74, s4, 6
    s_lshl_b32 s75, s5, 1
    s_add_u32 s74, s74, s75           ; d0
    s_lshr_b32 s75, s74, 3            ; g
    s_lshl_b32 s75, s75, 15
    s_and_b32 s74, s74, 7
    s_lshl_b32 s74, s74, 1
    s_add_u32 s75, s75, s74
    s_add_u32 s74, s{P_WS}, s75
    s_addc_u32 s75, s{P_WS+1}, 0
    v_lshlrev_b32 v2, 4, v1
    global_load_dword v8, v2, s[74:75] sc1
    v_add_u32 v2, 8192, v2
    global_load_dword v9, v2, s[74:75] sc1
    v_add_u32 v2, 8192, v2
    global_load_dword v10, v2, s[74:75] sc1
    v_add_u32 v2, 8192, v2
    global_load_dword v11, v2, s[74:75] sc1
    v_mov_b32 v56, 0
    v_mov_b32 v57, 0
    v_mov_b32 v58, 0
    v_mov_b32 v59, 0
    v_cmp_gt_u32 vcc, 160, v1
    v_lshlrev_b32 v3, 4, v1
    v_add_u32 v3, {CV_U}, v3
    s_and_saveexec_b64 s[76:77], vcc
    ds_write_b128 v3, v[56:59]
    ds_write_b128 v3, v[56:59] offset:7680
    s_mov_b64 exec, s[76:77]
    v_lshrrev_b32 v3, 5, v1
    v_mul_u32_u24 v3, 80, v3
    v_and_b32 v4, 31, v1
    v_lshl_add_u32 v3, v4, 1, v3      ; (t>>5)*80 + (t&31)*2
    v_add_u32 v3, {CV_U+2560}, v3
    s_waitcnt vmcnt(0)
    """)
    for i in range(4):
        a(f"""
        v_lshlrev_b32 v12, 16, v{8+i}
        v_and_b32 v13, 0xffff0000, v{8+i}
        v_cvt_f16_f32 v12, v12
        v_cvt_f16_f32 v13, v13
        ds_write_b16 v3, v12 offset:{i*16*80}
        ds_write_b16 v3, v13 offset:{7680 + i*16*80}
        """)
    a("s_waitcnt lgkmcnt(0)\n s_barrier")
    ACC0 = 200; ACC1 = 216
    a(f"""
    v_and_b32 v1, 31, v0              ; j / I
    v_lshrrev_b32 v2, 5, v0           ; hh
    v_and_b32 v3, 7, v1               ; c'
    v_lshrrev_b32 v4, 3, v1           ; jf
    v_mul_u32_u24 v3, 4160, v3
    v_sub_u32 v4, v2, v4
    v_add_u32 v4, 255, v4
    v_lshl_add_u32 v3, v4, 4, v3      ; vKA
    s_lshl_b32 s73, s71, 9            ; 64*8q
    s_add_u32 s73, s73, {64*7+2048}
    s_mul_i32 s74, s70, 33280
    s_add_u32 s74, s74, {CV_KC}
    s_sub_u32 s74, s74, s73
    v_add_u32 v5, s74, v3
    v_mul_u32_u24 v6, 80, v1
    v_lshl_add_u32 v6, v2, 4, v6
    s_lshl_b32 s73, s71, 3
    s_sub_u32 s73, 25, s73            ; 32-8q-7
    s_mul_i32 s73, s73, 80
    s_mul_i32 s74, s70, 7680
    s_add_u32 s73, s73, s74
    s_add_u32 s73, s73, {CV_U}
    v_add_u32 v6, s73, v6             ; vUB
    """)
    for i in range(32):
        a(f"v_mov_b32 v{ACC0+i}, 0")
    def reads(i, base):
        for ks in range(2):
            a(f"ds_read_b128 {vr(base+ks*16,4)}, v5 offset:{64*(7-i)+32*ks+2048}")
            a(f"ds_read_b128 {vr(base+ks*16+4,4)}, v5 offset:{64*(7-i)+32*ks}")
            a(f"ds_read_b128 {vr(base+ks*16+8,4)}, v6 offset:{(7-i)*80+ks*32}")
            a(f"ds_read_b128 {vr(base+ks*16+12,4)}, v6 offset:{(7-i)*80+2560+ks*32}")
    reads(0, 8)
    for i in range(8):
        base = 8 + 32*(i&1)
        if i < 7:
            reads(i+1, 8+32*((i+1)&1))
            a("s_waitcnt lgkmcnt(8)")
        else:
            a("s_waitcnt lgkmcnt(0)")
        for ks in range(2):
            An = base+ks*16; Af = An+4; B0 = An+8; B1 = An+12
            a(f"v_mfma_f32_32x32x16_f16 {vr(ACC0,16)}, {vr(An,4)}, {vr(B0,4)}, {vr(ACC0,16)}")
            a(f"v_mfma_f32_32x32x16_f16 {vr(ACC1,16)}, {vr(An,4)}, {vr(B1,4)}, {vr(ACC1,16)}")
            a(f"v_mfma_f32_32x32x16_f16 {vr(ACC1,16)}, {vr(Af,4)}, {vr(B0,4)}, {vr(ACC1,16)}")
    a("s_barrier")
    a("s_nop 7")
    a(f"""
    s_lshl_b32 s73, s50, 13           ; (ch*4+src)*8192
    v_lshlrev_b32 v1, 4, v0
    v_add_u32 v2, s73, v1
    """)
    for dq in range(4):
        a(f"ds_write_b128 v2, {vr(ACC0+8*dq,4)} offset:{dq*2048}")
        a(f"ds_write_b128 v2, {vr(ACC0+8*dq+4,4)} offset:{dq*2048+1024}")
    a(f"""
    s_waitcnt lgkmcnt(0)
    s_barrier
    s_lshl_b32 s73, s70, 15
    s_lshl_b32 s74, s71, 11
    s_add_u32 s73, s73, s74
    v_add_u32 v2, s73, v1
    """)
    for src in range(4):
        a(f"ds_read_b128 {vr(8+8*src,4)}, v2 offset:{src*8192}")
        a(f"ds_read_b128 {vr(12+8*src,4)}, v2 offset:{src*8192+1024}")
    a(f"""
    v_and_b32 v3, 31, v0
    v_lshrrev_b32 v4, 5, v0
    s_lshr_b32 s73, s71, 1
    s_lshl_b32 s73, s73, 5            ; 32*(q>>1)
    s_and_b32 s74, s71, 1
    s_lshl_b32 s74, s74, 4            ; 16*(q&1)
    v_add_u32 v5, s73, v3             ; I'
    v_mul_u32_u24 v6, 80, v5
    v_lshl_add_u32 v6, v4, 3, v6      ; + 4hh*2
    s_mul_i32 s75, s70, 7680
    s_lshl_b32 s76, s74, 1
    s_add_u32 s75, s75, s76
    s_add_u32 s75, s75, {CV_U+2560}
    v_add_u32 v6, s75, v6
    ds_read_b64 v[40:41], v6
    ds_read_b64 v[42:43], v6 offset:16
    s_lshl_b32 s75, s72, 1
    v_mov_b32 v7, s75
    global_load_ushort v7, v7, s[{P_DSK}:{P_DSK+1}]
    v_lshlrev_b32 v5, 5, v5
    v_lshl_add_u32 v5, v4, 2, v5
    v_add_u32 v5, s74, v5
    v_lshlrev_b32 v5, 1, v5
    s_lshl_b32 s75, s72, 12
    s_add_u32 s74, s{P_WS}, s75
    s_addc_u32 s75, s{P_WS+1}, 0
    s_add_u32 s74, s74, {ST}
    s_addc_u32 s75, s75, 0
    s_waitcnt vmcnt(0) lgkmcnt(0)
    v_lshlrev_b32 v7, 16, v7          ; Dskip
    """)
    for i in range(8):
        a(f"""
        v_add_f32 v{8+i}, v{8+i}, v{16+i}
        v_add_f32 v{24+i}, v{24+i}, v{32+i}
        v_add_f32 v{8+i}, v{8+i}, v{24+i}
        v_mul_f32 v{8+i}, v239, v{8+i}
        """)
    for p in range(4):
        a(f"""
        v_cvt_f32_f16 v{44+2*p}, v{40+p}
        v_cvt_f32_f16_sdwa v{45+2*p}, v{40+p} dst_sel:DWORD dst_unused:UNUSED_PAD src0_sel:WORD_1
        v_mul_f32 v{44+2*p}, v7, v{44+2*p}
        v_mul_f32 v{45+2*p}, v7, v{45+2*p}
        v_cvt_pk_bf16_f32 v{52+p}, v{44+2*p}, v{45+2*p}
        v_cvt_pk_bf16_f32 v{56+p}, v{8+2*p}, v{9+2*p}
        v_lshlrev_b32 v{44+2*p}, 16, v{52+p}
        v_and_b32 v{45+2*p}, 0xffff0000, v{52+p}
        v_lshlrev_b32 v{8+2*p}, 16, v{56+p}
        v_and_b32 v{9+2*p}, 0xffff0000, v{56+p}
        v_add_f32 v{8+2*p}, v{8+2*p}, v{44+2*p}
        v_add_f32 v{9+2*p}, v{9+2*p}, v{45+2*p}
        v_cvt_pk_bf16_f32 v{60+p}, v{8+2*p}, v{9+2*p}
        """)
    a(f"""
    global_store_dwordx2 v5, v[60:61], s[74:75] sc1
    global_store_dwordx2 v5, v[62:63], s[74:75] offset:16 sc1
    """)


G2_R = 8
def g2_setup(a):
    make_srd(a, 60, P_WD, 1792*1024)
    a("""
    s_lshr_b32 s80, s4, 1
    s_lshl_b32 s80, s80, 3
    s_and_b32 s81, s5, 7
    s_add_u32 s80, s80, s81            ; tt
    s_and_b32 s81, s4, 1
    s_lshl_b32 s81, s81, 2
    s_lshr_b32 s82, s5, 3
    s_add_u32 s81, s81, s82            ; dt
    s_and_b32 s82, s50, 1              ; nt
    s_lshr_b32 s83, s50, 1             ; kq
    v_lshrrev_b32 v242, 3, v0          ; r_local
    v_bfe_u32 v243, v0, 1, 2           ; chunk'
    v_and_b32 v244, 1, v0
    v_and_b32 v245, 2, v242
    v_xor_b32 v243, v243, v245         ; chunk
    v_lshlrev_b32 v242, 10, v242
    v_lshl_add_u32 v242, v244, 4, v242
    v_lshl_add_u32 v240, v243, 5, v242
    s_mul_i32 s84, s83, 458752         ; 448*1024*kq
    s_lshl_b32 s85, s82, 14
    s_add_u32 s84, s84, s85
    s_lshl_b32 s85, s81, 7
    s_add_u32 s84, s84, s85
    s_lshl_b32 s85, s83, 12
    s_lshl_b32 s86, s82, 11
    s_add_u32 s85, s85, s86
    """)

def g2_dma_issue(a, stage, ring_base=0):
    slot = stage % G2_R
    a(f"""
    s_add_u32 s86, s84, {stage*32*1024}
    s_add_u32 m0, s85, {ring_base + slot*16384}
    s_nop 0
    buffer_load_dwordx4 v240, s[60:63], s86 offen lds
    s_add_u32 s86, s86, 8192
    s_add_u32 m0, s85, {ring_base + slot*16384 + 1024}
    s_nop 0
    buffer_load_dwordx4 v240, s[60:63], s86 offen lds
    """)

def phase_gemm2(a, ring_base=0, prefetched=False):
    a.comment("==== GEMM2 phase ====")
    BF = 8; ACC = 136; AF = 168; AD = 232; AT = 236
    NS = 14
    if not prefetched:
        g2_setup(a)
        for s in range(G2_R-1):
            g2_dma_issue(a, s, ring_base)
    a(f"""
    s_lshl_b32 s87, s80, 6
    s_lshl_b32 s88, s82, 5
    s_add_u32 s87, s87, s88
    v_and_b32 v1, 31, v0
    v_add_u32 v1, s87, v1
    v_lshrrev_b32 v2, 5, v0
    s_mul_i32 s88, s83, 56
    v_add_u32 v2, s88, v2
    v_lshlrev_b32 v2, 15, v2
    v_lshl_add_u32 v1, v1, 4, v2
    s_add_u32 s64, s{P_WS}, {HQ}
    s_addc_u32 s65, s{P_WS+1}, 0
    """)
    for ks in range(28):
        a(f"global_load_dwordx4 {vr(BF+4*ks,4)}, v1, s[64:65] sc1")
        if ks < 27:
            a("s_add_u32 s64, s64, 65536\n s_addc_u32 s65, s65, 0")
    a(f"""
    v_lshrrev_b32 v2, 4, v0        ; grp
    v_and_b32 v3, 1, v2            ; dhalf
    v_lshrrev_b32 v2, 1, v2        ; khalf
    v_bfe_u32 v4, v0, 2, 2         ; r4
    v_and_b32 v5, 3, v0            ; cq
    v_and_b32 v6, 2, v4            ; r4&2
    v_lshl_add_u32 v7, v2, 3, v4   ; 8*khalf + r4
    v_lshlrev_b32 v7, 7, v7        ; *128
    v_lshl_add_u32 v7, v5, 3, v7
    s_lshl_b32 s88, s83, 12
    v_add_u32 v7, s88, v7
    """)
    for mt in range(2):
        a(f"""
        v_add_u32 v124, {2*mt}, v3
        v_xor_b32 v124, v124, v6
        v_lshl_add_u32 v{AD+mt}, v124, 5, v7
        """)
    for i in range(32):
        a(f"v_mov_b32 v{ACC+i}, 0")
    for s in range(NS):
        issued = min(s, NS-(G2_R-1))
        nb = (26-2*s) + 2*issued
        if s >= G2_R-1:
            later = issued - (s-(G2_R-1)) - 1
            nb = min(nb, 2*later)
        a(f"s_waitcnt vmcnt({min(nb,63)})\n s_barrier")
        if s + G2_R-1 < NS:
            g2_dma_issue(a, s+G2_R-1, ring_base)
        slot = s % G2_R
        for mt in range(2):
            a(f"v_add_u32 v{AT+mt}, {ring_base + slot*16384}, v{AD+mt}")
        for k2 in range(2):
            for mt in range(2):
                for h2 in range(2):
                    a(f"ds_read_b64_tr_b16 {vr(AF+8*k2+4*mt+2*h2,2)}, v{AT+mt} offset:{k2*2048+h2*512}")
        for k2 in range(2):
            for mt in range(2):
                rem = 8 - (k2*4 + (mt+1)*2)
                a(f"s_waitcnt lgkmcnt({rem})")
                a(f"v_mfma_f32_32x32x16_bf16 {vr(ACC+16*mt,16)}, {vr(AF+8*k2+4*mt,4)}, {vr(BF+4*(2*s+k2),4)}, {vr(ACC+16*mt,16)}")
    a("s_barrier\n s_nop 7")
    a(f"""
    s_lshl_b32 s88, s82, 2
    s_add_u32 s88, s88, s83
    s_lshl_b32 s88, s88, 13
    s_add_u32 s88, s88, {ring_base}
    v_lshlrev_b32 v1, 4, v0
    v_add_u32 v2, s88, v1
    """)
    for dq in range(4):
        a(f"ds_write_b128 v2, {vr(ACC+8*dq,4)} offset:{dq*2048}")
        a(f"ds_write_b128 v2, {vr(ACC+8*dq+4,4)} offset:{dq*2048+1024}")
    a(f"""
    s_waitcnt lgkmcnt(0)
    s_barrier
    s_lshl_b32 s88, s82, 15
    s_lshl_b32 s89, s83, 11
    s_add_u32 s88, s88, s89
    s_add_u32 s88, s88, {ring_base}
    v_add_u32 v2, s88, v1
    """)
    for src in range(4):
        a(f"ds_read_b128 {vr(8+8*src,4)}, v2 offset:{src*8192}")
        a(f"ds_read_b128 {vr(12+8*src,4)}, v2 offset:{src*8192+1024}")

def phase_epi(a):
    a.comment("==== final epilogue ====")
    a(f"""
    v_and_b32 v3, 31, v0
    v_add_u32 v3, s87, v3              ; t
    v_lshrrev_b32 v4, 5, v0            ; hh
    s_lshl_b32 s88, s83, 4
    s_lshl_b32 s89, s81, 6
    s_add_u32 s88, s88, s89            ; d base
    v_lshlrev_b32 v5, 2, v4
    v_add_u32 v5, s88, v5
    v_lshlrev_b32 v6, 10, v3
    v_lshl_add_u32 v6, v5, 1, v6
    global_load_dwordx2 v[40:41], v6, s[{P_X}:{P_X+1}]
    global_load_dwordx2 v[42:43], v6, s[{P_X}:{P_X+1}] offset:16
    ; s offset = d*4096 + t*2
    v_lshlrev_b32 v7, 12, v5
    v_lshl_add_u32 v7, v3, 1, v7
    s_add_u32 s64, s{P_WS}, {ST}
    s_addc_u32 s65, s{P_WS+1}, 0
    """)
    for i in range(8):
        dd = (i&3) + 8*(i>>2)
        a(f"v_add_u32 v{60+i}, {dd*4096}, v7")
        a(f"global_load_ushort v{48+i}, v{60+i}, s[64:65] sc1")
    a("s_waitcnt lgkmcnt(0)")
    for i in range(8):
        a(f"""
        v_add_f32 v{8+i}, v{8+i}, v{16+i}
        v_add_f32 v{24+i}, v{24+i}, v{32+i}
        v_add_f32 v{8+i}, v{8+i}, v{24+i}
        """)
    a("s_mov_b32 s69, 0xbfb8aa3b")
    for p in range(4):
        a(f"""
        v_cvt_pk_bf16_f32 v{16+p}, v{8+2*p}, v{9+2*p}
        v_lshlrev_b32 v{8+2*p}, 16, v{16+p}
        v_and_b32 v{9+2*p}, 0xffff0000, v{16+p}
        v_mul_f32 v{24+2*p}, s69, v{8+2*p}
        v_mul_f32 v{25+2*p}, s69, v{9+2*p}
        v_exp_f32 v{24+2*p}, v{24+2*p}
        v_exp_f32 v{25+2*p}, v{25+2*p}
        s_nop 0
        v_add_f32 v{24+2*p}, 1.0, v{24+2*p}
        v_add_f32 v{25+2*p}, 1.0, v{25+2*p}
        v_rcp_f32 v{24+2*p}, v{24+2*p}
        v_rcp_f32 v{25+2*p}, v{25+2*p}
        s_nop 0
        v_mul_f32 v{8+2*p}, v{8+2*p}, v{24+2*p}
        v_mul_f32 v{9+2*p}, v{9+2*p}, v{25+2*p}
        v_cvt_pk_bf16_f32 v{16+p}, v{8+2*p}, v{9+2*p}
        v_lshlrev_b32 v{8+2*p}, 16, v{16+p}
        v_and_b32 v{9+2*p}, 0xffff0000, v{16+p}
        """)
    a("s_waitcnt vmcnt(0)")
    for p in range(4):
        a(f"""
        v_lshlrev_b32 v{48+2*p}, 16, v{48+2*p}
        v_lshlrev_b32 v{49+2*p}, 16, v{49+2*p}
        v_mul_f32 v{8+2*p}, v{8+2*p}, v{48+2*p}
        v_mul_f32 v{9+2*p}, v{9+2*p}, v{49+2*p}
        v_cvt_pk_bf16_f32 v{16+p}, v{8+2*p}, v{9+2*p}
        v_lshlrev_b32 v{8+2*p}, 16, v{16+p}
        v_and_b32 v{9+2*p}, 0xffff0000, v{16+p}
        v_lshlrev_b32 v{24+2*p}, 16, v{40+p}
        v_and_b32 v{25+2*p}, 0xffff0000, v{40+p}
        v_add_f32 v{8+2*p}, v{8+2*p}, v{24+2*p}
        v_add_f32 v{9+2*p}, v{9+2*p}, v{25+2*p}
        v_cvt_pk_bf16_f32 v{20+p}, v{8+2*p}, v{9+2*p}
        """)
    a(f"""
    global_store_dwordx2 v6, v[20:21], s[{P_OUT}:{P_OUT+1}]
    global_store_dwordx2 v6, v[22:23], s[{P_OUT}:{P_OUT+1}] offset:16
    """)

def build_multi(which):
    out = []
    kern = []
    if "ln" in which: kern.append(("k_ln_kernel", 16384))
    if "g1" in which: kern.append(("k_g1_kernel", 163840))
    if "cv" in which: kern.append(("k_cv_kernel", 98560))
    if "g2" in which: kern.append(("k_g2_kernel", 131072))
    hdr = HEADER_COMMENT
    for n, lds in kern:
        hdr += f"; @launch kernel={n} grid=(256,1,1) block=(512,1,1) lds={lds}\n"
    txt = hdr + '.amdgcn_target "amdgcn-amd-amdhsa--gfx950"\n.text\n'
    for n, lds in kern:
        a = Asm()
        end = f"Lend_{n}"
        prologue(a, end)
        if n == "k_ln_kernel": phase_ln(a)
        if n == "k_g1_kernel": phase_gemm1(a)
        if n == "k_g2_kernel":
            phase_gemm2(a); phase_epi(a)
        if n == "k_cv_kernel":
            phase_kgen(a); phase_kgen2(a, kdbg=("kdbg" in which)); phase_conv(a)
        a("s_waitcnt vmcnt(0)")
        a.label(end)
        a("s_endpgm")
        txt += kernel_header(n) + a.text()
    txt += '.section .rodata,"a"\n'
    for n, lds in kern:
        txt += kernel_desc(n)
    return txt

if __name__ == "__main__":
    which = sys.argv[1].split(",")
    open(sys.argv[2], "w").write(build_multi(which))
```

```python
import sys, copy
from asmlib import *

XQ = 0
HQ = 0x200000
ST = 0x900000
FLG = 0xC00000
P_X, P_ARE, P_AIM, P_BRE, P_BIM, P_CRE, P_CIM, P_LDT = 16,18,20,22,24,26,28,30
P_DSK, P_BX, P_WG, P_WU, P_WD, P_OUT, P_DBG, P_WS = 32,34,36,38,40,42,44,46
KNAME = "recurrent_scan__ssm_conv_s4__glu_gated_glu__prompt_kernel"
LDS_BYTES = 81920
OPTS = []
SLEEP = 4
FINE = False
STAMPS = False
_stamp_n = [0]
def stamp(a, name=""):
    if not STAMPS: return
    i = _stamp_n[0]; _stamp_n[0] += 1
    a(f"s_memtime s[98:99]\n s_waitcnt lgkmcnt(0)\n v_writelane_b32 v255, s98, {i}")
def stamp_begin(a):
    _stamp_n[0] = 0
    if STAMPS: a("s_memrealtime s[98:99]\n s_waitcnt lgkmcnt(0)\n v_writelane_b32 v255, s98, 62")
    stamp(a)
def stamp_flush(a):
    if not STAMPS: return
    a("s_memrealtime s[98:99]\n s_waitcnt lgkmcnt(0)\n v_writelane_b32 v255, s98, 63")
    a(f"v_writelane_b32 v255, 0, {_stamp_n[0]}")
    a(f"""
    s_lshl_b32 s98, s2, 2
    s_add_u32 s98, s98, s50
    s_lshl_b32 s98, s98, 8
    s_add_u32 s98, s98, 0x2000000
    s_add_u32 s96, s{P_WS}, s98
    s_addc_u32 s97, s{P_WS+1}, 0
    v_lshlrev_b32 v254, 2, v0
    global_store_dword v254, v255, s[96:97]
    """)

class Vm:
    def __init__(self): self.ops = []
    def issue(self, tag, n=1):
        for _ in range(n): self.ops.append(tag)
    def wait(self, a, tags):
        if isinstance(tags, str): tags = [tags]
        last = -1
        for i, t in enumerate(self.ops):
            if t in tags: last = i
        assert last >= 0, tags
        n = len(self.ops) - 1 - last
        a(f"s_waitcnt vmcnt({min(n,63)})")

def lgk(n): return f"s_waitcnt lgkmcnt({min(n,15)})"

def wave_reduce(a, v, op="add"):
    for sh in (1,2,4,8):
        a(f"s_nop 1\n v_{op}_f32_dpp v{v}, v{v}, v{v} row_shr:{sh} row_mask:0xf bank_mask:0xf bound_ctrl:0")
    a(f"s_nop 1\n v_{op}_f32_dpp v{v}, v{v}, v{v} row_bcast:15 row_mask:0xa bank_mask:0xf")
    a(f"s_nop 1\n v_{op}_f32_dpp v{v}, v{v}, v{v} row_bcast:31 row_mask:0xc bank_mask:0xf")
    a("s_nop 1")
def bf16_round(a, dst, src):
    a(f"v_cvt_pk_bf16_f32 v{dst}, v{src}, v{src}\n v_lshlrev_b32 v{dst}, 16, v{dst}")
def make_srd(a, s, ptr, nbytes):
    a(f"""
    s_mov_b32 s{s}, s{ptr}
    s_and_b32 s{s+1}, s{ptr+1}, 0xffff
    s_mov_b32 s{s+2}, {nbytes}
    s_mov_b32 s{s+3}, 0x00020000
    """)
def interleave(a, streams):
    n = max(len(s) for s in streams)
    for k in range(n):
        for s in streams:
            if k < len(s): a(s[k])
def lines(s): return [l.strip() for l in s.strip("\n").split("\n") if l.strip()]

PT = (246, 248, 250, 252)
def nonce_publish(a):
    L = a.newlabel("np")
    a(f"""
    s_or_b32 s6, s2, s50
    s_cmp_lg_u32 s6, 0
    s_cbranch_scc1 {L}
    s_memrealtime s[6:7]
    s_waitcnt lgkmcnt(0)
    s_or_b32 s6, s6, 1
    v_mov_b32 v244, 0
    v_mov_b32 v246, s6
    v_mov_b32 v247, s7
    s_mov_b64 s[6:7], exec
    s_mov_b64 exec, 1
    global_store_dwordx2 v244, v[246:247], s[{P_DBG}:{P_DBG+1}] sc1
    s_mov_b64 exec, s[6:7]
    """)
    a.label(L)
def nonce_get(a):
    L = a.newlabel("ng"); Lp = a.newlabel("ngp"); Ld = a.newlabel("ngd")
    a(f"""
    s_cmp_lg_u32 s50, 0
    s_cbranch_scc1 {L}
    v_mov_b32 v244, 0
    s_mov_b32 s6, 0
    """)
    a.label(Lp)
    a(f"""
    global_load_dwordx2 v[246:247], v244, s[{P_DBG}:{P_DBG+1}] sc1
    s_waitcnt vmcnt(0)
    v_cmp_eq_u32 vcc, 0, v246
    s_add_u32 s6, s6, 1
    s_cmp_gt_u32 s6, 200000
    s_cbranch_scc1 {Ld}
    s_cbranch_vccz {Ld}
    s_sleep 2
    s_branch {Lp}
    """)
    a.label(Ld)
    a("v_readfirstlane_b32 s8, v246\n v_readfirstlane_b32 s9, v247")
    a.label(L)
def flag_set(a, phase):
    L = a.newlabel("fs")
    a(f"s_cmp_lg_u32 s50, 0\n s_cbranch_scc1 {L}")
    if phase < 2: a("s_lshl_b32 s6, s48, 4\n s_add_u32 s6, s6, s49")
    else: a("s_lshl_b32 s6, s4, 5\n s_add_u32 s6, s6, s5")
    a(f"""
    s_lshl_b32 s6, s6, 3
    s_add_u32 s6, s6, {FLG + phase*2048}
    v_mov_b32 v244, s6
    v_mov_b32 v246, s8
    v_mov_b32 v247, s9
    s_mov_b64 s[6:7], exec
    s_mov_b64 exec, 1
    global_store_dwordx2 v244, v[246:247], s[{P_WS}:{P_WS+1}] sc1
    s_mov_b64 exec, s[6:7]
    """)
    a.label(L)
def poll(a, phase, group_sreg=None, nflags=256):
    L = a.newlabel("pl"); Lp = a.newlabel("plp"); Ld = a.newlabel("pld")
    a(f"s_cmp_lg_u32 s50, 0\n s_cbranch_scc1 {L}")
    if group_sreg is None:
        a(f"v_lshlrev_b32 v244, 3, v0\n v_add_u32 v244, {FLG + phase*2048}, v244")
        nl = 4
    else:
        a(f"""
        v_and_b32 v244, {nflags-1}, v0
        v_lshlrev_b32 v244, 3, v244
        s_mul_i32 s6, s{group_sreg}, {nflags*8}
        s_add_u32 s6, s6, {FLG + phase*2048}
        v_add_u32 v244, s6, v244
        """)
        nl = 1
    a("s_mov_b32 s6, 0")
    a.label(Lp)
    for k in range(nl):
        a(f"global_load_dwordx2 v[{PT[k]}:{PT[k]+1}], v244, s[{P_WS}:{P_WS+1}] offset:{k*512} sc1")
    a("s_waitcnt vmcnt(0)")
    for k in range(nl):
        a(f"v_xor_b32 v{PT[k]}, s8, v{PT[k]}\n v_xor_b32 v{PT[k]+1}, s9, v{PT[k]+1}")
    for k in range(nl):
        if k > 0: a(f"v_or_b32 v{PT[0]}, v{PT[0]}, v{PT[k]}")
        a(f"v_or_b32 v{PT[0]}, v{PT[0]}, v{PT[k]+1}")
    a(f"""
    v_cmp_ne_u32 vcc, 0, v{PT[0]}
    s_add_u32 s6, s6, 1
    s_cmp_gt_u32 s6, 200000
    s_cbranch_scc1 {Ld}
    s_cbranch_vccz {Ld}
    s_sleep {SLEEP}
    s_branch {Lp}
    """)
    a.label(Ld)
    a.label(L)
    a("s_barrier")

def prologue(a):
    a(f"""
    s_cmp_ge_u32 s2, 512
    s_cbranch_scc1 Lend
    s_load_dwordx16 s[16:31], s[0:1], 0
    s_load_dwordx16 s[32:47], s[0:1], 64
    v_lshrrev_b32 v1, 6, v0
    v_and_b32 v0, 63, v0
    v_readfirstlane_b32 s50, v1
    s_and_b32 s3, s2, 255
    s_and_b32 s4, s3, 7
    s_lshr_b32 s5, s3, 3
    s_lshr_b32 s6, s4, 1
    s_lshl_b32 s6, s6, 2
    s_and_b32 s7, s5, 3
    s_add_u32 s48, s6, s7
    s_and_b32 s6, s4, 1
    s_lshl_b32 s6, s6, 3
    s_lshr_b32 s7, s5, 2
    s_add_u32 s49, s6, s7
    s_waitcnt lgkmcnt(0)
    s_cmp_ge_u32 s2, 256
    s_cbranch_scc1 LprogX
    """)

G1_R = 5
def g_ln(a, vm):
    a.comment("==== G: LN (2 rows per wave) ====")
    a(f"""
    s_lshl_b32 s51, s48, 7
    s_lshl_b32 s52, s49, 3
    s_add_u32 s91, s51, s52
    s_lshl_b32 s51, s50, 1
    s_add_u32 s51, s51, s91
    s_lshl_b32 s52, s51, 10
    s_add_u32 s92, s{P_X}, s52
    s_addc_u32 s93, s{P_X+1}, 0
    v_lshlrev_b32 v3, 4, v0
    global_load_dwordx4 v[4:7], v3, s[92:93]
    global_load_dwordx4 v[44:47], v3, s[92:93] offset:1024
    """)
    vm.issue("x", 2)
    nonce_publish(a)
    g1_dma_setup(a)
    vm.wait(a, "x")
    def row(B, sreg):
        o = []
        for i in range(4):
            o += [f"v_lshlrev_b32 v{B+4+2*i}, 16, v{B+i}", f"v_and_b32 v{B+5+2*i}, 0xffff0000, v{B+i}"]
        o += lines(f"""
        v_add_f32 v{B+12}, v{B+4}, v{B+5}
        v_add_f32 v{B+13}, v{B+6}, v{B+7}
        v_add_f32 v{B+14}, v{B+8}, v{B+9}
        v_add_f32 v{B+15}, v{B+10}, v{B+11}
        v_add_f32 v{B+12}, v{B+12}, v{B+13}
        v_add_f32 v{B+14}, v{B+14}, v{B+15}
        v_add_f32 v{B+12}, v{B+12}, v{B+14}""")
        def red(v):
            r = []
            for sh in (1,2,4,8):
                r += ["s_nop 0", f"v_add_f32_dpp v{v}, v{v}, v{v} row_shr:{sh} row_mask:0xf bank_mask:0xf bound_ctrl:0"]
            r += ["s_nop 0", f"v_add_f32_dpp v{v}, v{v}, v{v} row_bcast:15 row_mask:0xa bank_mask:0xf"]
            r += ["s_nop 0", f"v_add_f32_dpp v{v}, v{v}, v{v} row_bcast:31 row_mask:0xc bank_mask:0xf", "s_nop 0"]
            return r
        o += red(B+12)
        o += [f"v_readlane_b32 s{sreg}, v{B+12}, 63", "s_nop 1", f"v_mov_b32 v{B+13}, s{sreg}", f"v_mul_f32 v{B+13}, 0x3b000000, v{B+13}"]
        for i in range(8): o.append(f"v_sub_f32 v{B+16+i}, v{B+4+i}, v{B+13}")
        o.append(f"v_mul_f32 v{B+12}, v{B+16}, v{B+16}")
        for i in range(1,8): o.append(f"v_fmac_f32 v{B+12}, v{B+16+i}, v{B+16+i}")
        o += red(B+12)
        o += [f"v_readlane_b32 s{sreg+1}, v{B+12}, 63", "s_nop 1", f"v_mov_b32 v{B+14}, s{sreg+1}", f"v_mul_f32 v{B+14}, 0x3b000000, v{B+14}"]
        def rnd(v): return [f"v_cvt_pk_bf16_f32 v{v}, v{v}, v{v}", f"v_lshlrev_b32 v{v}, 16, v{v}"]
        o += rnd(B+14) + [f"v_add_f32 v{B+14}, 0x3727c5ac, v{B+14}"] + rnd(B+14) + [f"v_sqrt_f32 v{B+14}, v{B+14}", "s_nop 0"] + rnd(B+14)
        o += [f"v_rcp_f32 v{B+15}, v{B+14}"] + rnd(B+13)
        for i in range(8): o.append(f"v_sub_f32 v{B+16+i}, v{B+4+i}, v{B+13}")
        for i in range(4): o.append(f"v_cvt_pk_bf16_f32 v{B+24+i}, v{B+16+2*i}, v{B+17+2*i}")
        for i in range(4): o += [f"v_lshlrev_b32 v{B+16+2*i}, 16, v{B+24+i}", f"v_and_b32 v{B+17+2*i}, 0xffff0000, v{B+24+i}"]
        for i in range(8):
            o += [f"v_mul_f32 v{B+4+i}, v{B+16+i}, v{B+15}", f"v_fma_f32 v{B+28+i}, -v{B+4+i}, v{B+14}, v{B+16+i}", f"v_fma_f32 v{B+4+i}, v{B+28+i}, v{B+15}, v{B+4+i}"]
        for i in range(4): o.append(f"v_cvt_pk_bf16_f32 v{B+i}, v{B+4+2*i}, v{B+5+2*i}")
        return o
    interleave(a, [row(4, 94), row(44, 96)])
    LN_SCR = 65536
    a(f"""
    s_mul_i32 s94, s50, 2080
    s_add_u32 s94, s94, {LN_SCR}
    v_lshlrev_b32 v3, 4, v0
    v_add_u32 v3, s94, v3
    ds_write_b128 v3, v[4:7]
    ds_write_b128 v3, v[44:47] offset:1040
    v_and_b32 v8, 7, v0
    v_lshrrev_b32 v9, 3, v0
    s_lshl_b32 s94, s50, 4
    v_add_u32 v9, s94, v9             ; group g = 16w + (lane>>3)  (+8 second)
    v_mul_u32_u24 v10, 1040, v8
    v_lshl_add_u32 v10, v9, 4, v10
    v_add_u32 v10, {LN_SCR}, v10
    s_waitcnt lgkmcnt(0)
    s_barrier
    ds_read_b128 v[4:7], v10
    ds_read_b128 v[12:15], v10 offset:128
    v_lshlrev_b32 v11, 11, v9
    s_lshl_b32 s94, s49, 3
    v_add_u32 v12+0, s94, v8
    """.replace("v12+0", "v16"))
    a(f"""
    v_lshl_add_u32 v11, v16, 4, v11
    s_lshl_b32 s94, s48, 17
    s_add_u32 s92, s{P_WS}, s94
    s_addc_u32 s93, s{P_WS+1}, 0
    v_add_u32 v17, 16384, v11
    s_waitcnt lgkmcnt(0)
    global_store_dwordx4 v11, v[4:7], s[92:93] sc1
    global_store_dwordx4 v17, v[12:15], s[92:93] sc1
    """)
    vm.issue("xqst", 2)

def g1_dma_setup(a):
    make_srd(a, 52, P_WG, 512*3584)
    make_srd(a, 56, P_WU, 512*3584)
    a("""
    v_lshrrev_b32 v242, 4, v0
    v_bfe_u32 v243, v0, 1, 3
    v_and_b32 v238, 1, v0
    v_xor_b32 v239, v243, v242
    v_xor_b32 v243, 4, v239
    v_mul_u32_u24 v242, 3584, v242
    v_lshl_add_u32 v242, v238, 4, v242
    v_lshl_add_u32 v240, v239, 5, v242
    v_lshl_add_u32 v241, v243, 5, v242
    s_mul_i32 s60, s49, 224
    s_mul_i32 s61, s50, 28672
    s_add_u32 s60, s60, s61
    s_lshl_b32 s62, s50, 11
    """)
def g1_dma_issue(a, vm, stage):
    slot = stage % G1_R
    for jj in range(2):
        a(f"""
        s_add_u32 s61, s60, {stage*32*3584 + jj*14336}
        s_add_u32 m0, s62, {slot*16384 + jj*1024}
        s_nop 0
        buffer_load_dwordx4 v240, s[52:55], s61 offen lds
        s_add_u32 m0, s62, {slot*16384 + 8192 + jj*1024}
        s_nop 0
        buffer_load_dwordx4 v241, s[56:59], s61 offen lds
        """)
    vm.issue(f"w{stage}", 4)

def g_gemm1(a, vm):
    a.comment("==== G: GEMM1 ====")
    ACC = 8; AX = 120; AY = 148; BF = 176; NB = 14; PF = 12; AD = 232; NT = 7
    a(f"""
    s_lshl_b32 s63, s50, 5
    s_lshl_b32 s64, s48, 7
    s_add_u32 s63, s63, s64
    s_lshl_b32 s64, s50, 5
    v_and_b32 v1, 31, v0
    v_add_u32 v1, s64, v1
    v_lshrrev_b32 v2, 5, v0
    v_lshlrev_b32 v2, 11, v2
    v_lshl_add_u32 v1, v1, 4, v2
    s_lshl_b32 s65, s48, 17
    s_add_u32 s64, s{P_WS}, s65
    s_addc_u32 s65, s{P_WS+1}, 0
    """)
    def bload(ks):
        a(f"global_load_dwordx4 {vr(BF+4*(ks%NB),4)}, v1, s[64:65]")
        a("s_add_u32 s64, s64, 4096\n s_addc_u32 s65, s65, 0")
        vm.issue(f"b{ks}")
    for ks in range(PF): bload(ks)
    a(f"""
    v_lshrrev_b32 v2, 4, v0
    v_and_b32 v3, 1, v2
    v_lshrrev_b32 v2, 1, v2
    v_bfe_u32 v4, v0, 2, 2
    v_and_b32 v5, 3, v0
    v_lshl_add_u32 v6, v3, 2, v4
    v_lshlrev_b32 v6, 5, v6
    v_lshl_add_u32 v7, v2, 3, v4
    v_lshlrev_b32 v7, 8, v7
    v_lshl_add_u32 v7, v3, 13, v7
    v_lshl_add_u32 v7, v5, 3, v7
    """)
    for t in range(NT):
        a(f"v_xor_b32 v{AD+t}, {t*32}, v6\n v_add_u32 v{AD+t}, v{AD+t}, v7")
    for i in range(112):
        a(f"v_mov_b32 v{ACC+i}, 0")
    AT = [2,3,4,5,6,7,239]
    def rd(k2, dst, t):
        return [f"ds_read_b64_tr_b16 {vr(dst+4*t+2*h2,2)}, v{AT[t]} offset:{k2*4096+h2*1024}" for h2 in range(2)]
    def mf(src, ks, t):
        return f"v_mfma_f32_32x32x16_bf16 {vr(ACC+16*t,16)}, {vr(src+4*t,4)}, {vr(BF+4*(ks%NB),4)}, {vr(ACC+16*t,16)}"
    def dma_ops(stage):
        slot = stage % G1_R
        ops = []
        for jj in range(2):
            ops.append(f"""s_add_u32 s61, s60, {stage*32*3584 + jj*14336}
            s_add_u32 m0, s62, {slot*16384 + jj*1024}
            s_nop 0
            buffer_load_dwordx4 v240, s[52:55], s61 offen lds""")
            ops.append(f"""s_add_u32 m0, s62, {slot*16384 + 8192 + jj*1024}
            s_nop 0
            buffer_load_dwordx4 v241, s[56:59], s61 offen lds""")
        return ops
    vm.wait(a, ["w0", "b0", "b1"])
    a("s_barrier")
    for t in range(NT): a(f"v_add_u32 v{AT[t]}, 0, v{AD+t}")
    for t in range(NT):
        for l in rd(0, AX, t): a(l)
    a("s_waitcnt lgkmcnt(1)")
    for t in range(NT):
        for l in rd(1, AY, t): a(l)
    for s in range(16):
        last = (s == 15)
        if not last:
            vm.wait(a, [f"w{s+1}", f"b{2*s+2}", f"b{2*s+1}"])
            a("s_barrier")
            if s % 4 == 3: stamp(a)
            for t in range(NT): a(f"v_add_u32 v{AT[t]}, {((s+1) % G1_R)*16384}, v{AD+t}")
        extra = []
        if s + 4 < 16:
            extra += [("dma", o) for o in dma_ops(s+4)]
        for ks in (2*s+PF, 2*s+PF+1):
            if ks < 32: extra.append(("b", ks))
        for half, buf in ((0, AX), (1, AY)):
            for t in range(NT):
                a("s_waitcnt lgkmcnt(12)" if not last else lgk(2*(NT-1-t) + (14 if half == 0 else 0)))
                a(mf(buf, 2*s+half, t))
                if not last:
                    for l in rd(half, buf, t): a(l)
                if extra and half == 0 or (extra and half == 1):
                    kind, o = extra.pop(0)
                    if kind == "dma": a(o); vm.issue(f"w{s+4}")
                    else: bload(o)
    stamp(a)
    a("s_barrier")
    g2_setup(a)
    for s in range(4): g2_dma_issue(a, vm, s)
    a(f"""
    s_and_b32 s64, s63, 63
    v_and_b32 v1, 31, v0
    v_add_u32 v1, s64, v1
    v_lshrrev_b32 v2, 5, v0
    s_mul_i32 s68, s49, 14
    v_add_u32 v2, s68, v2
    v_lshlrev_b32 v2, 10, v2
    v_lshl_add_u32 v1, v1, 4, v2
    s_lshr_b32 s68, s63, 6
    s_mul_i32 s68, s68, 229376
    s_add_u32 s68, s68, {HQ}
    s_add_u32 s64, s{P_WS}, s68
    s_addc_u32 s65, s{P_WS+1}, 0
    s_mov_b32 s69, 0xbfb8aa3b
    """)
    for t in range(NT):
        A = ACC+16*t
        st = []
        for p in range(4):
            g0 = A+2*p; u0 = A+8+2*p
            b = 120 + 8*p
            st.append(lines(f"""
            v_cvt_pk_bf16_f32 v{b}, v{g0}, v{g0+1}
            v_cvt_pk_bf16_f32 v{b+1}, v{u0}, v{u0+1}
            v_lshlrev_b32 v{b+2}, 16, v{b}
            v_and_b32 v{b+3}, 0xffff0000, v{b}
            v_mul_f32 v{b+2}, s69, v{b+2}
            v_mul_f32 v{b+3}, s69, v{b+3}
            v_exp_f32 v{b+2}, v{b+2}
            v_exp_f32 v{b+3}, v{b+3}
            v_lshlrev_b32 v{b+4}, 16, v{b+1}
            v_and_b32 v{b+5}, 0xffff0000, v{b+1}
            v_add_f32 v{b+2}, 1.0, v{b+2}
            v_add_f32 v{b+3}, 1.0, v{b+3}
            v_rcp_f32 v{b+2}, v{b+2}
            v_rcp_f32 v{b+3}, v{b+3}
            v_cvt_pk_bf16_f32 v{b+6}, v{b+2}, v{b+3}
            v_lshlrev_b32 v{b+2}, 16, v{b+6}
            v_and_b32 v{b+3}, 0xffff0000, v{b+6}
            v_pk_mul_f32 {vr(b+2,2)}, {vr(b+2,2)}, {vr(b+4,2)}
            v_cvt_pk_bf16_f32 v{160+4*(t&1)*1+0+p + 4*(t&3) - 4*(t&1)}, v{b+2}, v{b+3}"""))
        R = 160 + 4*(t&3)
        interleave(a, st)
        a(f"""
        s_nop 1
        v_permlane32_swap_b32 v{R}, v{R+2}
        v_permlane32_swap_b32 v{R+1}, v{R+3}
        global_store_dwordx4 v1, {vr(R,4)}, s[64:65] sc1
        s_add_u32 s64, s64, 2048
        s_addc_u32 s65, s65, 0
        """)
        vm.issue("hst")

G2_R = 5
def g2_setup(a):
    make_srd(a, 52, P_WD, 1792*1024)
    a("""
    s_lshr_b32 s80, s4, 1
    s_lshl_b32 s80, s80, 3
    s_and_b32 s81, s5, 7
    s_add_u32 s80, s80, s81
    s_and_b32 s81, s4, 1
    s_lshl_b32 s81, s81, 2
    s_lshr_b32 s82, s5, 3
    s_add_u32 s81, s81, s82
    s_lshr_b32 s90, s80, 1
    v_lshrrev_b32 v242, 3, v0
    v_bfe_u32 v243, v0, 1, 2
    v_and_b32 v238, 1, v0
    v_and_b32 v239, 2, v242
    v_xor_b32 v243, v243, v239
    v_lshlrev_b32 v242, 10, v242
    v_lshl_add_u32 v242, v238, 4, v242
    v_lshl_add_u32 v240, v243, 5, v242
    s_mul_i32 s84, s50, 458752
    s_lshl_b32 s85, s81, 7
    s_add_u32 s84, s84, s85
    s_mul_i32 s85, s50, 20480
    """)
def g2_dma_issue(a, vm, stage):
    slot = stage % G2_R
    for j in range(4):
        a(f"""
        s_add_u32 s86, s84, {(stage*32 + 8*j)*1024}
        s_add_u32 m0, s85, {slot*4096 + j*1024}
        s_nop 0
        buffer_load_dwordx4 v240, s[52:55], s86 offen lds
        """)
    vm.issue(f"d{stage}", 4)

def g_gemm2(a, vm):
    a.comment("==== G: GEMM2 ====")
    ACC = 8; AP = 72; AQ = 88; BF = 104; NBK = 10; AD = 232; AT = 234
    NS = 14
    a(f"""
    v_and_b32 v1, 31, v0
    v_lshrrev_b32 v2, 5, v0
    s_mul_i32 s88, s50, 56
    v_add_u32 v2, s88, v2
    v_lshlrev_b32 v2, 10, v2
    v_lshl_add_u32 v1, v1, 4, v2
    s_mul_i32 s88, s80, 229376
    s_add_u32 s88, s88, {HQ}
    s_add_u32 s66, s{P_WS}, s88
    s_addc_u32 s67, s{P_WS+1}, 0
    """)
    def bload(ks):
        b = BF + 8*(ks % NBK)
        a(f"global_load_dwordx4 {vr(b,4)}, v1, s[66:67]")
        a(f"global_load_dwordx4 {vr(b+4,4)}, v1, s[66:67] offset:512")
        a("s_add_u32 s66, s66, 2048\n s_addc_u32 s67, s67, 0")
        vm.issue(f"c{ks}", 2)
    PF = NBK - 2
    for ks in range(PF): bload(ks)
    a(f"""
    s_and_b32 s82, s50, 1
    s_lshr_b32 s83, s50, 1
    s_lshl_b32 s87, s80, 6
    s_lshl_b32 s88, s82, 5
    s_add_u32 s87, s87, s88
    v_and_b32 v3, 31, v0
    v_add_u32 v3, s87, v3              ; t
    v_lshrrev_b32 v4, 5, v0
    s_lshl_b32 s88, s83, 5
    s_lshl_b32 s89, s81, 6
    s_add_u32 s88, s88, s89
    v_lshlrev_b32 v4, 2, v4
    v_add_u32 v4, s88, v4              ; d (g=0,e=0)
    v_lshlrev_b32 v236, 10, v3
    v_lshl_add_u32 v236, v4, 1, v236
    v_lshlrev_b32 v237, 12, v4
    v_lshl_add_u32 v237, v3, 1, v237   ; s offset
    """)
    for g in range(4):
        a(f"global_load_dwordx2 {vr(184+2*g,2)}, v236, s[{P_X}:{P_X+1}] offset:{16*g}")
    vm.issue("xe", 4)
    a(f"""
    v_lshrrev_b32 v2, 4, v0
    v_and_b32 v3, 1, v2
    v_lshrrev_b32 v2, 1, v2
    v_bfe_u32 v4, v0, 2, 2
    v_and_b32 v5, 3, v0
    v_and_b32 v6, 2, v4
    v_lshl_add_u32 v7, v2, 3, v4
    v_lshlrev_b32 v7, 7, v7
    v_lshl_add_u32 v7, v5, 3, v7
    v_add_u32 v7, s85, v7
    """)
    for mt in range(2):
        a(f"""
        v_add_u32 v2, {2*mt}, v3
        v_xor_b32 v2, v2, v6
        v_lshl_add_u32 v{AD+mt}, v2, 5, v7
        """)
    for i in range(64):
        a(f"v_mov_b32 v{ACC+i}, 0")
    def rd(dst, k2, mt):
        return [f"ds_read_b64_tr_b16 {vr(dst+8*k2+4*mt+2*h2,2)}, v{AT+mt} offset:{k2*2048+h2*512}" for h2 in range(2)]
    def setslot(s):
        for mt in range(2):
            a(f"v_add_u32 v{AT+mt}, {(s % G2_R)*4096}, v{AD+mt}")
    def dma_ops(stage):
        slot = stage % G2_R
        return [f"""s_add_u32 s86, s84, {(stage*32 + 8*j)*1024}
            s_add_u32 m0, s85, {slot*4096 + j*1024}
            s_nop 0
            buffer_load_dwordx4 v240, s[52:55], s86 offen lds""" for j in range(4)]
    vm.wait(a, ["d0"])
    setslot(0)
    for k2 in range(2):
        for mt in range(2):
            for l in rd(AP, k2, mt): a(l)
    nxt = 4
    for s in range(NS):
        cur = AP if s % 2 == 0 else AQ
        oth = AQ if s % 2 == 0 else AP
        last = (s == NS-1)
        if not last:
            vm.wait(a, [f"d{s+1}", f"c{2*s+1}"])
            if s % 4 == 3: stamp(a)
            setslot(s+1)
        else:
            vm.wait(a, [f"c{2*s+1}"])
        fill = []
        if not last:
            for k2 in range(2):
                for mt in range(2): fill.append(("r", (k2, mt)))
        post = []
        if nxt < NS and not last:
            post += [("dma", o) for o in dma_ops(nxt)]
        for ks in (2*s+PF, 2*s+PF+1):
            if ks < 28: post.append(("b", ks))
        n = 0
        for k2 in range(2):
            ks = 2*s+k2
            b = BF + 8*(ks % NBK)
            for mt in range(2):
                idx = k2*2+mt
                issued_new = 2*min(n, 4) if not last else 0
                a(lgk((3-idx)*2 + issued_new))
                for nt in range(2):
                    D = ACC + 16*(2*mt+nt)
                    a(f"v_mfma_f32_32x32x16_bf16 {vr(D,16)}, {vr(cur+8*k2+4*mt,4)}, {vr(b+4*nt,4)}, {vr(D,16)}")
                    if nt == 0 and fill:
                        _, (fk, fm) = fill.pop(0)
                        for l in rd(oth, fk, fm): a(l)
                        n += 1
                    elif post and (k2 == 1):
                        for _ in range(3):
                            if post:
                                kind, o = post.pop(0)
                                if kind == "dma": a(o); vm.issue(f"d{nxt}")
                                else: bload(o)
        while post:
            kind, o = post.pop(0)
            if kind == "dma": a(o); vm.issue(f"d{nxt}")
            else: bload(o)
        if nxt < NS and not last: nxt += 1
    stamp(a)
    a("s_barrier\n s_nop 7")
    a(f"""
    s_lshl_b32 s88, s50, 14
    v_lshlrev_b32 v1, 4, v0
    v_add_u32 v2, s88, v1
    """)
    for dst in range(4):
        for k in range(4):
            a(f"ds_write_b128 v2, {vr(ACC+16*dst+4*k,4)} offset:{dst*4096+k*1024}")
    a("s_waitcnt lgkmcnt(0)")

def g_epi(a, vm):
    a.comment("==== G: final epilogue ====")
    a(f"""
    s_lshl_b32 s88, s50, 12
    v_lshlrev_b32 v1, 4, v0
    v_add_u32 v2, s88, v1
    """)
    for src in range(4):
        for k in range(4):
            a(f"ds_read_b128 {vr(72+16*src+4*k,4)}, v2 offset:{src*16384+k*1024}")
    a(f"""
    s_add_u32 s64, s{P_WS}, {ST}
    s_addc_u32 s65, s{P_WS+1}, 0
    """)
    for i in range(16):
        dd = (i&3) + 8*(i>>2)
        a(f"v_add_u32 v{8+i}, {dd*4096}, v237")
        a(f"global_load_ushort v{24+i}, v{8+i}, s[64:65] sc1")
    a("s_waitcnt lgkmcnt(0)")
    for i in range(16):
        a(f"""
        v_add_f32 v{72+i}, v{72+i}, v{88+i}
        v_add_f32 v{104+i}, v{104+i}, v{120+i}
        v_add_f32 v{72+i}, v{72+i}, v{104+i}
        """)
    a("s_mov_b32 s69, 0xbfb8aa3b")
    st = []
    for p in range(8):
        x = 72+2*p; t = 88+2*p; c = 104+p
        st.append(lines(f"""
        v_cvt_pk_bf16_f32 v{c}, v{x}, v{x+1}
        v_lshlrev_b32 v{x}, 16, v{c}
        v_and_b32 v{x+1}, 0xffff0000, v{c}
        v_mul_f32 v{t}, s69, v{x}
        v_mul_f32 v{t+1}, s69, v{x+1}
        v_exp_f32 v{t}, v{t}
        v_exp_f32 v{t+1}, v{t+1}
        v_add_f32 v{t}, 1.0, v{t}
        v_add_f32 v{t+1}, 1.0, v{t+1}
        v_rcp_f32 v{t}, v{t}
        v_rcp_f32 v{t+1}, v{t+1}
        v_mul_f32 v{x}, v{x}, v{t}
        v_mul_f32 v{x+1}, v{x+1}, v{t+1}
        v_cvt_pk_bf16_f32 v{c}, v{x}, v{x+1}
        v_lshlrev_b32 v{x}, 16, v{c}
        v_and_b32 v{x+1}, 0xffff0000, v{c}"""))
    interleave(a, st)
    a("s_waitcnt vmcnt(0)")
    st = []
    for p in range(8):
        x = 72+2*p; t = 88+2*p; c = 104+p; sv = 24+2*p
        st.append(lines(f"""
        v_lshlrev_b32 v{sv}, 16, v{sv}
        v_lshlrev_b32 v{sv+1}, 16, v{sv+1}
        v_mul_f32 v{x}, v{x}, v{sv}
        v_mul_f32 v{x+1}, v{x+1}, v{sv+1}
        v_cvt_pk_bf16_f32 v{c}, v{x}, v{x+1}
        v_lshlrev_b32 v{x}, 16, v{c}
        v_and_b32 v{x+1}, 0xffff0000, v{c}
        v_lshlrev_b32 v{t}, 16, v{184+p}
        v_and_b32 v{t+1}, 0xffff0000, v{184+p}
        v_add_f32 v{x}, v{x}, v{t}
        v_add_f32 v{x+1}, v{x+1}, v{t+1}
        v_cvt_pk_bf16_f32 v{112+p}, v{x}, v{x+1}"""))
    interleave(a, st)
    for g in range(4):
        a(f"global_store_dwordx2 v236, {vr(112+2*g,2)}, s[{P_OUT}:{P_OUT+1}] offset:{16*g}")

def prog_g(a):
    vm = Vm()
    stamp_begin(a)
    g_ln(a, vm)
    stamp(a)
    nonce_get(a)
    if FINE: stamp(a)
    vm.wait(a, "xqst")
    if FINE: stamp(a)
    a("s_barrier")
    flag_set(a, 0)
    if FINE: stamp(a)
    for s in range(4): g1_dma_issue(a, vm, s)
    stamp(a)
    poll(a, 0, group_sreg=48, nflags=16)
    stamp(a)
    g_gemm1(a, vm)
    stamp(a)
    vm.wait(a, "hst")
    a("s_barrier")
    flag_set(a, 1)
    stamp(a)
    poll(a, 1, group_sreg=90, nflags=16)
    stamp(a)
    g_gemm2(a, vm)
    poll(a, 2, group_sreg=81, nflags=32)
    stamp(a)
    g_epi(a, vm)
    a("s_waitcnt vmcnt(0)")
    stamp(a)
    stamp_flush(a)
    a("s_branch Lend")

X_T = 0; X_KC = 0; X_U = 33280; X_R = 48640; X_RED = 57088
INV2PI = 0x3e22f983
def x_early(a, vm):
    a(f"""
    s_mov_b32 s71, s50
    s_lshl_b32 s72, s4, 6
    s_lshl_b32 s73, s5, 1
    s_add_u32 s72, s72, s73            ; d0
    v_and_b32 v1, 31, v0
    s_lshl_b32 s73, s72, 7
    s_lshl_b32 s74, s71, 5
    s_add_u32 s73, s73, s74
    v_add_u32 v1, s73, v1
    v_lshlrev_b32 v1, 1, v1
    s_lshl_b32 s73, s72, 1
    v_mov_b32 v2, s73
    """)
    for ch in range(2):
        B = 224 + 8*ch
        for i, p in enumerate((P_ARE, P_AIM, P_BRE, P_BIM, P_CRE, P_CIM)):
            a(f"global_load_ushort v{B+i}, v1, s[{p}:{p+1}] offset:{256*ch}")
        a(f"global_load_ushort v{B+6}, v2, s[{P_LDT}:{P_LDT+1}] offset:{2*ch}")
        a(f"global_load_ushort v{B+7}, v2, s[{P_DSK}:{P_DSK+1}] offset:{2*ch}")
        vm.issue(f"par{ch}", 8)
    a(f"""
    v_min_u32 v4, 55, v0
    v_lshlrev_b32 v4, 7, v4
    s_mul_i32 s6, s3, 7168
    v_add_u32 v4, s6, v4
    s_cmp_eq_u32 s50, 0
    s_cselect_b32 s6, s{P_WG}, s{P_WU}
    s_cselect_b32 s7, s{P_WG+1}, s{P_WU+1}
    s_cmp_eq_u32 s50, 2
    s_cselect_b32 s6, s{P_WD}, s6
    s_cselect_b32 s7, s{P_WD+1}, s7
    global_load_dword v243, v4, s[6:7]
    """)
    vm.issue("t1", 1)

def x_touch_w(a, vm):
    for dj in range(2):
        a(f"""
        s_and_b32 s6, s5, 3
        s_lshl_b32 s6, s6, 7
        s_lshl_b32 s7, s50, 5
        s_add_u32 s6, s6, s7
        s_add_u32 s6, s6, {16*dj}
        v_lshrrev_b32 v180, 2, v0
        v_add_u32 v180, s6, v180
        v_mul_u32_u24 v180, 3584, v180
        v_and_b32 v181, 3, v0
        v_mul_u32_u24 v181, 72, v181
        v_and_b32 v181, 0xfc, v181
        v_add_u32 v180, v180, v181
        s_mul_i32 s6, s49, 224
        v_add_u32 v180, s6, v180
        global_load_dword v243, v180, s[{P_WG}:{P_WG+1}]
        global_load_dword v243, v180, s[{P_WU}:{P_WU+1}]
        """)
    vm.issue("tw", 4)

def x_touch_wd(a, vm):
    a(f"""
    s_and_b32 s6, s5, 7
    s_mul_i32 s6, s6, 224
    s_mul_i32 s7, s50, 56
    s_add_u32 s6, s6, s7
    v_min_u32 v180, 55, v0
    v_add_u32 v180, s6, v180
    v_lshlrev_b32 v180, 10, v180
    s_and_b32 s6, s4, 1
    s_lshl_b32 s6, s6, 2
    s_lshr_b32 s7, s5, 3
    s_add_u32 s6, s6, s7
    s_lshl_b32 s6, s6, 7
    v_add_u32 v180, s6, v180
    global_load_dword v243, v180, s[{P_WD}:{P_WD+1}]
    """)
    vm.issue("twd", 1)

def cmul(a, d, x, y):
    a(f"""
    v_pk_mul_f32 {vr(d,2)}, {vr(x,2)}, {vr(y,2)} op_sel_hi:[1,0]
    v_pk_fma_f32 {vr(d,2)}, {vr(x,2)}, {vr(y,2)}, {vr(d,2)} op_sel:[1,1,0] op_sel_hi:[0,1,1] neg_lo:[1,0,0]
    """)

def x_kgen(a, vm, ch, mid=None):
    a.comment(f"==== X: Kgen ch{ch} ====")
    B = 224 + 8*ch
    vm.wait(a, f"par{ch}")
    for r in range(B, B+8):
        a(f"v_lshlrev_b32 v{r}, 16, v{r}")
    a(f"""
    s_mov_b32 s74, 0x3fb8aa3b
    s_mov_b32 s75, 0x32a57060
    v_mul_f32 v15, s74, v{B+6}
    v_fma_f32 v16, v{B+6}, s74, -v15
    v_fma_f32 v16, v{B+6}, s75, v16
    v_exp_f32 v15, v15
    v_mul_f32 v16, 0x3f317218, v16
    v_fma_f32 v15, v15, v16, v15
    """)
    bf16_round(a, 15, 15)
    a(f"""
    v_mul_f32 v8, v15, v{B}
    v_mul_f32 v9, v15, v{B+1}
    v_mul_f32 v10, v15, v{B+2}
    v_mul_f32 v11, v15, v{B+3}
    """)
    cmul(a, 18, B+4, 10)
    a(f"v_mul_f32 v16, s74, v8\n v_mul_f32 v17, 0x{INV2PI:08x}, v9")
    def cexp_lit(d, p, t):
        return lines(f"""
        v_mul_f32 v{t}, {p}, v16
        v_mul_f32 v{t+1}, {p}, v17
        v_exp_f32 v{t}, v{t}
        v_fract_f32 v{t+1}, v{t+1}
        v_cos_f32 v{d}, v{t+1}
        v_sin_f32 v{d+1}, v{t+1}
        s_nop 0
        v_mul_f32 v{d}, v{d}, v{t}
        v_mul_f32 v{d+1}, v{d+1}, v{t}""")
    interleave(a, [cexp_lit(20, "0x41800000", 30), cexp_lit(22, "0x44000000", 32), cexp_lit(24, "0x45000000", 34)])
    a(f"""
    v_mul_f32 v26, v19, v25
    v_fma_f32 v26, v18, v24, -v26
    v_mul_f32 v27, 0x45000000, v16
    v_max_f32 v27, 0, v27
    v_exp_f32 v27, v27
    v_add_f32 v28, abs(v18), abs(v19)
    v_mul_f32 v27, v27, v28
    v_cmp_gt_u32 vcc, 32, v0
    s_nop 1
    v_cndmask_b32 v26, 0, v26, vcc
    v_cndmask_b32 v27, 0, v27, vcc
    """)
    wave_reduce(a, 26)
    wave_reduce(a, 27)
    if ch == 1: a("s_barrier")
    a(f"""
    s_mul_i32 s78, s50, 9360
    s_add_u32 s78, s78, {X_T}
    v_and_b32 v1, 31, v0
    v_lshlrev_b32 v1, 5, v1
    v_add_u32 v1, s78, v1
    ds_write_b128 v1, v[16:19]
    ds_write_b128 v1, v[20:23] offset:16
    v_readlane_b32 s76, v26, 63
    v_readlane_b32 s77, v27, 63
    s_nop 1
    v_mov_b32 v2, s76
    v_mov_b32 v3, s77
    v_mov_b32 v1, s78
    ds_write_b64 v1, v[2:3] offset:{64*144}
    """)
    ACC = 192
    for i in range(32):
        a(f"v_mov_b32 v{ACC+i}, 0")
    a(f"""
    v_and_b32 v1, 15, v0
    v_cvt_f32_u32 v2, v1
    v_mul_f32 v4, 0x42000000, v2
    v_mov_b32 v3, v2
    v_mov_b32 v5, v4
    v_lshrrev_b32 v6, 4, v0
    v_lshlrev_b32 v6, 7, v6
    v_add_u32 v6, s78, v6
    s_waitcnt lgkmcnt(0)
    """)
    HF = 16; GF = 32
    def eblock(ks, e, TB):
        ops = []
        A = ops.append
        h0, h1, g = TB+8, TB+10, TB+12
        er, t0, t1, t2 = TB+20, TB+22, TB+24, TB+26
        A(f"v_pk_mul_f32 {vr(t0,2)}, {vr(TB,2)}, v[2:3]")
        A(f"v_pk_mul_f32 {vr(t1,2)}, {vr(TB,2)}, v[4:5]")
        A(f"v_exp_f32 v{t0}, v{t0}")
        A(f"v_exp_f32 v{t1}, v{t1}")
        A(f"v_fract_f32 v{t0+1}, v{t0+1}")
        A(f"v_fract_f32 v{t1+1}, v{t1+1}")
        A(f"v_cos_f32 v{h0}, v{t0+1}")
        A(f"v_sin_f32 v{h0+1}, v{t0+1}")
        A(f"v_cos_f32 v{er}, v{t1+1}")
        A(f"v_sin_f32 v{er+1}, v{t1+1}")
        A("s_nop 0")
        A(f"v_pk_mul_f32 {vr(h0,2)}, {vr(h0,2)}, {vr(t0,2)} op_sel_hi:[1,0]")
        A(f"v_pk_mul_f32 {vr(er,2)}, {vr(er,2)}, {vr(t1,2)} op_sel_hi:[1,0]")
        def cm(d, x, y):
            A(f"v_pk_mul_f32 {vr(d,2)}, {vr(x,2)}, {vr(y,2)} op_sel_hi:[1,0]")
            A(f"v_pk_fma_f32 {vr(d,2)}, {vr(x,2)}, {vr(y,2)}, {vr(d,2)} op_sel:[1,1,0] op_sel_hi:[0,1,1] neg_lo:[1,0,0]")
        cm(h1, h0, TB+4)
        cm(g, er, TB+2)
        cm(g+2, g, TB+6)
        cm(g+4, g+2, TB+6)
        cm(g+6, g+4, TB+6)
        def sp(hi, lo, x, t, neg):
            n = "-" if neg else ""
            A(f"v_cvt_pk_bf16_f32 v{hi}, v{x}, {n}v{x+1}")
            A(f"v_lshlrev_b32 v{t}, 16, v{hi}")
            A(f"v_and_b32 v{t+1}, 0xffff0000, v{hi}")
            if neg: A(f"v_pk_add_f32 {vr(t,2)}, {vr(x,2)}, {vr(t,2)} neg_lo:[0,1] neg_hi:[1,1]")
            else:   A(f"v_pk_add_f32 {vr(t,2)}, {vr(x,2)}, {vr(t,2)} neg_lo:[0,1] neg_hi:[0,1]")
            A(f"v_cvt_pk_bf16_f32 v{lo}, v{t}, v{t+1}")
        for ct in range(2):
            sp(HF+(ct*2)*4+e, HF+(ct*2+1)*4+e, h0+2*ct, (t0, t1)[ct], True)
        for rt in range(4):
            sp(GF+(rt*2)*4+e, GF+(rt*2+1)*4+e, g+2*rt, (t2, t0, t1, t2)[rt], False)
        return ops
    TBs = (64, 92, 120, 148)
    for ks in range(2):
        for e in range(4):
            off = (16*ks+e)*32
            a(f"ds_read_b128 {vr(TBs[e],4)}, v6 offset:{off}\n ds_read_b128 {vr(TBs[e]+4,4)}, v6 offset:{off+16}")
        a("s_waitcnt lgkmcnt(0)")
        interleave(a, [eblock(ks, e, TBs[e]) for e in range(4)])
        a("s_nop 1")
        for pas in range(3):
            for rt in range(4):
                for ct in range(2):
                    D = ACC+(rt*2+ct)*4
                    hh = HF+(ct*2)*4; hl = HF+(ct*2+1)*4; gh = GF+(rt*2)*4; gl = GF+(rt*2+1)*4
                    x, y = ((hh, gh), (hl, gh), (hh, gl))[pas]
                    a(f"v_mfma_f32_16x16x32_bf16 {vr(D,4)}, {vr(x,4)}, {vr(y,4)}, {vr(D,4)}")
        if ks == 0 and mid: mid()
    a(f"""
    v_and_b32 v1, 15, v0
    v_mul_u32_u24 v1, 144, v1
    v_lshrrev_b32 v4, 4, v0
    v_lshl_add_u32 v1, v4, 4, v1
    v_add_u32 v1, s78, v1
    s_lshl_b32 s73, s71, 6
    v_add_u32 v7, s73, v0
    v_sub_u32 v2, 2047, v7
    """)
    for e in range(8):
        a(f"""
        v_subrev_u32 v8, {256*e}, v2
        v_cvt_f32_u32 v8, v8
        v_cvt_pk_bf16_f32 v8, v8, v8
        v_lshlrev_b32 v8, 16, v8
        v_cvt_u32_f32 v8, v8
        v_lshrrev_b32 v9, 5, v8
        v_and_b32 v10, 31, v8
        v_mul_u32_u24 v9, 144, v9
        v_lshl_add_u32 v{64+e}, v10, 2, v9
        """)
    for rt in range(4):
        for ct in range(2):
            D = ACC+(rt*2+ct)*4
            a(f"ds_write_b128 v1, {vr(D,4)} offset:{rt*16*144 + ct*64}")
    a("v_mov_b32 v72, 0")
    a("s_waitcnt lgkmcnt(0)\n s_barrier")
    for e in range(8):
        for qq in range(4):
            a(f"ds_read_b32 v{16+e*4+qq}, v{64+e} offset:{X_T + qq*9360}")
    for qq in range(4):
        a(f"ds_read_b32 v{48+qq}, v72 offset:{X_T + qq*9360 + 64*144 + 4}")
    a(f"""
    v_lshlrev_b32 v3, 1, v7
    v_add_u32 v3, {X_R + ch*4224}, v3
    v_mov_b32 v56, 0
    v_mov_b32 v57, 0
    v_mov_b32 v58, 0
    v_mov_b32 v59, 0
    v_mov_b32 v4, {X_R + ch*4224}
    ds_write_b128 v4, v[56:59] offset:4096
    ds_write_b128 v4, v[56:59] offset:4112
    ds_write_b128 v4, v[56:59] offset:4128
    ds_write_b128 v4, v[56:59] offset:4144
    s_waitcnt lgkmcnt(4)
    v_add_f32 v48, v48, v49
    v_add_f32 v50, v50, v51
    v_add_f32 v48, v48, v50
    v_frexp_exp_i32_f32 v49, v48
    v_sub_u32 v50, 14, v49
    v_subrev_u32 v51, 14, v49
    v_ldexp_f32 v50, 1.0, v50
    v_ldexp_f32 v{240+ch}, 1.0, v51
    """)
    for e in range(8):
        b = 16+e*4
        a(f"""
        v_add_f32 v{b}, v{b}, v{b+1}
        v_add_f32 v{b+2}, v{b+2}, v{b+3}
        v_add_f32 v{b}, v{b}, v{b+2}
        v_mul_f32 v{b}, v50, v{b}
        v_cvt_f16_f32 v{b}, v{b}
        ds_write_b16 v3, v{b} offset:{512*e}
        """)

def x_uload(a, vm):
    a(f"""
    s_lshl_b32 s73, s50, 6
    v_add_u32 v1, s73, v0
    s_lshr_b32 s75, s72, 3
    s_lshl_b32 s75, s75, 11
    s_and_b32 s74, s72, 7
    s_lshl_b32 s74, s74, 1
    s_add_u32 s75, s75, s74
    s_add_u32 s74, s{P_WS}, s75
    s_addc_u32 s75, s{P_WS+1}, 0
    v_lshrrev_b32 v2, 7, v1
    v_lshlrev_b32 v2, 17, v2
    v_and_b32 v3, 127, v1
    v_lshl_add_u32 v2, v3, 4, v2
    """)
    for i in range(8):
        a(f"global_load_dword v{8+i}, v2, s[74:75] sc1")
        if i < 7: a("v_add_u32 v2, 0x40000, v2")
    vm.issue("u", 8)
    a(f"""
    v_mov_b32 v56, 0
    v_mov_b32 v57, 0
    v_mov_b32 v58, 0
    v_mov_b32 v59, 0
    v_cmp_gt_u32 vcc, 160, v1
    v_lshlrev_b32 v3, 4, v1
    v_add_u32 v3, {X_U}, v3
    s_and_saveexec_b64 s[76:77], vcc
    ds_write_b128 v3, v[56:59]
    ds_write_b128 v3, v[56:59] offset:7680
    s_mov_b64 exec, s[76:77]
    v_lshrrev_b32 v3, 5, v1
    v_mul_u32_u24 v3, 80, v3
    v_and_b32 v4, 31, v1
    v_lshl_add_u32 v3, v4, 1, v3
    v_add_u32 v3, {X_U+2560}, v3
    """)

def x_uwrite(a, vm):
    vm.wait(a, "u")
    for i in range(8):
        a(f"""
        v_lshlrev_b32 v16, 16, v{8+i}
        v_and_b32 v17, 0xffff0000, v{8+i}
        v_cvt_f16_f32 v16, v16
        v_cvt_f16_f32 v17, v17
        ds_write_b16 v3, v16 offset:{i*8*80}
        ds_write_b16 v3, v17 offset:{7680 + i*8*80}
        """)

def kc_build_one(a, vz, ch):
    a(f"""
    v_lshlrev_b32 v5, 4, v{vz}
    v_add_u32 v4, {X_KC}, v5
    v_add_u32 v5, {X_R + ch*4224}, v5
    ds_read_b128 v[64:67], v5
    ds_read_b128 v[68:71], v5 offset:16
    s_waitcnt lgkmcnt(0)
    """)
    for c in range(8):
        sft = 7-c
        dst = 72+4*c
        for k in range(4):
            if sft % 2 == 0: a(f"v_mov_b32 v{dst+k}, v{64+sft//2+k}")
            else: a(f"v_alignbit_b32 v{dst+k}, v{64+sft//2+k+1}, v{64+sft//2+k}, 16")
        a(f"ds_write_b128 v4, {vr(dst,4)} offset:{c*4160}")

def x_kc(a, ch):
    a(f"s_lshl_b32 s74, s71, 6\n v_add_u32 v1, s74, v0")
    kc_build_one(a, 1, ch)
    Ls = a.newlabel("kcskip")
    a(f"""
    s_cmp_lg_u32 s71, 0
    s_cbranch_scc1 {Ls}
    v_cmp_gt_u32 vcc, 3, v0
    s_and_saveexec_b64 s[76:77], vcc
    v_add_u32 v2, 256, v0
    """)
    kc_build_one(a, 2, ch)
    a("s_mov_b64 exec, s[76:77]")
    a.label(Ls)

def x_conv(a, vm, ch):
    a.comment(f"==== X: conv ch{ch} ====")
    ACC0 = 192; ACC1 = 208
    a(f"""
    v_and_b32 v1, 31, v0
    v_lshrrev_b32 v2, 5, v0
    v_and_b32 v3, 7, v1
    v_lshrrev_b32 v4, 3, v1
    v_mul_u32_u24 v3, 4160, v3
    v_sub_u32 v4, v2, v4
    v_add_u32 v4, 255, v4
    v_lshl_add_u32 v3, v4, 4, v3
    s_lshl_b32 s73, s71, 9
    s_add_u32 s73, s73, {64*7+2048}
    s_sub_u32 s74, {X_KC}, s73
    v_add_u32 v5, s74, v3
    v_mul_u32_u24 v6, 80, v1
    v_lshl_add_u32 v6, v2, 4, v6
    s_lshl_b32 s73, s71, 3
    s_sub_u32 s73, 25, s73
    s_mul_i32 s73, s73, 80
    s_add_u32 s73, s73, {X_U + ch*7680}
    v_add_u32 v6, s73, v6
    """)
    for i in range(32):
        a(f"v_mov_b32 v{ACC0+i}, 0")
    def reads(i, base):
        for ks in range(2):
            a(f"ds_read_b128 {vr(base+ks*16,4)}, v5 offset:{64*(7-i)+32*ks+2048}")
            a(f"ds_read_b128 {vr(base+ks*16+4,4)}, v5 offset:{64*(7-i)+32*ks}")
            a(f"ds_read_b128 {vr(base+ks*16+8,4)}, v6 offset:{(7-i)*80+ks*32}")
            a(f"ds_read_b128 {vr(base+ks*16+12,4)}, v6 offset:{(7-i)*80+2560+ks*32}")
    reads(0, 8)
    for i in range(8):
        base = 8 + 32*(i&1)
        if i < 7:
            reads(i+1, 8+32*((i+1)&1))
            a("s_waitcnt lgkmcnt(8)")
        else:
            a("s_waitcnt lgkmcnt(0)")
        for ks in range(2):
            An = base+ks*16; Af = An+4; B0 = An+8; B1 = An+12
            a(f"v_mfma_f32_32x32x16_f16 {vr(ACC0,16)}, {vr(An,4)}, {vr(B0,4)}, {vr(ACC0,16)}")
            a(f"v_mfma_f32_32x32x16_f16 {vr(ACC1,16)}, {vr(An,4)}, {vr(B1,4)}, {vr(ACC1,16)}")
            a(f"v_mfma_f32_32x32x16_f16 {vr(ACC1,16)}, {vr(Af,4)}, {vr(B0,4)}, {vr(ACC1,16)}")
    a(f"""
    v_lshlrev_b32 v1, 4, v0
    s_nop 7
    """)
    for dq in range(4):
        L = a.newlabel("rs")
        a(f"""
        s_cmp_eq_u32 s71, {dq}
        s_cbranch_scc1 {L}
        s_sub_u32 s73, s71, {dq+1}
        s_and_b32 s73, s73, 3
        s_lshl_b32 s73, s73, 11
        s_add_u32 s73, s73, {X_RED + dq*6144}
        v_add_u32 v2, s73, v1
        ds_write_b128 v2, {vr(ACC0+8*dq,4)}
        ds_write_b128 v2, {vr(ACC0+8*dq+4,4)} offset:1024
        """)
        a.label(L)
    Ld = a.newlabel("mvd")
    for dq in range(4):
        L = a.newlabel("mv")
        a(f"s_cmp_lg_u32 s71, {dq}\n s_cbranch_scc1 {L}")
        for i in range(8): a(f"v_mov_b32 v{8+i}, v{ACC0+8*dq+i}")
        a(f"s_branch {Ld}")
        a.label(L)
    a.label(Ld)
    a(f"""
    s_waitcnt lgkmcnt(0)
    s_barrier
    s_mul_i32 s73, s71, 6144
    s_add_u32 s73, s73, {X_RED}
    v_add_u32 v2, s73, v1
    """)
    for sl in range(3):
        a(f"ds_read_b128 {vr(16+8*sl,4)}, v2 offset:{sl*2048}")
        a(f"ds_read_b128 {vr(20+8*sl,4)}, v2 offset:{sl*2048+1024}")
    a(f"""
    v_and_b32 v3, 31, v0
    v_lshrrev_b32 v4, 5, v0
    s_lshr_b32 s73, s71, 1
    s_lshl_b32 s73, s73, 5
    s_and_b32 s74, s71, 1
    s_lshl_b32 s74, s74, 4
    v_add_u32 v5, s73, v3
    v_mul_u32_u24 v6, 80, v5
    v_lshl_add_u32 v6, v4, 3, v6
    s_lshl_b32 s76, s74, 1
    s_add_u32 s75, s76, {X_U + ch*7680 + 2560}
    v_add_u32 v6, s75, v6
    ds_read_b64 v[40:41], v6
    ds_read_b64 v[42:43], v6 offset:16
    v_lshlrev_b32 v5, 5, v5
    v_lshl_add_u32 v5, v4, 2, v5
    v_add_u32 v5, s74, v5
    v_lshlrev_b32 v5, 1, v5
    s_add_u32 s75, s72, {ch}
    s_lshl_b32 s75, s75, 12
    s_add_u32 s74, s{P_WS}, s75
    s_addc_u32 s75, s{P_WS+1}, 0
    s_add_u32 s74, s74, {ST}
    s_addc_u32 s75, s75, 0
    s_waitcnt lgkmcnt(0)
    """)
    DSK = 224 + 8*ch + 7
    for i in range(8):
        a(f"""
        v_add_f32 v{8+i}, v{8+i}, v{16+i}
        v_add_f32 v{24+i}, v{24+i}, v{32+i}
        v_add_f32 v{8+i}, v{8+i}, v{24+i}
        v_mul_f32 v{8+i}, v{240+ch}, v{8+i}
        """)
    st = []
    for p in range(4):
        st.append(lines(f"""
        v_cvt_f32_f16 v{44+2*p}, v{40+p}
        v_cvt_f32_f16_sdwa v{45+2*p}, v{40+p} dst_sel:DWORD dst_unused:UNUSED_PAD src0_sel:WORD_1
        v_mul_f32 v{44+2*p}, v{DSK}, v{44+2*p}
        v_mul_f32 v{45+2*p}, v{DSK}, v{45+2*p}
        v_cvt_pk_bf16_f32 v{52+p}, v{44+2*p}, v{45+2*p}
        v_cvt_pk_bf16_f32 v{56+p}, v{8+2*p}, v{9+2*p}
        v_lshlrev_b32 v{44+2*p}, 16, v{52+p}
        v_and_b32 v{45+2*p}, 0xffff0000, v{52+p}
        v_lshlrev_b32 v{8+2*p}, 16, v{56+p}
        v_and_b32 v{9+2*p}, 0xffff0000, v{56+p}
        v_add_f32 v{8+2*p}, v{8+2*p}, v{44+2*p}
        v_add_f32 v{9+2*p}, v{9+2*p}, v{45+2*p}
        v_cvt_pk_bf16_f32 v{60+p}, v{8+2*p}, v{9+2*p}"""))
    interleave(a, st)
    a(f"""
    global_store_dwordx2 v5, v[60:61], s[74:75] sc1
    global_store_dwordx2 v5, v[62:63], s[74:75] offset:16 sc1
    """)
    vm.issue("sst", 2)

def prog_x(a):
    vm = Vm()
    stamp_begin(a)
    if "xprio" in OPTS: a("s_setprio 2")
    x_early(a, vm)
    if "xskip" in OPTS:
        nonce_get(a)
        a("s_waitcnt vmcnt(0)\n s_barrier")
        flag_set(a, 2)
        a("s_waitcnt vmcnt(0)")
        stamp(a)
        stamp_flush(a)
        return
    x_kgen(a, vm, 0, mid=lambda: x_touch_w(a, vm))
    stamp(a)
    x_kgen(a, vm, 1, mid=lambda: x_touch_wd(a, vm))
    stamp(a)
    nonce_get(a)
    a("s_waitcnt lgkmcnt(0)")
    poll(a, 0)
    stamp(a)
    x_uload(a, vm)
    x_kc(a, 0)
    x_uwrite(a, vm)
    a("s_waitcnt lgkmcnt(0)\n s_barrier")
    stamp(a)
    x_conv(a, vm, 0)
    stamp(a)
    a("s_barrier")
    x_kc(a, 1)
    a("s_waitcnt lgkmcnt(0)\n s_barrier")
    x_conv(a, vm, 1)
    stamp(a)
    vm.wait(a, "sst")
    a("s_barrier")
    flag_set(a, 2)
    a("s_waitcnt vmcnt(0)")
    stamp(a)
    stamp_flush(a)

def build():
    a = Asm()
    prologue(a)
    prog_g(a)
    a.label("LprogX")
    prog_x(a)
    a.label("Lend")
    a("s_endpgm")
    hdr = HEADER_COMMENT + f"; @launch grid=(512,1,1) block=(256,1,1) lds={LDS_BYTES}\n"
    txt = hdr + '.amdgcn_target "amdgcn-amd-amdhsa--gfx950"\n.text\n' + kernel_header(KNAME) + a.text()
    txt += '.section .rodata,"a"\n' + kernel_desc(KNAME)
    return txt

if __name__ == "__main__":
    opts = sys.argv[2].split(",") if len(sys.argv) > 2 else []
    OPTS = opts
    if "stamps" in opts: STAMPS = True
    if "fine" in opts: FINE = True
    open(sys.argv[1], "w").write(build())
```

```python
import sys, copy
from asmlib import *

XQ = 0
HQ = 0x200000
ST = 0x900000
FLG = 0xC00000
P_X, P_ARE, P_AIM, P_BRE, P_BIM, P_CRE, P_CIM, P_LDT = 16,18,20,22,24,26,28,30
P_DSK, P_BX, P_WG, P_WU, P_WD, P_OUT, P_DBG, P_WS = 32,34,36,38,40,42,44,46
KNAME = "recurrent_scan__ssm_conv_s4__glu_gated_glu__prompt_kernel"
LDS_BYTES = 81920
OPTS = []
DBGWG = [8]
SLEEP = 4
FINE = False
STAMPS = False
_stamp_n = [0]
def stamp(a, name=""):
    if not STAMPS: return
    i = _stamp_n[0]; _stamp_n[0] += 1
    a(f"s_memtime s[98:99]\n s_waitcnt lgkmcnt(0)\n v_writelane_b32 v255, s98, {i}")
def stamp_begin(a):
    _stamp_n[0] = 0
    if STAMPS: a("s_memrealtime s[98:99]\n s_waitcnt lgkmcnt(0)\n v_writelane_b32 v255, s98, 62")
    stamp(a)
def stamp_flush(a):
    if not STAMPS: return
    if "dbgst" in OPTS:
        L = a.newlabel("dbs")
        a(f"""
        s_cmp_lg_u32 s2, {DBGWG[0]}
        s_cbranch_scc1 {L}
        s_cmp_lg_u32 s50, 0
        s_cbranch_scc1 {L}
        v_readlane_b32 s98, v255, 0
        s_nop 3
        v_subrev_u32 v254, s98, v255
        v_lshlrev_b32 v253, 2, v0
        v_add_u32 v253, 4, v253
        v_cmp_gt_u32 vcc, 15, v0
        v_cmp_lt_u32 s[96:97], 0, v0
        s_nop 1
        s_and_b64 vcc, vcc, s[96:97]
        s_and_saveexec_b64 s[96:97], vcc
        global_store_dword v253, v254, s[{P_DBG}:{P_DBG+1}]
        s_mov_b64 exec, s[96:97]
        """)
        a.label(L)
        return
    a("s_memrealtime s[98:99]\n s_waitcnt lgkmcnt(0)\n v_writelane_b32 v255, s98, 63")
    a(f"v_writelane_b32 v255, 0, {_stamp_n[0]}")
    a(f"""
    s_lshl_b32 s98, s2, 2
    s_add_u32 s98, s98, s50
    s_lshl_b32 s98, s98, 8
    s_add_u32 s98, s98, 0x2000000
    s_add_u32 s96, s{P_WS}, s98
    s_addc_u32 s97, s{P_WS+1}, 0
    v_lshlrev_b32 v254, 2, v0
    global_store_dword v254, v255, s[96:97]
    """)

class Vm:
    def __init__(self): self.ops = []
    def issue(self, tag, n=1):
        for _ in range(n): self.ops.append(tag)
    def wait(self, a, tags):
        if isinstance(tags, str): tags = [tags]
        last = -1
        for i, t in enumerate(self.ops):
            if t in tags: last = i
        assert last >= 0, tags
        n = len(self.ops) - 1 - last
        a(f"s_waitcnt vmcnt({min(n,63)})")

def lgk(n): return f"s_waitcnt lgkmcnt({min(n,15)})"

def wave_reduce(a, v, op="add"):
    for sh in (1,2,4,8):
        a(f"s_nop 1\n v_{op}_f32_dpp v{v}, v{v}, v{v} row_shr:{sh} row_mask:0xf bank_mask:0xf bound_ctrl:0")
    a(f"s_nop 1\n v_{op}_f32_dpp v{v}, v{v}, v{v} row_bcast:15 row_mask:0xa bank_mask:0xf")
    a(f"s_nop 1\n v_{op}_f32_dpp v{v}, v{v}, v{v} row_bcast:31 row_mask:0xc bank_mask:0xf")
    a("s_nop 1")
def bf16_round(a, dst, src):
    a(f"v_cvt_pk_bf16_f32 v{dst}, v{src}, v{src}\n v_lshlrev_b32 v{dst}, 16, v{dst}")
def make_srd(a, s, ptr, nbytes):
    a(f"""
    s_mov_b32 s{s}, s{ptr}
    s_and_b32 s{s+1}, s{ptr+1}, 0xffff
    s_mov_b32 s{s+2}, {nbytes}
    s_mov_b32 s{s+3}, 0x00020000
    """)
def interleave(a, streams):
    n = max(len(s) for s in streams)
    for k in range(n):
        for s in streams:
            if k < len(s): a(s[k])
def lines(s): return [l.strip() for l in s.strip("\n").split("\n") if l.strip()]

PT = (246, 248, 250, 252)
def nonce_publish(a):
    L = a.newlabel("np")
    a(f"""
    s_or_b32 s6, s2, s50
    s_cmp_lg_u32 s6, 0
    s_cbranch_scc1 {L}
    s_memrealtime s[6:7]
    s_waitcnt lgkmcnt(0)
    s_or_b32 s6, s6, 1
    v_mov_b32 v244, 0
    v_mov_b32 v246, s6
    v_mov_b32 v247, s7
    s_mov_b64 s[6:7], exec
    s_mov_b64 exec, 1
    global_store_dwordx2 v244, v[246:247], s[{P_DBG}:{P_DBG+1}] sc1
    s_mov_b64 exec, s[6:7]
    """)
    a.label(L)
def nonce_get(a):
    L = a.newlabel("ng"); Lp = a.newlabel("ngp"); Ld = a.newlabel("ngd")
    a(f"""
    s_cmp_lg_u32 s50, 0
    s_cbranch_scc1 {L}
    v_mov_b32 v244, 0
    s_mov_b32 s6, 0
    """)
    a.label(Lp)
    a(f"""
    global_load_dwordx2 v[246:247], v244, s[{P_DBG}:{P_DBG+1}] sc1
    s_waitcnt vmcnt(0)
    v_cmp_eq_u32 vcc, 0, v246
    s_add_u32 s6, s6, 1
    s_cmp_gt_u32 s6, 200000
    s_cbranch_scc1 {Ld}
    s_cbranch_vccz {Ld}
    s_sleep 2
    s_branch {Lp}
    """)
    a.label(Ld)
    a("v_readfirstlane_b32 s8, v246\n v_readfirstlane_b32 s9, v247")
    a.label(L)
def flag_set(a, phase):
    L = a.newlabel("fs")
    a(f"s_cmp_lg_u32 s50, 0\n s_cbranch_scc1 {L}")
    if phase < 2: a("s_lshl_b32 s6, s48, 4\n s_add_u32 s6, s6, s49")
    else: a("s_lshl_b32 s6, s4, 5\n s_add_u32 s6, s6, s5")
    a(f"""
    s_lshl_b32 s6, s6, 3
    s_add_u32 s6, s6, {FLG + phase*2048}
    v_mov_b32 v244, s6
    v_mov_b32 v246, s8
    v_mov_b32 v247, s9
    s_mov_b64 s[6:7], exec
    s_mov_b64 exec, 1
    global_store_dwordx2 v244, v[246:247], s[{P_WS}:{P_WS+1}] sc1
    s_mov_b64 exec, s[6:7]
    """)
    a.label(L)
def poll(a, phase, group_sreg=None, nflags=256):
    L = a.newlabel("pl"); Lp = a.newlabel("plp"); Ld = a.newlabel("pld")
    a(f"s_cmp_lg_u32 s50, 0\n s_cbranch_scc1 {L}")
    if group_sreg is None:
        a(f"v_lshlrev_b32 v244, 3, v0\n v_add_u32 v244, {FLG + phase*2048}, v244")
        nl = 4
    else:
        a(f"""
        v_and_b32 v244, {nflags-1}, v0
        v_lshlrev_b32 v244, 3, v244
        s_mul_i32 s6, s{group_sreg}, {nflags*8}
        s_add_u32 s6, s6, {FLG + phase*2048}
        v_add_u32 v244, s6, v244
        """)
        nl = 1
    a("s_mov_b32 s6, 0")
    a.label(Lp)
    for k in range(nl):
        a(f"global_load_dwordx2 v[{PT[k]}:{PT[k]+1}], v244, s[{P_WS}:{P_WS+1}] offset:{k*512} sc1")
    a("s_waitcnt vmcnt(0)")
    for k in range(nl):
        a(f"v_xor_b32 v{PT[k]}, s8, v{PT[k]}\n v_xor_b32 v{PT[k]+1}, s9, v{PT[k]+1}")
    for k in range(nl):
        if k > 0: a(f"v_or_b32 v{PT[0]}, v{PT[0]}, v{PT[k]}")
        a(f"v_or_b32 v{PT[0]}, v{PT[0]}, v{PT[k]+1}")
    a(f"""
    v_cmp_ne_u32 vcc, 0, v{PT[0]}
    s_add_u32 s6, s6, 1
    s_cmp_gt_u32 s6, 200000
    s_cbranch_scc1 {Ld}
    s_cbranch_vccz {Ld}
    s_sleep {SLEEP}
    s_branch {Lp}
    """)
    a.label(Ld)
    a.label(L)
    a("s_barrier")

def prologue(a):
    a(f"""
    s_cmp_ge_u32 s2, 512
    s_cbranch_scc1 Lend
    s_load_dwordx16 s[16:31], s[0:1], 0
    s_load_dwordx16 s[32:47], s[0:1], 64
    v_lshrrev_b32 v1, 6, v0
    v_and_b32 v0, 63, v0
    v_readfirstlane_b32 s50, v1
    s_and_b32 s3, s2, 255
    s_and_b32 s4, s3, 7
    s_lshr_b32 s5, s3, 3
    s_lshr_b32 s6, s4, 1
    s_lshl_b32 s6, s6, 2
    s_and_b32 s7, s5, 3
    s_add_u32 s48, s6, s7
    s_and_b32 s6, s4, 1
    s_lshl_b32 s6, s6, 3
    s_lshr_b32 s7, s5, 2
    s_add_u32 s49, s6, s7
    s_waitcnt lgkmcnt(0)
    s_cmp_ge_u32 s2, 256
    s_cbranch_scc1 LprogX
    """)

G1_R = 5
def g_ln(a, vm):
    a.comment("==== G: LN (2 rows per wave) ====")
    a(f"""
    s_lshl_b32 s51, s48, 7
    s_lshl_b32 s52, s49, 3
    s_add_u32 s91, s51, s52
    s_lshl_b32 s51, s50, 1
    s_add_u32 s51, s51, s91
    s_lshl_b32 s52, s51, 10
    s_add_u32 s92, s{P_X}, s52
    s_addc_u32 s93, s{P_X+1}, 0
    v_lshlrev_b32 v3, 4, v0
    global_load_dwordx4 v[4:7], v3, s[92:93]
    global_load_dwordx4 v[44:47], v3, s[92:93] offset:1024
    """)
    vm.issue("x", 2)
    nonce_publish(a)
    g1_dma_setup(a)
    vm.wait(a, "x")
    def row(B, sreg):
        o = []
        for i in range(4):
            o += [f"v_lshlrev_b32 v{B+4+2*i}, 16, v{B+i}", f"v_and_b32 v{B+5+2*i}, 0xffff0000, v{B+i}"]
        o += lines(f"""
        v_add_f32 v{B+12}, v{B+4}, v{B+5}
        v_add_f32 v{B+13}, v{B+6}, v{B+7}
        v_add_f32 v{B+14}, v{B+8}, v{B+9}
        v_add_f32 v{B+15}, v{B+10}, v{B+11}
        v_add_f32 v{B+12}, v{B+12}, v{B+13}
        v_add_f32 v{B+14}, v{B+14}, v{B+15}
        v_add_f32 v{B+12}, v{B+12}, v{B+14}""")
        def red(v):
            r = []
            for sh in (1,2,4,8):
                r += ["s_nop 0", f"v_add_f32_dpp v{v}, v{v}, v{v} row_shr:{sh} row_mask:0xf bank_mask:0xf bound_ctrl:0"]
            r += ["s_nop 0", f"v_add_f32_dpp v{v}, v{v}, v{v} row_bcast:15 row_mask:0xa bank_mask:0xf"]
            r += ["s_nop 0", f"v_add_f32_dpp v{v}, v{v}, v{v} row_bcast:31 row_mask:0xc bank_mask:0xf", "s_nop 0"]
            return r
        o += red(B+12)
        o += [f"v_readlane_b32 s{sreg}, v{B+12}, 63", "s_nop 1", f"v_mov_b32 v{B+13}, s{sreg}", f"v_mul_f32 v{B+13}, 0x3b000000, v{B+13}"]
        for i in range(8): o.append(f"v_sub_f32 v{B+16+i}, v{B+4+i}, v{B+13}")
        o.append(f"v_mul_f32 v{B+12}, v{B+16}, v{B+16}")
        for i in range(1,8): o.append(f"v_fmac_f32 v{B+12}, v{B+16+i}, v{B+16+i}")
        o += red(B+12)
        o += [f"v_readlane_b32 s{sreg+1}, v{B+12}, 63", "s_nop 1", f"v_mov_b32 v{B+14}, s{sreg+1}", f"v_mul_f32 v{B+14}, 0x3b000000, v{B+14}"]
        def rnd(v): return [f"v_cvt_pk_bf16_f32 v{v}, v{v}, v{v}", f"v_lshlrev_b32 v{v}, 16, v{v}"]
        o += rnd(B+14) + [f"v_add_f32 v{B+14}, 0x3727c5ac, v{B+14}"] + rnd(B+14) + [f"v_sqrt_f32 v{B+14}, v{B+14}", "s_nop 0"] + rnd(B+14)
        o += [f"v_rcp_f32 v{B+15}, v{B+14}"] + rnd(B+13)
        for i in range(8): o.append(f"v_sub_f32 v{B+16+i}, v{B+4+i}, v{B+13}")
        for i in range(4): o.append(f"v_cvt_pk_bf16_f32 v{B+24+i}, v{B+16+2*i}, v{B+17+2*i}")
        for i in range(4): o += [f"v_lshlrev_b32 v{B+16+2*i}, 16, v{B+24+i}", f"v_and_b32 v{B+17+2*i}, 0xffff0000, v{B+24+i}"]
        for i in range(8):
            o += [f"v_mul_f32 v{B+4+i}, v{B+16+i}, v{B+15}", f"v_fma_f32 v{B+28+i}, -v{B+4+i}, v{B+14}, v{B+16+i}", f"v_fma_f32 v{B+4+i}, v{B+28+i}, v{B+15}, v{B+4+i}"]
        for i in range(4): o.append(f"v_cvt_pk_bf16_f32 v{B+i}, v{B+4+2*i}, v{B+5+2*i}")
        return o
    interleave(a, [row(4, 94), row(44, 96)])
    LN_SCR = 65536
    a(f"""
    s_mul_i32 s94, s50, 2080
    s_add_u32 s94, s94, {LN_SCR}
    v_lshlrev_b32 v3, 4, v0
    v_add_u32 v3, s94, v3
    ds_write_b128 v3, v[4:7]
    ds_write_b128 v3, v[44:47] offset:1040
    v_and_b32 v8, 7, v0
    v_lshrrev_b32 v9, 3, v0
    s_lshl_b32 s94, s50, 4
    v_add_u32 v9, s94, v9             ; group g = 16w + (lane>>3)  (+8 second)
    v_mul_u32_u24 v10, 1040, v8
    v_lshl_add_u32 v10, v9, 4, v10
    v_add_u32 v10, {LN_SCR}, v10
    s_waitcnt lgkmcnt(0)
    s_barrier
    ds_read_b128 v[4:7], v10
    ds_read_b128 v[12:15], v10 offset:128
    v_lshlrev_b32 v11, 11, v9
    s_lshl_b32 s94, s49, 3
    v_add_u32 v12+0, s94, v8
    """.replace("v12+0", "v16"))
    a(f"""
    v_lshl_add_u32 v11, v16, 4, v11
    s_lshl_b32 s94, s48, 17
    s_add_u32 s92, s{P_WS}, s94
    s_addc_u32 s93, s{P_WS+1}, 0
    v_add_u32 v17, 16384, v11
    s_waitcnt lgkmcnt(0)
    global_store_dwordx4 v11, v[4:7], s[92:93] sc1
    global_store_dwordx4 v17, v[12:15], s[92:93] sc1
    """)
    vm.issue("xqst", 2)

def g1_dma_setup(a):
    make_srd(a, 52, P_WG, 512*3584)
    make_srd(a, 56, P_WU, 512*3584)
    a("""
    v_lshrrev_b32 v242, 4, v0
    v_bfe_u32 v243, v0, 1, 3
    v_and_b32 v238, 1, v0
    v_xor_b32 v239, v243, v242
    v_xor_b32 v243, 4, v239
    v_mul_u32_u24 v242, 3584, v242
    v_lshl_add_u32 v242, v238, 4, v242
    v_lshl_add_u32 v240, v239, 5, v242
    v_lshl_add_u32 v241, v243, 5, v242
    s_mul_i32 s60, s49, 224
    s_mul_i32 s61, s50, 28672
    s_add_u32 s60, s60, s61
    s_lshl_b32 s62, s50, 11
    """)
def g1_dma_issue(a, vm, stage):
    slot = stage % G1_R
    for jj in range(2):
        a(f"""
        s_add_u32 s61, s60, {stage*32*3584 + jj*14336}
        s_add_u32 m0, s62, {slot*16384 + jj*1024}
        s_nop 0
        buffer_load_dwordx4 v240, s[52:55], s61 offen lds
        s_add_u32 m0, s62, {slot*16384 + 8192 + jj*1024}
        s_nop 0
        buffer_load_dwordx4 v241, s[56:59], s61 offen lds
        """)
    vm.issue(f"w{stage}", 4)

def g_gemm1(a, vm):
    a.comment("==== G: GEMM1 ====")
    ACC = 8; AX = 120; AY = 148; BF = 176; NB = 14; PF = 12; AD = 232; NT = 7
    a(f"""
    s_lshl_b32 s63, s50, 5
    s_lshl_b32 s64, s48, 7
    s_add_u32 s63, s63, s64
    s_lshl_b32 s64, s50, 5
    v_and_b32 v1, 31, v0
    v_add_u32 v1, s64, v1
    v_lshrrev_b32 v2, 5, v0
    v_lshlrev_b32 v2, 11, v2
    v_lshl_add_u32 v1, v1, 4, v2
    s_lshl_b32 s65, s48, 17
    s_add_u32 s64, s{P_WS}, s65
    s_addc_u32 s65, s{P_WS+1}, 0
    """)
    def bload(ks):
        a(f"global_load_dwordx4 {vr(BF+4*(ks%NB),4)}, v1, s[64:65]")
        a("s_add_u32 s64, s64, 4096\n s_addc_u32 s65, s65, 0")
        vm.issue(f"b{ks}")
    for ks in range(PF): bload(ks)
    a(f"""
    v_lshrrev_b32 v2, 4, v0
    v_and_b32 v3, 1, v2
    v_lshrrev_b32 v2, 1, v2
    v_bfe_u32 v4, v0, 2, 2
    v_and_b32 v5, 3, v0
    v_lshl_add_u32 v6, v3, 2, v4
    v_lshlrev_b32 v6, 5, v6
    v_lshl_add_u32 v7, v2, 3, v4
    v_lshlrev_b32 v7, 8, v7
    v_lshl_add_u32 v7, v3, 13, v7
    v_lshl_add_u32 v7, v5, 3, v7
    """)
    for t in range(NT):
        a(f"v_xor_b32 v{AD+t}, {t*32}, v6\n v_add_u32 v{AD+t}, v{AD+t}, v7")
    for i in range(112):
        a(f"v_mov_b32 v{ACC+i}, 0")
    AT = [2,3,4,5,6,7,239]
    def rd(k2, dst, t):
        return [f"ds_read_b64_tr_b16 {vr(dst+4*t+2*h2,2)}, v{AT[t]} offset:{k2*4096+h2*1024}" for h2 in range(2)]
    def mf(src, ks, t):
        return f"v_mfma_f32_32x32x16_bf16 {vr(ACC+16*t,16)}, {vr(src+4*t,4)}, {vr(BF+4*(ks%NB),4)}, {vr(ACC+16*t,16)}"
    def dma_ops(stage):
        slot = stage % G1_R
        ops = []
        for jj in range(2):
            ops.append(f"""s_add_u32 s61, s60, {stage*32*3584 + jj*14336}
            s_add_u32 m0, s62, {slot*16384 + jj*1024}
            s_nop 0
            buffer_load_dwordx4 v240, s[52:55], s61 offen lds""")
            ops.append(f"""s_add_u32 m0, s62, {slot*16384 + 8192 + jj*1024}
            s_nop 0
            buffer_load_dwordx4 v241, s[56:59], s61 offen lds""")
        return ops
    vm.wait(a, ["w0", "b0", "b1"])
    a("s_barrier")
    for t in range(NT): a(f"v_add_u32 v{AT[t]}, 0, v{AD+t}")
    for t in range(NT):
        for l in rd(0, AX, t): a(l)
    a("s_waitcnt lgkmcnt(1)")
    for t in range(NT):
        for l in rd(1, AY, t): a(l)
    for s in range(16):
        last = (s == 15)
        if not last:
            vm.wait(a, [f"w{s+1}", f"b{2*s+2}", f"b{2*s+1}"])
            a("s_barrier")
            if s % 4 == 3: stamp(a)
            for t in range(NT): a(f"v_add_u32 v{AT[t]}, {((s+1) % G1_R)*16384}, v{AD+t}")
        extra = []
        if s + 4 < 16:
            extra += [("dma", o) for o in dma_ops(s+4)]
        for ks in (2*s+PF, 2*s+PF+1):
            if ks < 32: extra.append(("b", ks))
        for half, buf in ((0, AX), (1, AY)):
            for t in range(NT):
                a("s_waitcnt lgkmcnt(12)" if not last else lgk(2*(NT-1-t) + (14 if half == 0 else 0)))
                a(mf(buf, 2*s+half, t))
                if not last:
                    for l in rd(half, buf, t): a(l)
                if extra and half == 0 or (extra and half == 1):
                    kind, o = extra.pop(0)
                    if kind == "dma": a(o); vm.issue(f"w{s+4}")
                    else: bload(o)
    stamp(a)
    a("s_barrier")
    g2_setup(a)
    for s in range(4): g2_dma_issue(a, vm, s)
    a(f"""
    s_and_b32 s64, s63, 63
    v_and_b32 v1, 31, v0
    v_add_u32 v1, s64, v1
    v_lshrrev_b32 v2, 5, v0
    s_mul_i32 s68, s49, 14
    v_add_u32 v2, s68, v2
    v_lshlrev_b32 v2, 10, v2
    v_lshl_add_u32 v1, v1, 4, v2
    s_lshr_b32 s68, s63, 6
    s_mul_i32 s68, s68, 229376
    s_add_u32 s68, s68, {HQ}
    s_add_u32 s64, s{P_WS}, s68
    s_addc_u32 s65, s{P_WS+1}, 0
    s_mov_b32 s69, 0xbfb8aa3b
    """)
    for t in range(NT):
        A = ACC+16*t
        st = []
        for p in range(4):
            g0 = A+2*p; u0 = A+8+2*p
            b = 120 + 8*p
            st.append(lines(f"""
            v_cvt_pk_bf16_f32 v{b}, v{g0}, v{g0+1}
            v_cvt_pk_bf16_f32 v{b+1}, v{u0}, v{u0+1}
            v_lshlrev_b32 v{b+2}, 16, v{b}
            v_and_b32 v{b+3}, 0xffff0000, v{b}
            v_mul_f32 v{b+2}, s69, v{b+2}
            v_mul_f32 v{b+3}, s69, v{b+3}
            v_exp_f32 v{b+2}, v{b+2}
            v_exp_f32 v{b+3}, v{b+3}
            v_lshlrev_b32 v{b+4}, 16, v{b+1}
            v_and_b32 v{b+5}, 0xffff0000, v{b+1}
            v_add_f32 v{b+2}, 1.0, v{b+2}
            v_add_f32 v{b+3}, 1.0, v{b+3}
            v_rcp_f32 v{b+2}, v{b+2}
            v_rcp_f32 v{b+3}, v{b+3}
            v_cvt_pk_bf16_f32 v{b+6}, v{b+2}, v{b+3}
            v_lshlrev_b32 v{b+2}, 16, v{b+6}
            v_and_b32 v{b+3}, 0xffff0000, v{b+6}
            v_pk_mul_f32 {vr(b+2,2)}, {vr(b+2,2)}, {vr(b+4,2)}
            v_cvt_pk_bf16_f32 v{160+4*(t&1)*1+0+p + 4*(t&3) - 4*(t&1)}, v{b+2}, v{b+3}"""))
        R = 160 + 4*(t&3)
        interleave(a, st)
        a(f"""
        s_nop 1
        v_permlane32_swap_b32 v{R}, v{R+2}
        v_permlane32_swap_b32 v{R+1}, v{R+3}
        global_store_dwordx4 v1, {vr(R,4)}, s[64:65] sc1
        s_add_u32 s64, s64, 2048
        s_addc_u32 s65, s65, 0
        """)
        vm.issue("hst")

G2_R = 5
def g2_setup(a):
    make_srd(a, 52, P_WD, 1792*1024)
    a("""
    s_lshr_b32 s80, s4, 1
    s_lshl_b32 s80, s80, 3
    s_and_b32 s81, s5, 7
    s_add_u32 s80, s80, s81
    s_and_b32 s81, s4, 1
    s_lshl_b32 s81, s81, 2
    s_lshr_b32 s82, s5, 3
    s_add_u32 s81, s81, s82
    s_lshr_b32 s90, s80, 1
    v_lshrrev_b32 v242, 3, v0
    v_bfe_u32 v243, v0, 1, 2
    v_and_b32 v238, 1, v0
    v_and_b32 v239, 2, v242
    v_xor_b32 v243, v243, v239
    v_lshlrev_b32 v242, 10, v242
    v_lshl_add_u32 v242, v238, 4, v242
    v_lshl_add_u32 v240, v243, 5, v242
    s_mul_i32 s84, s50, 458752
    s_lshl_b32 s85, s81, 7
    s_add_u32 s84, s84, s85
    s_mul_i32 s85, s50, 20480
    """)
def g2_dma_issue(a, vm, stage):
    slot = stage % G2_R
    for j in range(4):
        a(f"""
        s_add_u32 s86, s84, {(stage*32 + 8*j)*1024}
        s_add_u32 m0, s85, {slot*4096 + j*1024}
        s_nop 0
        buffer_load_dwordx4 v240, s[52:55], s86 offen lds
        """)
    vm.issue(f"d{stage}", 4)

def g_gemm2(a, vm):
    a.comment("==== G: GEMM2 ====")
    ACC = 8; AP = 72; AQ = 88; BF = 104; NBK = 10; AD = 232; AT = 234
    NS = 14
    a(f"""
    v_and_b32 v1, 31, v0
    v_lshrrev_b32 v2, 5, v0
    s_mul_i32 s88, s50, 56
    v_add_u32 v2, s88, v2
    v_lshlrev_b32 v2, 10, v2
    v_lshl_add_u32 v1, v1, 4, v2
    s_mul_i32 s88, s80, 229376
    s_add_u32 s88, s88, {HQ}
    s_add_u32 s66, s{P_WS}, s88
    s_addc_u32 s67, s{P_WS+1}, 0
    """)
    def bload(ks):
        b = BF + 8*(ks % NBK)
        a(f"global_load_dwordx4 {vr(b,4)}, v1, s[66:67]")
        a(f"global_load_dwordx4 {vr(b+4,4)}, v1, s[66:67] offset:512")
        a("s_add_u32 s66, s66, 2048\n s_addc_u32 s67, s67, 0")
        vm.issue(f"c{ks}", 2)
    PF = NBK - 2
    for ks in range(PF): bload(ks)
    a(f"""
    s_and_b32 s82, s50, 1
    s_lshr_b32 s83, s50, 1
    s_lshl_b32 s87, s80, 6
    s_lshl_b32 s88, s82, 5
    s_add_u32 s87, s87, s88
    v_and_b32 v3, 31, v0
    v_add_u32 v3, s87, v3              ; t
    v_lshrrev_b32 v4, 5, v0
    s_lshl_b32 s88, s83, 5
    s_lshl_b32 s89, s81, 6
    s_add_u32 s88, s88, s89
    v_lshlrev_b32 v4, 2, v4
    v_add_u32 v4, s88, v4              ; d (g=0,e=0)
    v_lshlrev_b32 v236, 10, v3
    v_lshl_add_u32 v236, v4, 1, v236
    v_lshlrev_b32 v237, 12, v4
    v_lshl_add_u32 v237, v3, 1, v237   ; s offset
    """)
    for g in range(4):
        a(f"global_load_dwordx2 {vr(184+2*g,2)}, v236, s[{P_X}:{P_X+1}] offset:{16*g}")
    vm.issue("xe", 4)
    a(f"""
    v_lshrrev_b32 v2, 4, v0
    v_and_b32 v3, 1, v2
    v_lshrrev_b32 v2, 1, v2
    v_bfe_u32 v4, v0, 2, 2
    v_and_b32 v5, 3, v0
    v_and_b32 v6, 2, v4
    v_lshl_add_u32 v7, v2, 3, v4
    v_lshlrev_b32 v7, 7, v7
    v_lshl_add_u32 v7, v5, 3, v7
    v_add_u32 v7, s85, v7
    """)
    for mt in range(2):
        a(f"""
        v_add_u32 v2, {2*mt}, v3
        v_xor_b32 v2, v2, v6
        v_lshl_add_u32 v{AD+mt}, v2, 5, v7
        """)
    for i in range(64):
        a(f"v_mov_b32 v{ACC+i}, 0")
    def rd(dst, k2, mt):
        return [f"ds_read_b64_tr_b16 {vr(dst+8*k2+4*mt+2*h2,2)}, v{AT+mt} offset:{k2*2048+h2*512}" for h2 in range(2)]
    def setslot(s):
        for mt in range(2):
            a(f"v_add_u32 v{AT+mt}, {(s % G2_R)*4096}, v{AD+mt}")
    def dma_ops(stage):
        slot = stage % G2_R
        return [f"""s_add_u32 s86, s84, {(stage*32 + 8*j)*1024}
            s_add_u32 m0, s85, {slot*4096 + j*1024}
            s_nop 0
            buffer_load_dwordx4 v240, s[52:55], s86 offen lds""" for j in range(4)]
    vm.wait(a, ["d0"])
    setslot(0)
    for k2 in range(2):
        for mt in range(2):
            for l in rd(AP, k2, mt): a(l)
    nxt = 4
    for s in range(NS):
        cur = AP if s % 2 == 0 else AQ
        oth = AQ if s % 2 == 0 else AP
        last = (s == NS-1)
        if not last:
            vm.wait(a, [f"d{s+1}", f"c{2*s+1}"])
            if s % 4 == 3: stamp(a)
            setslot(s+1)
        else:
            vm.wait(a, [f"c{2*s+1}"])
        fill = []
        if not last:
            for k2 in range(2):
                for mt in range(2): fill.append(("r", (k2, mt)))
        post = []
        if nxt < NS and not last:
            post += [("dma", o) for o in dma_ops(nxt)]
        for ks in (2*s+PF, 2*s+PF+1):
            if ks < 28: post.append(("b", ks))
        n = 0
        for k2 in range(2):
            ks = 2*s+k2
            b = BF + 8*(ks % NBK)
            for mt in range(2):
                idx = k2*2+mt
                issued_new = 2*min(n, 4) if not last else 0
                a(lgk((3-idx)*2 + issued_new))
                for nt in range(2):
                    D = ACC + 16*(2*mt+nt)
                    a(f"v_mfma_f32_32x32x16_bf16 {vr(D,16)}, {vr(cur+8*k2+4*mt,4)}, {vr(b+4*nt,4)}, {vr(D,16)}")
                    if nt == 0 and fill:
                        _, (fk, fm) = fill.pop(0)
                        for l in rd(oth, fk, fm): a(l)
                        n += 1
                    elif post and (k2 == 1):
                        for _ in range(3):
                            if post:
                                kind, o = post.pop(0)
                                if kind == "dma": a(o); vm.issue(f"d{nxt}")
                                else: bload(o)
        while post:
            kind, o = post.pop(0)
            if kind == "dma": a(o); vm.issue(f"d{nxt}")
            else: bload(o)
        if nxt < NS and not last: nxt += 1
    stamp(a)
    a("s_barrier\n s_nop 7")
    a(f"""
    s_lshl_b32 s88, s50, 14
    v_lshlrev_b32 v1, 4, v0
    v_add_u32 v2, s88, v1
    """)
    for dst in range(4):
        for k in range(4):
            a(f"ds_write_b128 v2, {vr(ACC+16*dst+4*k,4)} offset:{dst*4096+k*1024}")
    a("s_waitcnt lgkmcnt(0)")

def g_epi(a, vm):
    a.comment("==== G: final epilogue ====")
    a(f"""
    s_lshl_b32 s88, s50, 12
    v_lshlrev_b32 v1, 4, v0
    v_add_u32 v2, s88, v1
    """)
    for src in range(4):
        for k in range(4):
            a(f"ds_read_b128 {vr(72+16*src+4*k,4)}, v2 offset:{src*16384+k*1024}")
    a(f"""
    s_add_u32 s64, s{P_WS}, {ST}
    s_addc_u32 s65, s{P_WS+1}, 0
    """)
    for i in range(16):
        dd = (i&3) + 8*(i>>2)
        a(f"v_add_u32 v{8+i}, {dd*4096}, v237")
        a(f"global_load_ushort v{24+i}, v{8+i}, s[64:65] sc1")
    a("s_waitcnt lgkmcnt(0)")
    for i in range(16):
        a(f"""
        v_add_f32 v{72+i}, v{72+i}, v{88+i}
        v_add_f32 v{104+i}, v{104+i}, v{120+i}
        v_add_f32 v{72+i}, v{72+i}, v{104+i}
        """)
    a("s_mov_b32 s69, 0xbfb8aa3b")
    st = []
    for p in range(8):
        x = 72+2*p; t = 88+2*p; c = 104+p
        st.append(lines(f"""
        v_cvt_pk_bf16_f32 v{c}, v{x}, v{x+1}
        v_lshlrev_b32 v{x}, 16, v{c}
        v_and_b32 v{x+1}, 0xffff0000, v{c}
        v_mul_f32 v{t}, s69, v{x}
        v_mul_f32 v{t+1}, s69, v{x+1}
        v_exp_f32 v{t}, v{t}
        v_exp_f32 v{t+1}, v{t+1}
        v_add_f32 v{t}, 1.0, v{t}
        v_add_f32 v{t+1}, 1.0, v{t+1}
        v_rcp_f32 v{t}, v{t}
        v_rcp_f32 v{t+1}, v{t+1}
        v_mul_f32 v{x}, v{x}, v{t}
        v_mul_f32 v{x+1}, v{x+1}, v{t+1}
        v_cvt_pk_bf16_f32 v{c}, v{x}, v{x+1}
        v_lshlrev_b32 v{x}, 16, v{c}
        v_and_b32 v{x+1}, 0xffff0000, v{c}"""))
    interleave(a, st)
    a("s_waitcnt vmcnt(0)")
    st = []
    for p in range(8):
        x = 72+2*p; t = 88+2*p; c = 104+p; sv = 24+2*p
        st.append(lines(f"""
        v_lshlrev_b32 v{sv}, 16, v{sv}
        v_lshlrev_b32 v{sv+1}, 16, v{sv+1}
        v_mul_f32 v{x}, v{x}, v{sv}
        v_mul_f32 v{x+1}, v{x+1}, v{sv+1}
        v_cvt_pk_bf16_f32 v{c}, v{x}, v{x+1}
        v_lshlrev_b32 v{x}, 16, v{c}
        v_and_b32 v{x+1}, 0xffff0000, v{c}
        v_lshlrev_b32 v{t}, 16, v{184+p}
        v_and_b32 v{t+1}, 0xffff0000, v{184+p}
        v_add_f32 v{x}, v{x}, v{t}
        v_add_f32 v{x+1}, v{x+1}, v{t+1}
        v_cvt_pk_bf16_f32 v{112+p}, v{x}, v{x+1}"""))
    interleave(a, st)
    for g in range(4):
        a(f"global_store_dwordx2 v236, {vr(112+2*g,2)}, s[{P_OUT}:{P_OUT+1}] offset:{16*g}")

def prog_g(a):
    vm = Vm()
    stamp_begin(a)
    g_ln(a, vm)
    stamp(a)
    nonce_get(a)
    if FINE: stamp(a)
    vm.wait(a, "xqst")
    if FINE: stamp(a)
    a("s_barrier")
    flag_set(a, 0)
    if FINE: stamp(a)
    for s in range(4): g1_dma_issue(a, vm, s)
    stamp(a)
    poll(a, 0, group_sreg=48, nflags=16)
    stamp(a)
    g_gemm1(a, vm)
    stamp(a)
    vm.wait(a, "hst")
    a("s_barrier")
    flag_set(a, 1)
    stamp(a)
    poll(a, 1, group_sreg=90, nflags=16)
    stamp(a)
    g_gemm2(a, vm)
    poll(a, 2, group_sreg=81, nflags=32)
    stamp(a)
    g_epi(a, vm)
    a("s_waitcnt vmcnt(0)")
    stamp(a)
    stamp_flush(a)
    a("s_branch Lend")

X_T = 0; X_KC = 0; X_U = 33280; X_R = 48640; X_RED = 57088
INV2PI = 0x3e22f983
def x_early(a, vm):
    a(f"""
    s_mov_b32 s71, s50
    s_lshl_b32 s72, s4, 6
    s_lshl_b32 s73, s5, 1
    s_add_u32 s72, s72, s73            ; d0
    v_and_b32 v1, 31, v0
    s_lshl_b32 s73, s72, 7
    s_lshl_b32 s74, s71, 5
    s_add_u32 s73, s73, s74
    v_add_u32 v1, s73, v1
    v_lshlrev_b32 v1, 1, v1
    s_lshl_b32 s73, s72, 1
    v_mov_b32 v2, s73
    """)
    for ch in range(2):
        B = 224 + 8*ch
        for i, p in enumerate((P_ARE, P_AIM, P_BRE, P_BIM, P_CRE, P_CIM)):
            a(f"global_load_ushort v{B+i}, v1, s[{p}:{p+1}] offset:{256*ch}")
        a(f"global_load_ushort v{B+6}, v2, s[{P_LDT}:{P_LDT+1}] offset:{2*ch}")
        a(f"global_load_ushort v{B+7}, v2, s[{P_DSK}:{P_DSK+1}] offset:{2*ch}")
        vm.issue(f"par{ch}", 8)
    a(f"""
    v_min_u32 v4, 55, v0
    v_lshlrev_b32 v4, 7, v4
    s_mul_i32 s6, s3, 7168
    v_add_u32 v4, s6, v4
    s_cmp_eq_u32 s50, 0
    s_cselect_b32 s6, s{P_WG}, s{P_WU}
    s_cselect_b32 s7, s{P_WG+1}, s{P_WU+1}
    s_cmp_eq_u32 s50, 2
    s_cselect_b32 s6, s{P_WD}, s6
    s_cselect_b32 s7, s{P_WD+1}, s7
    global_load_dword v243, v4, s[6:7]
    """)
    vm.issue("t1", 1)

def x_touch_w(a, vm):
    for dj in range(2):
        a(f"""
        s_and_b32 s6, s5, 3
        s_lshl_b32 s6, s6, 7
        s_lshl_b32 s7, s50, 5
        s_add_u32 s6, s6, s7
        s_add_u32 s6, s6, {16*dj}
        v_lshrrev_b32 v180, 2, v0
        v_add_u32 v180, s6, v180
        v_mul_u32_u24 v180, 3584, v180
        v_and_b32 v181, 3, v0
        v_mul_u32_u24 v181, 72, v181
        v_and_b32 v181, 0xfc, v181
        v_add_u32 v180, v180, v181
        s_mul_i32 s6, s49, 224
        v_add_u32 v180, s6, v180
        global_load_dword v243, v180, s[{P_WG}:{P_WG+1}]
        global_load_dword v243, v180, s[{P_WU}:{P_WU+1}]
        """)
    vm.issue("tw", 4)

def x_touch_wd(a, vm):
    a(f"""
    s_and_b32 s6, s5, 7
    s_mul_i32 s6, s6, 224
    s_mul_i32 s7, s50, 56
    s_add_u32 s6, s6, s7
    v_min_u32 v180, 55, v0
    v_add_u32 v180, s6, v180
    v_lshlrev_b32 v180, 10, v180
    s_and_b32 s6, s4, 1
    s_lshl_b32 s6, s6, 2
    s_lshr_b32 s7, s5, 3
    s_add_u32 s6, s6, s7
    s_lshl_b32 s6, s6, 7
    v_add_u32 v180, s6, v180
    global_load_dword v243, v180, s[{P_WD}:{P_WD+1}]
    """)
    vm.issue("twd", 1)

def cmul(a, d, x, y):
    a(f"""
    v_pk_mul_f32 {vr(d,2)}, {vr(x,2)}, {vr(y,2)} op_sel_hi:[1,0]
    v_pk_fma_f32 {vr(d,2)}, {vr(x,2)}, {vr(y,2)}, {vr(d,2)} op_sel:[1,1,0] op_sel_hi:[0,1,1] neg_lo:[1,0,0]
    """)

def x_kgen(a, vm, ch, mid=None):
    a.comment(f"==== X: Kgen ch{ch} ====")
    B = 224 + 8*ch
    vm.wait(a, f"par{ch}")
    for r in range(B, B+8):
        a(f"v_lshlrev_b32 v{r}, 16, v{r}")
    a(f"""
    s_mov_b32 s74, 0x3fb8aa3b
    s_mov_b32 s75, 0x32a57060
    v_mul_f32 v15, s74, v{B+6}
    v_fma_f32 v16, v{B+6}, s74, -v15
    v_fma_f32 v16, v{B+6}, s75, v16
    v_exp_f32 v15, v15
    v_mul_f32 v16, 0x3f317218, v16
    v_fma_f32 v15, v15, v16, v15
    """)
    bf16_round(a, 15, 15)
    a(f"""
    v_mul_f32 v8, v15, v{B}
    v_mul_f32 v9, v15, v{B+1}
    v_mul_f32 v10, v15, v{B+2}
    v_mul_f32 v11, v15, v{B+3}
    """)
    cmul(a, 18, B+4, 10)
    a(f"v_mul_f32 v16, s74, v8\n v_mul_f32 v17, 0x{INV2PI:08x}, v9")
    def cexp_lit(d, p, t):
        return lines(f"""
        v_mul_f32 v{t}, {p}, v16
        v_mul_f32 v{t+1}, {p}, v17
        v_exp_f32 v{t}, v{t}
        v_fract_f32 v{t+1}, v{t+1}
        v_cos_f32 v{d}, v{t+1}
        v_sin_f32 v{d+1}, v{t+1}
        s_nop 0
        v_mul_f32 v{d}, v{d}, v{t}
        v_mul_f32 v{d+1}, v{d+1}, v{t}""")
    interleave(a, [cexp_lit(20, "0x41800000", 30), cexp_lit(22, "0x44000000", 32), cexp_lit(24, "0x45000000", 34)])
    a(f"""
    v_mul_f32 v26, v19, v25
    v_fma_f32 v26, v18, v24, -v26
    v_mul_f32 v27, 0x45000000, v16
    v_max_f32 v27, 0, v27
    v_exp_f32 v27, v27
    v_add_f32 v28, abs(v18), abs(v19)
    v_mul_f32 v27, v27, v28
    v_cmp_gt_u32 vcc, 32, v0
    s_nop 1
    v_cndmask_b32 v26, 0, v26, vcc
    v_cndmask_b32 v27, 0, v27, vcc
    """)
    wave_reduce(a, 26)
    wave_reduce(a, 27)
    if ch == 1: a("s_barrier")
    a(f"""
    s_mul_i32 s78, s50, 9360
    s_add_u32 s78, s78, {X_T}
    v_and_b32 v1, 31, v0
    v_lshlrev_b32 v1, 5, v1
    v_add_u32 v1, s78, v1
    ds_write_b128 v1, v[16:19]
    ds_write_b128 v1, v[20:23] offset:16
    v_readlane_b32 s76, v26, 63
    v_readlane_b32 s77, v27, 63
    s_nop 1
    v_mov_b32 v2, s76
    v_mov_b32 v3, s77
    v_mov_b32 v1, s78
    ds_write_b64 v1, v[2:3] offset:{64*144}
    """)
    ACC = 192
    for i in range(32):
        a(f"v_mov_b32 v{ACC+i}, 0")
    a(f"""
    v_and_b32 v1, 15, v0
    v_cvt_f32_u32 v2, v1
    v_mul_f32 v4, 0x42000000, v2
    v_mov_b32 v3, v2
    v_mov_b32 v5, v4
    v_lshrrev_b32 v6, 4, v0
    v_lshlrev_b32 v6, 7, v6
    v_add_u32 v6, s78, v6
    s_waitcnt lgkmcnt(0)
    """)
    HF = 16; GF = 32
    def eblock(ks, e, TB):
        ops = []
        A = ops.append
        h0, h1, g = TB+8, TB+10, TB+12
        er, t0, t1, t2 = TB+20, TB+22, TB+24, TB+26
        A(f"v_pk_mul_f32 {vr(t0,2)}, {vr(TB,2)}, v[2:3]")
        A(f"v_pk_mul_f32 {vr(t1,2)}, {vr(TB,2)}, v[4:5]")
        A(f"v_exp_f32 v{t0}, v{t0}")
        A(f"v_exp_f32 v{t1}, v{t1}")
        A(f"v_fract_f32 v{t0+1}, v{t0+1}")
        A(f"v_fract_f32 v{t1+1}, v{t1+1}")
        A(f"v_cos_f32 v{h0}, v{t0+1}")
        A(f"v_sin_f32 v{h0+1}, v{t0+1}")
        A(f"v_cos_f32 v{er}, v{t1+1}")
        A(f"v_sin_f32 v{er+1}, v{t1+1}")
        A("s_nop 0")
        A(f"v_pk_mul_f32 {vr(h0,2)}, {vr(h0,2)}, {vr(t0,2)} op_sel_hi:[1,0]")
        A(f"v_pk_mul_f32 {vr(er,2)}, {vr(er,2)}, {vr(t1,2)} op_sel_hi:[1,0]")
        def cm(d, x, y):
            A(f"v_pk_mul_f32 {vr(d,2)}, {vr(x,2)}, {vr(y,2)} op_sel_hi:[1,0]")
            A(f"v_pk_fma_f32 {vr(d,2)}, {vr(x,2)}, {vr(y,2)}, {vr(d,2)} op_sel:[1,1,0] op_sel_hi:[0,1,1] neg_lo:[1,0,0]")
        cm(h1, h0, TB+4)
        cm(g, er, TB+2)
        cm(g+2, g, TB+6)
        cm(g+4, g+2, TB+6)
        cm(g+6, g+4, TB+6)
        def sp(hi, lo, x, t, neg):
            n = "-" if neg else ""
            A(f"v_cvt_pk_bf16_f32 v{hi}, v{x}, {n}v{x+1}")
            A(f"v_lshlrev_b32 v{t}, 16, v{hi}")
            A(f"v_and_b32 v{t+1}, 0xffff0000, v{hi}")
            if neg: A(f"v_pk_add_f32 {vr(t,2)}, {vr(x,2)}, {vr(t,2)} neg_lo:[0,1] neg_hi:[1,1]")
            else:   A(f"v_pk_add_f32 {vr(t,2)}, {vr(x,2)}, {vr(t,2)} neg_lo:[0,1] neg_hi:[0,1]")
            A(f"v_cvt_pk_bf16_f32 v{lo}, v{t}, v{t+1}")
        for ct in range(2):
            sp(HF+(ct*2)*4+e, HF+(ct*2+1)*4+e, h0+2*ct, (t0, t1)[ct], True)
        for rt in range(4):
            sp(GF+(rt*2)*4+e, GF+(rt*2+1)*4+e, g+2*rt, (t2, t0, t1, t2)[rt], False)
        return ops
    TBs = (64, 92, 120, 148)
    for ks in range(2):
        for e in range(4):
            off = (16*ks+e)*32
            a(f"ds_read_b128 {vr(TBs[e],4)}, v6 offset:{off}\n ds_read_b128 {vr(TBs[e]+4,4)}, v6 offset:{off+16}")
        a("s_waitcnt lgkmcnt(0)")
        interleave(a, [eblock(ks, e, TBs[e]) for e in range(4)])
        a("s_nop 1")
        for pas in range(3):
            for rt in range(4):
                for ct in range(2):
                    D = ACC+(rt*2+ct)*4
                    hh = HF+(ct*2)*4; hl = HF+(ct*2+1)*4; gh = GF+(rt*2)*4; gl = GF+(rt*2+1)*4
                    x, y = ((hh, gh), (hl, gh), (hh, gl))[pas]
                    a(f"v_mfma_f32_16x16x32_bf16 {vr(D,4)}, {vr(x,4)}, {vr(y,4)}, {vr(D,4)}")
        if ks == 0 and mid: mid()
    a(f"""
    v_and_b32 v1, 15, v0
    v_mul_u32_u24 v1, 144, v1
    v_lshrrev_b32 v4, 4, v0
    v_lshl_add_u32 v1, v4, 4, v1
    v_add_u32 v1, s78, v1
    s_lshl_b32 s73, s71, 6
    v_add_u32 v7, s73, v0
    v_sub_u32 v2, 2047, v7
    """)
    for e in range(8):
        a(f"""
        v_subrev_u32 v8, {256*e}, v2
        v_cvt_f32_u32 v8, v8
        v_cvt_pk_bf16_f32 v8, v8, v8
        v_lshlrev_b32 v8, 16, v8
        v_cvt_u32_f32 v8, v8
        v_lshrrev_b32 v9, 5, v8
        v_and_b32 v10, 31, v8
        v_mul_u32_u24 v9, 144, v9
        v_lshl_add_u32 v{64+e}, v10, 2, v9
        """)
    for rt in range(4):
        for ct in range(2):
            D = ACC+(rt*2+ct)*4
            a(f"ds_write_b128 v1, {vr(D,4)} offset:{rt*16*144 + ct*64}")
    a("v_mov_b32 v72, 0")
    a("s_waitcnt lgkmcnt(0)\n s_barrier")
    for e in range(8):
        for qq in range(4):
            a(f"ds_read_b32 v{16+e*4+qq}, v{64+e} offset:{X_T + qq*9360}")
    for qq in range(4):
        a(f"ds_read_b32 v{48+qq}, v72 offset:{X_T + qq*9360 + 64*144 + 4}")
    a(f"""
    v_lshlrev_b32 v3, 1, v7
    v_add_u32 v3, {X_R + ch*4224}, v3
    v_mov_b32 v56, 0
    v_mov_b32 v57, 0
    v_mov_b32 v58, 0
    v_mov_b32 v59, 0
    v_mov_b32 v4, {X_R + ch*4224}
    ds_write_b128 v4, v[56:59] offset:4096
    ds_write_b128 v4, v[56:59] offset:4112
    ds_write_b128 v4, v[56:59] offset:4128
    ds_write_b128 v4, v[56:59] offset:4144
    s_waitcnt lgkmcnt(4)
    v_add_f32 v48, v48, v49
    v_add_f32 v50, v50, v51
    v_add_f32 v48, v48, v50
    v_frexp_exp_i32_f32 v49, v48
    v_sub_u32 v50, 14, v49
    v_subrev_u32 v51, 14, v49
    v_ldexp_f32 v50, 1.0, v50
    v_ldexp_f32 v{240+ch}, 1.0, v51
    """)
    for e in range(8):
        b = 16+e*4
        a(f"""
        v_add_f32 v{b}, v{b}, v{b+1}
        v_add_f32 v{b+2}, v{b+2}, v{b+3}
        v_add_f32 v{b}, v{b}, v{b+2}
        v_mul_f32 v{b}, v50, v{b}
        v_cvt_f16_f32 v{b}, v{b}
        ds_write_b16 v3, v{b} offset:{512*e}
        """)

def x_uload(a, vm):
    a(f"""
    s_lshl_b32 s73, s50, 6
    v_add_u32 v1, s73, v0
    s_lshr_b32 s75, s72, 3
    s_lshl_b32 s75, s75, 11
    s_and_b32 s74, s72, 7
    s_lshl_b32 s74, s74, 1
    s_add_u32 s75, s75, s74
    s_add_u32 s74, s{P_WS}, s75
    s_addc_u32 s75, s{P_WS+1}, 0
    v_lshrrev_b32 v2, 7, v1
    v_lshlrev_b32 v2, 17, v2
    v_and_b32 v3, 127, v1
    v_lshl_add_u32 v2, v3, 4, v2
    """)
    for i in range(8):
        a(f"global_load_dword v{8+i}, v2, s[74:75] sc1")
        if i < 7: a("v_add_u32 v2, 0x40000, v2")
    vm.issue("u", 8)
    a(f"""
    v_mov_b32 v56, 0
    v_mov_b32 v57, 0
    v_mov_b32 v58, 0
    v_mov_b32 v59, 0
    v_cmp_gt_u32 vcc, 160, v1
    v_lshlrev_b32 v3, 4, v1
    v_add_u32 v3, {X_U}, v3
    s_and_saveexec_b64 s[76:77], vcc
    ds_write_b128 v3, v[56:59]
    ds_write_b128 v3, v[56:59] offset:7680
    s_mov_b64 exec, s[76:77]
    v_lshrrev_b32 v3, 5, v1
    v_mul_u32_u24 v3, 80, v3
    v_and_b32 v4, 31, v1
    v_lshl_add_u32 v3, v4, 1, v3
    v_add_u32 v3, {X_U+2560}, v3
    """)

def x_uwrite(a, vm):
    vm.wait(a, "u")
    for i in range(8):
        a(f"""
        v_lshlrev_b32 v16, 16, v{8+i}
        v_and_b32 v17, 0xffff0000, v{8+i}
        v_cvt_f16_f32 v16, v16
        v_cvt_f16_f32 v17, v17
        ds_write_b16 v3, v16 offset:{i*8*80}
        ds_write_b16 v3, v17 offset:{7680 + i*8*80}
        """)

def kc_build_one(a, vz, ch):
    a(f"""
    v_lshlrev_b32 v5, 4, v{vz}
    v_add_u32 v4, {X_KC}, v5
    v_add_u32 v5, {X_R + ch*4224}, v5
    ds_read_b128 v[64:67], v5
    ds_read_b128 v[68:71], v5 offset:16
    s_waitcnt lgkmcnt(0)
    """)
    for c in range(8):
        sft = 7-c
        dst = 72+4*c
        for k in range(4):
            if sft % 2 == 0: a(f"v_mov_b32 v{dst+k}, v{64+sft//2+k}")
            else: a(f"v_alignbit_b32 v{dst+k}, v{64+sft//2+k+1}, v{64+sft//2+k}, 16")
        a(f"ds_write_b128 v4, {vr(dst,4)} offset:{c*4160}")

def x_kc(a, ch):
    a(f"s_lshl_b32 s74, s71, 6\n v_add_u32 v1, s74, v0")
    kc_build_one(a, 1, ch)
    Ls = a.newlabel("kcskip")
    a(f"""
    s_cmp_lg_u32 s71, 0
    s_cbranch_scc1 {Ls}
    v_cmp_gt_u32 vcc, 3, v0
    s_and_saveexec_b64 s[76:77], vcc
    v_add_u32 v2, 256, v0
    """)
    kc_build_one(a, 2, ch)
    a("s_mov_b64 exec, s[76:77]")
    a.label(Ls)

def x_conv(a, vm, ch):
    a.comment(f"==== X: conv ch{ch} ====")
    ACC0 = 192; ACC1 = 208
    a(f"""
    v_and_b32 v1, 31, v0
    v_lshrrev_b32 v2, 5, v0
    v_and_b32 v3, 7, v1
    v_lshrrev_b32 v4, 3, v1
    v_mul_u32_u24 v3, 4160, v3
    v_sub_u32 v4, v2, v4
    v_add_u32 v4, 255, v4
    v_lshl_add_u32 v3, v4, 4, v3
    s_lshl_b32 s73, s71, 9
    s_add_u32 s73, s73, {64*7+2048}
    s_sub_u32 s74, {X_KC}, s73
    v_add_u32 v5, s74, v3
    v_mul_u32_u24 v6, 80, v1
    v_lshl_add_u32 v6, v2, 4, v6
    s_lshl_b32 s73, s71, 3
    s_sub_u32 s73, 25, s73
    s_mul_i32 s73, s73, 80
    s_add_u32 s73, s73, {X_U + ch*7680}
    v_add_u32 v6, s73, v6
    """)
    for i in range(32):
        a(f"v_mov_b32 v{ACC0+i}, 0")
    def reads(i, base):
        for ks in range(2):
            a(f"ds_read_b128 {vr(base+ks*16,4)}, v5 offset:{64*(7-i)+32*ks+2048}")
            a(f"ds_read_b128 {vr(base+ks*16+4,4)}, v5 offset:{64*(7-i)+32*ks}")
            a(f"ds_read_b128 {vr(base+ks*16+8,4)}, v6 offset:{(7-i)*80+ks*32}")
            a(f"ds_read_b128 {vr(base+ks*16+12,4)}, v6 offset:{(7-i)*80+2560+ks*32}")
    reads(0, 8)
    for i in range(8):
        base = 8 + 32*(i&1)
        if i < 7:
            reads(i+1, 8+32*((i+1)&1))
            a("s_waitcnt lgkmcnt(8)")
        else:
            a("s_waitcnt lgkmcnt(0)")
        for ks in range(2):
            An = base+ks*16; Af = An+4; B0 = An+8; B1 = An+12
            a(f"v_mfma_f32_32x32x16_f16 {vr(ACC0,16)}, {vr(An,4)}, {vr(B0,4)}, {vr(ACC0,16)}")
            a(f"v_mfma_f32_32x32x16_f16 {vr(ACC1,16)}, {vr(An,4)}, {vr(B1,4)}, {vr(ACC1,16)}")
            a(f"v_mfma_f32_32x32x16_f16 {vr(ACC1,16)}, {vr(Af,4)}, {vr(B0,4)}, {vr(ACC1,16)}")
    a(f"""
    v_lshlrev_b32 v1, 4, v0
    s_nop 7
    """)
    for dq in range(4):
        L = a.newlabel("rs")
        a(f"""
        s_cmp_eq_u32 s71, {dq}
        s_cbranch_scc1 {L}
        s_sub_u32 s73, s71, {dq+1}
        s_and_b32 s73, s73, 3
        s_lshl_b32 s73, s73, 11
        s_add_u32 s73, s73, {X_RED + dq*6144}
        v_add_u32 v2, s73, v1
        ds_write_b128 v2, {vr(ACC0+8*dq,4)}
        ds_write_b128 v2, {vr(ACC0+8*dq+4,4)} offset:1024
        """)
        a.label(L)
    Ld = a.newlabel("mvd")
    for dq in range(4):
        L = a.newlabel("mv")
        a(f"s_cmp_lg_u32 s71, {dq}\n s_cbranch_scc1 {L}")
        for i in range(8): a(f"v_mov_b32 v{8+i}, v{ACC0+8*dq+i}")
        a(f"s_branch {Ld}")
        a.label(L)
    a.label(Ld)
    a(f"""
    s_waitcnt lgkmcnt(0)
    s_barrier
    s_mul_i32 s73, s71, 6144
    s_add_u32 s73, s73, {X_RED}
    v_add_u32 v2, s73, v1
    """)
    for sl in range(3):
        a(f"ds_read_b128 {vr(16+8*sl,4)}, v2 offset:{sl*2048}")
        a(f"ds_read_b128 {vr(20+8*sl,4)}, v2 offset:{sl*2048+1024}")
    a(f"""
    v_and_b32 v3, 31, v0
    v_lshrrev_b32 v4, 5, v0
    s_lshr_b32 s73, s71, 1
    s_lshl_b32 s73, s73, 5
    s_and_b32 s74, s71, 1
    s_lshl_b32 s74, s74, 4
    v_add_u32 v5, s73, v3
    v_mul_u32_u24 v6, 80, v5
    v_lshl_add_u32 v6, v4, 3, v6
    s_lshl_b32 s76, s74, 1
    s_add_u32 s75, s76, {X_U + ch*7680 + 2560}
    v_add_u32 v6, s75, v6
    ds_read_b64 v[40:41], v6
    ds_read_b64 v[42:43], v6 offset:16
    v_lshlrev_b32 v5, 5, v5
    v_lshl_add_u32 v5, v4, 2, v5
    v_add_u32 v5, s74, v5
    v_lshlrev_b32 v5, 1, v5
    s_add_u32 s75, s72, {ch}
    s_lshl_b32 s75, s75, 12
    s_add_u32 s74, s{P_WS}, s75
    s_addc_u32 s75, s{P_WS+1}, 0
    s_add_u32 s74, s74, {ST}
    s_addc_u32 s75, s75, 0
    s_waitcnt lgkmcnt(0)
    """)
    DSK = 224 + 8*ch + 7
    for i in range(8):
        a(f"""
        v_add_f32 v{8+i}, v{8+i}, v{16+i}
        v_add_f32 v{24+i}, v{24+i}, v{32+i}
        v_add_f32 v{8+i}, v{8+i}, v{24+i}
        v_mul_f32 v{8+i}, v{240+ch}, v{8+i}
        """)
    st = []
    for p in range(4):
        st.append(lines(f"""
        v_cvt_f32_f16 v{44+2*p}, v{40+p}
        v_cvt_f32_f16_sdwa v{45+2*p}, v{40+p} dst_sel:DWORD dst_unused:UNUSED_PAD src0_sel:WORD_1
        v_mul_f32 v{44+2*p}, v{DSK}, v{44+2*p}
        v_mul_f32 v{45+2*p}, v{DSK}, v{45+2*p}
        v_cvt_pk_bf16_f32 v{52+p}, v{44+2*p}, v{45+2*p}
        v_cvt_pk_bf16_f32 v{56+p}, v{8+2*p}, v{9+2*p}
        v_lshlrev_b32 v{44+2*p}, 16, v{52+p}
        v_and_b32 v{45+2*p}, 0xffff0000, v{52+p}
        v_lshlrev_b32 v{8+2*p}, 16, v{56+p}
        v_and_b32 v{9+2*p}, 0xffff0000, v{56+p}
        v_add_f32 v{8+2*p}, v{8+2*p}, v{44+2*p}
        v_add_f32 v{9+2*p}, v{9+2*p}, v{45+2*p}
        v_cvt_pk_bf16_f32 v{60+p}, v{8+2*p}, v{9+2*p}"""))
    interleave(a, st)
    a(f"""
    global_store_dwordx2 v5, v[60:61], s[74:75] sc1
    global_store_dwordx2 v5, v[62:63], s[74:75] offset:16 sc1
    """)
    vm.issue("sst", 2)

def prog_x(a):
    vm = Vm()
    stamp_begin(a)
    if "xprio" in OPTS: a("s_setprio 2")
    x_early(a, vm)
    if "xskip" in OPTS:
        nonce_get(a)
        a("s_waitcnt vmcnt(0)\n s_barrier")
        flag_set(a, 2)
        a("s_waitcnt vmcnt(0)")
        stamp(a)
        stamp_flush(a)
        return
    x_kgen(a, vm, 0, mid=lambda: x_touch_w(a, vm))
    stamp(a)
    if "xprio3" in OPTS: a("s_setprio 0")
    x_kgen(a, vm, 1, mid=lambda: x_touch_wd(a, vm))
    stamp(a)
    if "xprio2" in OPTS: a("s_setprio 2")
    nonce_get(a)
    a("s_waitcnt lgkmcnt(0)")
    poll(a, 0)
    stamp(a)
    x_uload(a, vm)
    x_kc(a, 0)
    x_uwrite(a, vm)
    a("s_waitcnt lgkmcnt(0)\n s_barrier")
    stamp(a)
    x_conv(a, vm, 0)
    stamp(a)
    a("s_barrier")
    x_kc(a, 1)
    a("s_waitcnt lgkmcnt(0)\n s_barrier")
    x_conv(a, vm, 1)
    stamp(a)
    vm.wait(a, "sst")
    a("s_barrier")
    flag_set(a, 2)
    a("s_waitcnt vmcnt(0)")
    stamp(a)
    stamp_flush(a)

def build():
    a = Asm()
    prologue(a)
    prog_g(a)
    a.label("LprogX")
    prog_x(a)
    a.label("Lend")
    a("s_endpgm")
    hdr = HEADER_COMMENT + f"; @launch grid=(512,1,1) block=(256,1,1) lds={LDS_BYTES}\n"
    txt = hdr + '.amdgcn_target "amdgcn-amd-amdhsa--gfx950"\n.text\n' + kernel_header(KNAME) + a.text()
    txt += '.section .rodata,"a"\n' + kernel_desc(KNAME)
    return txt

if __name__ == "__main__":
    opts = sys.argv[2].split(",") if len(sys.argv) > 2 else []
    OPTS = opts
    if "stamps" in opts: STAMPS = True
    if "fine" in opts: FINE = True
    if "dbgx" in opts: DBGWG[0] = 264
    open(sys.argv[1], "w").write(build())
```

```python
import sys, copy
from asmlib import *

XQ = 0
HQ = 0x200000
ST = 0x900000
FLG = 0xC00000
P_X, P_ARE, P_AIM, P_BRE, P_BIM, P_CRE, P_CIM, P_LDT = 16,18,20,22,24,26,28,30
P_DSK, P_BX, P_WG, P_WU, P_WD, P_OUT, P_DBG, P_WS = 32,34,36,38,40,42,44,46
KNAME = "recurrent_scan__ssm_conv_s4__glu_gated_glu__prompt_kernel"
LDS_BYTES = 81920
OPTS = []
DBGWG = [8]
SLEEP = 4
FINE = False
STAMPS = False
_stamp_n = [0]
def stamp(a, name=""):
    if not STAMPS: return
    i = _stamp_n[0]; _stamp_n[0] += 1
    a(f"s_memtime s[98:99]\n s_waitcnt lgkmcnt(0)\n v_writelane_b32 v255, s98, {i}")
def stamp_begin(a):
    _stamp_n[0] = 0
    if STAMPS: a("s_memrealtime s[98:99]\n s_waitcnt lgkmcnt(0)\n v_writelane_b32 v255, s98, 62")
    stamp(a)
def stamp_flush(a):
    if not STAMPS: return
    if "dbgst" in OPTS:
        L = a.newlabel("dbs")
        a(f"""
        s_cmp_lg_u32 s2, {DBGWG[0]}
        s_cbranch_scc1 {L}
        s_cmp_lg_u32 s50, 0
        s_cbranch_scc1 {L}
        v_readlane_b32 s98, v255, 0
        s_nop 3
        v_subrev_u32 v254, s98, v255
        v_lshlrev_b32 v253, 2, v0
        v_add_u32 v253, 4, v253
        v_cmp_gt_u32 vcc, 15, v0
        v_cmp_lt_u32 s[96:97], 0, v0
        s_nop 1
        s_and_b64 vcc, vcc, s[96:97]
        s_and_saveexec_b64 s[96:97], vcc
        global_store_dword v253, v254, s[{P_DBG}:{P_DBG+1}]
        s_mov_b64 exec, s[96:97]
        """)
        a.label(L)
        return
    a("s_memrealtime s[98:99]\n s_waitcnt lgkmcnt(0)\n v_writelane_b32 v255, s98, 63")
    a(f"v_writelane_b32 v255, 0, {_stamp_n[0]}")
    a(f"""
    s_lshl_b32 s98, s2, 2
    s_add_u32 s98, s98, s50
    s_lshl_b32 s98, s98, 8
    s_add_u32 s98, s98, 0x2000000
    s_add_u32 s96, s{P_WS}, s98
    s_addc_u32 s97, s{P_WS+1}, 0
    v_lshlrev_b32 v254, 2, v0
    global_store_dword v254, v255, s[96:97]
    """)

class Vm:
    def __init__(self): self.ops = []
    def issue(self, tag, n=1):
        for _ in range(n): self.ops.append(tag)
    def wait(self, a, tags):
        if isinstance(tags, str): tags = [tags]
        last = -1
        for i, t in enumerate(self.ops):
            if t in tags: last = i
        assert last >= 0, tags
        n = len(self.ops) - 1 - last
        a(f"s_waitcnt vmcnt({min(n,63)})")

def lgk(n): return f"s_waitcnt lgkmcnt({min(n,15)})"

def wave_reduce(a, v, op="add"):
    for sh in (1,2,4,8):
        a(f"s_nop 1\n v_{op}_f32_dpp v{v}, v{v}, v{v} row_shr:{sh} row_mask:0xf bank_mask:0xf bound_ctrl:0")
    a(f"s_nop 1\n v_{op}_f32_dpp v{v}, v{v}, v{v} row_bcast:15 row_mask:0xa bank_mask:0xf")
    a(f"s_nop 1\n v_{op}_f32_dpp v{v}, v{v}, v{v} row_bcast:31 row_mask:0xc bank_mask:0xf")
    a("s_nop 1")
def bf16_round(a, dst, src):
    a(f"v_cvt_pk_bf16_f32 v{dst}, v{src}, v{src}\n v_lshlrev_b32 v{dst}, 16, v{dst}")
def make_srd(a, s, ptr, nbytes):
    a(f"""
    s_mov_b32 s{s}, s{ptr}
    s_and_b32 s{s+1}, s{ptr+1}, 0xffff
    s_mov_b32 s{s+2}, {nbytes}
    s_mov_b32 s{s+3}, 0x00020000
    """)
def interleave(a, streams):
    n = max(len(s) for s in streams)
    for k in range(n):
        for s in streams:
            if k < len(s): a(s[k])
def lines(s): return [l.strip() for l in s.strip("\n").split("\n") if l.strip()]

PT = (246, 248, 250, 252)
def nonce_publish(a):
    L = a.newlabel("np")
    a(f"""
    s_or_b32 s6, s2, s50
    s_cmp_lg_u32 s6, 0
    s_cbranch_scc1 {L}
    s_memrealtime s[6:7]
    s_waitcnt lgkmcnt(0)
    s_or_b32 s6, s6, 1
    v_mov_b32 v244, 0
    v_mov_b32 v246, s6
    v_mov_b32 v247, s7
    s_mov_b64 s[6:7], exec
    s_mov_b64 exec, 1
    global_store_dwordx2 v244, v[246:247], s[{P_DBG}:{P_DBG+1}] sc1
    s_mov_b64 exec, s[6:7]
    """)
    a.label(L)
def nonce_get(a):
    L = a.newlabel("ng"); Lp = a.newlabel("ngp"); Ld = a.newlabel("ngd")
    a(f"""
    s_cmp_lg_u32 s50, 0
    s_cbranch_scc1 {L}
    v_mov_b32 v244, 0
    s_mov_b32 s6, 0
    """)
    a.label(Lp)
    a(f"""
    global_load_dwordx2 v[246:247], v244, s[{P_DBG}:{P_DBG+1}] sc1
    s_waitcnt vmcnt(0)
    v_cmp_eq_u32 vcc, 0, v246
    s_add_u32 s6, s6, 1
    s_cmp_gt_u32 s6, 200000
    s_cbranch_scc1 {Ld}
    s_cbranch_vccz {Ld}
    s_sleep 2
    s_branch {Lp}
    """)
    a.label(Ld)
    a("v_readfirstlane_b32 s8, v246\n v_readfirstlane_b32 s9, v247")
    a.label(L)
def flag_set(a, phase):
    L = a.newlabel("fs")
    a(f"s_cmp_lg_u32 s50, 0\n s_cbranch_scc1 {L}")
    if phase != 2: a("s_lshl_b32 s6, s48, 4\n s_add_u32 s6, s6, s49")
    else: a("s_lshl_b32 s6, s4, 5\n s_add_u32 s6, s6, s5")
    a(f"""
    s_lshl_b32 s6, s6, 3
    s_add_u32 s6, s6, {FLG + phase*2048}
    v_mov_b32 v244, s6
    v_mov_b32 v246, s8
    v_mov_b32 v247, s9
    s_mov_b64 s[6:7], exec
    s_mov_b64 exec, 1
    global_store_dwordx2 v244, v[246:247], s[{P_WS}:{P_WS+1}] sc1
    s_mov_b64 exec, s[6:7]
    """)
    a.label(L)
def poll(a, phase, group_sreg=None, nflags=256):
    L = a.newlabel("pl"); Lp = a.newlabel("plp"); Ld = a.newlabel("pld")
    a(f"s_cmp_lg_u32 s50, 0\n s_cbranch_scc1 {L}")
    if group_sreg is None:
        a(f"v_lshlrev_b32 v244, 3, v0\n v_add_u32 v244, {FLG + phase*2048}, v244")
        nl = 4
    else:
        a(f"""
        v_and_b32 v244, {nflags-1}, v0
        v_lshlrev_b32 v244, 3, v244
        s_mul_i32 s6, s{group_sreg}, {nflags*8}
        s_add_u32 s6, s6, {FLG + phase*2048}
        v_add_u32 v244, s6, v244
        """)
        nl = 1
    a("s_mov_b32 s6, 0")
    a.label(Lp)
    for k in range(nl):
        a(f"global_load_dwordx2 v[{PT[k]}:{PT[k]+1}], v244, s[{P_WS}:{P_WS+1}] offset:{k*512} sc1")
    a("s_waitcnt vmcnt(0)")
    for k in range(nl):
        a(f"v_xor_b32 v{PT[k]}, s8, v{PT[k]}\n v_xor_b32 v{PT[k]+1}, s9, v{PT[k]+1}")
    for k in range(nl):
        if k > 0: a(f"v_or_b32 v{PT[0]}, v{PT[0]}, v{PT[k]}")
        a(f"v_or_b32 v{PT[0]}, v{PT[0]}, v{PT[k]+1}")
    a(f"""
    v_cmp_ne_u32 vcc, 0, v{PT[0]}
    s_add_u32 s6, s6, 1
    s_cmp_gt_u32 s6, 200000
    s_cbranch_scc1 {Ld}
    s_cbranch_vccz {Ld}
    s_sleep {SLEEP}
    s_branch {Lp}
    """)
    a.label(Ld)
    a.label(L)
    a("s_barrier")

def prologue(a):
    a(f"""
    s_cmp_ge_u32 s2, 512
    s_cbranch_scc1 Lend
    s_load_dwordx16 s[16:31], s[0:1], 0
    s_load_dwordx16 s[32:47], s[0:1], 64
    v_lshrrev_b32 v1, 6, v0
    v_and_b32 v0, 63, v0
    v_readfirstlane_b32 s50, v1
    s_and_b32 s3, s2, 255
    s_and_b32 s4, s3, 7
    s_lshr_b32 s5, s3, 3
    s_lshr_b32 s6, s4, 1
    s_lshl_b32 s6, s6, 2
    s_and_b32 s7, s5, 3
    s_add_u32 s48, s6, s7
    s_and_b32 s6, s4, 1
    s_lshl_b32 s6, s6, 3
    s_lshr_b32 s7, s5, 2
    s_add_u32 s49, s6, s7
    s_waitcnt lgkmcnt(0)
    s_cmp_ge_u32 s2, 256
    s_cbranch_scc1 LprogX
    """)

G1_R = 10
def g_ln(a, vm):
    a.comment("==== G: LN (2 rows per wave) ====")
    a(f"""
    s_lshl_b32 s51, s48, 7
    s_lshl_b32 s52, s49, 3
    s_add_u32 s91, s51, s52
    s_lshl_b32 s51, s50, 1
    s_add_u32 s51, s51, s91
    s_lshl_b32 s52, s51, 10
    s_add_u32 s92, s{P_X}, s52
    s_addc_u32 s93, s{P_X+1}, 0
    v_lshlrev_b32 v3, 4, v0
    global_load_dwordx4 v[4:7], v3, s[92:93]
    global_load_dwordx4 v[44:47], v3, s[92:93] offset:1024
    """)
    vm.issue("x", 2)
    nonce_publish(a)
    g1_dma_setup(a)
    vm.wait(a, "x")
    def row(B, sreg):
        o = []
        for i in range(4):
            o += [f"v_lshlrev_b32 v{B+4+2*i}, 16, v{B+i}", f"v_and_b32 v{B+5+2*i}, 0xffff0000, v{B+i}"]
        o += lines(f"""
        v_add_f32 v{B+12}, v{B+4}, v{B+5}
        v_add_f32 v{B+13}, v{B+6}, v{B+7}
        v_add_f32 v{B+14}, v{B+8}, v{B+9}
        v_add_f32 v{B+15}, v{B+10}, v{B+11}
        v_add_f32 v{B+12}, v{B+12}, v{B+13}
        v_add_f32 v{B+14}, v{B+14}, v{B+15}
        v_add_f32 v{B+12}, v{B+12}, v{B+14}""")
        def red(v):
            r = []
            for sh in (1,2,4,8):
                r += ["s_nop 0", f"v_add_f32_dpp v{v}, v{v}, v{v} row_shr:{sh} row_mask:0xf bank_mask:0xf bound_ctrl:0"]
            r += ["s_nop 0", f"v_add_f32_dpp v{v}, v{v}, v{v} row_bcast:15 row_mask:0xa bank_mask:0xf"]
            r += ["s_nop 0", f"v_add_f32_dpp v{v}, v{v}, v{v} row_bcast:31 row_mask:0xc bank_mask:0xf", "s_nop 0"]
            return r
        o += red(B+12)
        o += [f"v_readlane_b32 s{sreg}, v{B+12}, 63", "s_nop 1", f"v_mov_b32 v{B+13}, s{sreg}", f"v_mul_f32 v{B+13}, 0x3b000000, v{B+13}"]
        for i in range(8): o.append(f"v_sub_f32 v{B+16+i}, v{B+4+i}, v{B+13}")
        o.append(f"v_mul_f32 v{B+12}, v{B+16}, v{B+16}")
        for i in range(1,8): o.append(f"v_fmac_f32 v{B+12}, v{B+16+i}, v{B+16+i}")
        o += red(B+12)
        o += [f"v_readlane_b32 s{sreg+1}, v{B+12}, 63", "s_nop 1", f"v_mov_b32 v{B+14}, s{sreg+1}", f"v_mul_f32 v{B+14}, 0x3b000000, v{B+14}"]
        def rnd(v): return [f"v_cvt_pk_bf16_f32 v{v}, v{v}, v{v}", f"v_lshlrev_b32 v{v}, 16, v{v}"]
        o += rnd(B+14) + [f"v_add_f32 v{B+14}, 0x3727c5ac, v{B+14}"] + rnd(B+14) + [f"v_sqrt_f32 v{B+14}, v{B+14}", "s_nop 0"] + rnd(B+14)
        o += [f"v_rcp_f32 v{B+15}, v{B+14}"] + rnd(B+13)
        for i in range(8): o.append(f"v_sub_f32 v{B+16+i}, v{B+4+i}, v{B+13}")
        for i in range(4): o.append(f"v_cvt_pk_bf16_f32 v{B+24+i}, v{B+16+2*i}, v{B+17+2*i}")
        for i in range(4): o += [f"v_lshlrev_b32 v{B+16+2*i}, 16, v{B+24+i}", f"v_and_b32 v{B+17+2*i}, 0xffff0000, v{B+24+i}"]
        for i in range(8):
            o += [f"v_mul_f32 v{B+4+i}, v{B+16+i}, v{B+15}", f"v_fma_f32 v{B+28+i}, -v{B+4+i}, v{B+14}, v{B+16+i}", f"v_fma_f32 v{B+4+i}, v{B+28+i}, v{B+15}, v{B+4+i}"]
        for i in range(4): o.append(f"v_cvt_pk_bf16_f32 v{B+i}, v{B+4+2*i}, v{B+5+2*i}")
        return o
    interleave(a, [row(4, 94), row(44, 96)])
    LN_SCR = 65536
    a(f"""
    s_mul_i32 s94, s50, 2080
    s_add_u32 s94, s94, {LN_SCR}
    v_lshlrev_b32 v3, 4, v0
    v_add_u32 v3, s94, v3
    ds_write_b128 v3, v[4:7]
    ds_write_b128 v3, v[44:47] offset:1040
    v_and_b32 v8, 7, v0
    v_lshrrev_b32 v9, 3, v0
    s_lshl_b32 s94, s50, 4
    v_add_u32 v9, s94, v9             ; group g = 16w + (lane>>3)  (+8 second)
    v_mul_u32_u24 v10, 1040, v8
    v_lshl_add_u32 v10, v9, 4, v10
    v_add_u32 v10, {LN_SCR}, v10
    s_waitcnt lgkmcnt(0)
    s_barrier
    ds_read_b128 v[4:7], v10
    ds_read_b128 v[12:15], v10 offset:128
    v_lshlrev_b32 v11, 11, v9
    s_lshl_b32 s94, s49, 3
    v_add_u32 v12+0, s94, v8
    """.replace("v12+0", "v16"))
    a(f"""
    v_lshl_add_u32 v11, v16, 4, v11
    s_lshl_b32 s94, s48, 17
    s_add_u32 s92, s{P_WS}, s94
    s_addc_u32 s93, s{P_WS+1}, 0
    v_add_u32 v17, 16384, v11
    s_waitcnt lgkmcnt(0)
    global_store_dwordx4 v11, v[4:7], s[92:93] sc1
    global_store_dwordx4 v17, v[12:15], s[92:93] sc1
    """)
    vm.issue("xqst", 2)

def g1_dma_setup(a):
    make_srd(a, 52, P_WG, 512*3584)
    make_srd(a, 56, P_WU, 512*3584)
    a("""
    v_lshrrev_b32 v242, 3, v0          ; r_local
    v_bfe_u32 v243, v0, 1, 2           ; chunk'
    v_and_b32 v238, 1, v0
    v_bfe_u32 v239, v242, 1, 1
    v_xor_b32 v239, v243, v239
    v_xor_b32 v243, 2, v239
    v_mul_u32_u24 v242, 3584, v242
    v_lshl_add_u32 v242, v238, 4, v242
    v_lshl_add_u32 v240, v239, 5, v242
    v_lshl_add_u32 v241, v243, 5, v242
    s_mul_i32 s60, s49, 224
    s_mul_i32 s61, s50, 28672
    s_add_u32 s60, s60, s61
    s_lshl_b32 s62, s50, 10
    """)
def g1_dma_ops(stage):
    slot = stage % G1_R
    so = (stage % 16)*32*3584 + (stage // 16)*128
    return [f"""s_add_u32 s61, s60, {so}
            s_add_u32 m0, s62, {slot*8192}
            s_nop 0
            buffer_load_dwordx4 v240, s[52:55], s61 offen lds""",
            f"""s_add_u32 m0, s62, {slot*8192 + 4096}
            s_nop 0
            buffer_load_dwordx4 v241, s[56:59], s61 offen lds"""]
def g1_dma_issue(a, vm, stage):
    for o in g1_dma_ops(stage): a(o)
    vm.issue(f"w{stage}", 2)

def g_gemm1(a, vm):
    a.comment("==== G: GEMM1 (F-split) ====")
    BF = 8; ACC = 136; AX = 200; AY = 216; AD = 232
    AT = [2,3,4,5]
    a(f"""
    s_lshl_b32 s63, s50, 5
    s_lshl_b32 s64, s48, 7
    s_add_u32 s63, s63, s64
    s_lshl_b32 s64, s50, 5
    v_and_b32 v1, 31, v0
    v_add_u32 v1, s64, v1
    v_lshrrev_b32 v2, 5, v0
    v_lshlrev_b32 v2, 11, v2
    v_lshl_add_u32 v1, v1, 4, v2
    s_lshl_b32 s65, s48, 17
    s_add_u32 s64, s{P_WS}, s65
    s_addc_u32 s65, s{P_WS+1}, 0
    """)
    def bload(ks):
        a(f"global_load_dwordx4 {vr(BF+4*ks,4)}, v1, s[64:65]")
        a("s_add_u32 s64, s64, 4096\n s_addc_u32 s65, s65, 0")
        vm.issue(f"b{ks}")
    PF = 12
    for ks in range(PF): bload(ks)
    a(f"""
    v_lshrrev_b32 v2, 4, v0
    v_and_b32 v3, 1, v2                ; region
    v_lshrrev_b32 v2, 1, v2            ; khalf
    v_bfe_u32 v4, v0, 2, 2             ; r4
    v_and_b32 v5, 3, v0                ; cq
    v_lshrrev_b32 v6, 1, v4
    v_lshl_add_u32 v6, v3, 1, v6       ; e = (r4>>1) | region<<1
    v_lshlrev_b32 v6, 5, v6
    v_lshl_add_u32 v7, v2, 3, v4
    v_lshlrev_b32 v7, 7, v7            ; (8khalf + r4)*128
    v_lshl_add_u32 v7, v3, 12, v7
    v_lshl_add_u32 v7, v5, 3, v7
    """)
    for t in range(4):
        a(f"v_xor_b32 v{AD+t}, {t*32}, v6\n v_add_u32 v{AD+t}, v{AD+t}, v7")
    a(f"""
    s_and_b32 s66, s63, 63
    v_and_b32 v6, 31, v0
    v_add_u32 v6, s66, v6
    v_lshrrev_b32 v7, 5, v0
    s_mul_i32 s68, s49, 14
    v_add_u32 v7, s68, v7
    v_lshlrev_b32 v7, 10, v7
    v_lshl_add_u32 v6, v6, 4, v7
    s_lshr_b32 s68, s63, 6
    s_mul_i32 s68, s68, 229376
    s_add_u32 s68, s68, {HQ}
    s_add_u32 s88, s{P_WS}, s68
    s_addc_u32 s89, s{P_WS+1}, 0
    s_mov_b32 s69, 0xbfb8aa3b
    """)
    def rd(k2, dst, t):
        return [f"ds_read_b64_tr_b16 {vr(dst+4*t+2*h2,2)}, v{AT[t]} offset:{k2*2048+h2*512}" for h2 in range(2)]
    def mf(src, ks, t):
        return f"v_mfma_f32_32x32x16_bf16 {vr(ACC+16*t,16)}, {vr(src+4*t,4)}, {vr(BF+4*ks,4)}, {vr(ACC+16*t,16)}"
    def ntiles(stage): return 4 if stage < 16 else 3
    def epilogue(nt, tag):
        for t in range(nt):
            A = ACC+16*t
            R = (236, 248)[t & 1]
            st = []
            for p in range(4):
                g0 = A+2*p; u0 = A+8+2*p
                b = 200 + 8*p
                st.append(lines(f"""
                v_cvt_pk_bf16_f32 v{b}, v{g0}, v{g0+1}
                v_cvt_pk_bf16_f32 v{b+1}, v{u0}, v{u0+1}
                v_lshlrev_b32 v{b+2}, 16, v{b}
                v_and_b32 v{b+3}, 0xffff0000, v{b}
                v_mul_f32 v{b+2}, s69, v{b+2}
                v_mul_f32 v{b+3}, s69, v{b+3}
                v_exp_f32 v{b+2}, v{b+2}
                v_exp_f32 v{b+3}, v{b+3}
                v_lshlrev_b32 v{b+4}, 16, v{b+1}
                v_and_b32 v{b+5}, 0xffff0000, v{b+1}
                v_add_f32 v{b+2}, 1.0, v{b+2}
                v_add_f32 v{b+3}, 1.0, v{b+3}
                v_rcp_f32 v{b+2}, v{b+2}
                v_rcp_f32 v{b+3}, v{b+3}
                v_cvt_pk_bf16_f32 v{b+6}, v{b+2}, v{b+3}
                v_lshlrev_b32 v{b+2}, 16, v{b+6}
                v_and_b32 v{b+3}, 0xffff0000, v{b+6}
                v_pk_mul_f32 {vr(b+2,2)}, {vr(b+2,2)}, {vr(b+4,2)}
                v_cvt_pk_bf16_f32 v{R+p}, v{b+2}, v{b+3}"""))
            interleave(a, st)
            a(f"""
            s_nop 1
            v_permlane32_swap_b32 v{R}, v{R+2}
            v_permlane32_swap_b32 v{R+1}, v{R+3}
            global_store_dwordx4 v6, {vr(R,4)}, s[88:89] sc1
            s_add_u32 s88, s88, 2048
            s_addc_u32 s89, s89, 0
            """)
            vm.issue(tag)
    NSG = 32
    for pas in range(2):
        nt = 4 if pas == 0 else 3
        s0 = 16*pas
        for i in range(16*nt): a(f"v_mov_b32 v{ACC+i}, 0")
        vm.wait(a, [f"w{s0}", "b0", "b1"] if pas == 0 else [f"w{s0}"])
        a("s_barrier")
        for t in range(nt): a(f"v_add_u32 v{AT[t]}, {(s0 % G1_R)*8192}, v{AD+t}")
        if pas == 1: g1_dma_issue(a, vm, 24)
        for t in range(nt):
            for l in rd(0, AX, t): a(l)
        a("s_waitcnt lgkmcnt(4)")
        for t in range(nt):
            for l in rd(1, AY, t): a(l)
        for sl in range(16):
            s = s0 + sl
            last = (sl == 15)
            if not last:
                tags = [f"w{s+1}"]
                if pas == 0: tags += [f"b{2*sl+2}", f"b{2*sl+1}"]
                if pas == 1 and sl == 5: tags.append("hsta")
                vm.wait(a, tags)
                a("s_barrier")
                if pas == 1 and sl == 5: flag_set(a, 1)
                if sl % 8 == 7: stamp(a)
                for t in range(nt): a(f"v_add_u32 v{AT[t]}, {((s+1) % G1_R)*8192}, v{AD+t}")
            extra = []
            nd = s + G1_R - 1
            if nd < NSG and nd >= G1_R - 1 + 0 and not (last):
                extra += [("dma", o, nd) for o in g1_dma_ops(nd)]
            if pas == 0:
                for ks in (2*sl+PF, 2*sl+PF+1):
                    if ks < 32: extra.append(("b", ks, None))
            for half, buf in ((0, AX), (1, AY)):
                for t in range(nt):
                    if not last: a(lgk(4*nt - 4))
                    else: a(lgk(2*(nt-1-t) + (2*nt if half == 0 else 0)))
                    a(mf(buf, 2*sl+half, t))
                    if not last:
                        for l in rd(half, buf, t): a(l)
                    if extra:
                        kind, o, tg = extra.pop(0)
                        if kind == "dma": a(o); vm.issue(f"w{tg}")
                        else: bload(o)
            assert not extra
        stamp(a)
        if pas == 1:
            a("s_barrier")
            g2_setup(a)
            for k in range(8): g2_dma_issue(a, vm, k)
        else:
            a("s_nop 7\n s_nop 3")
        epilogue(nt, "hsta" if pas == 0 else "hstb")

G2_RK = 10
def g2_korder():
    ks = []
    for j in range(4):
        for i in range(4): ks.append((j, 16*i))
    for j in range(4):
        for i in range(3): ks.append((j, 64+16*i))
    return ks
KORD = g2_korder()
def g2_setup(a):
    make_srd(a, 52, P_WD, 1792*1024)
    a("""
    s_lshr_b32 s80, s4, 1
    s_lshl_b32 s80, s80, 3
    s_and_b32 s81, s5, 7
    s_add_u32 s80, s80, s81
    s_and_b32 s81, s4, 1
    s_lshl_b32 s81, s81, 2
    s_lshr_b32 s82, s5, 3
    s_add_u32 s81, s81, s82
    s_lshr_b32 s90, s80, 1
    v_lshrrev_b32 v242, 3, v0
    v_bfe_u32 v243, v0, 1, 2
    v_and_b32 v238, 1, v0
    v_and_b32 v239, 2, v242
    v_xor_b32 v243, v243, v239
    v_lshlrev_b32 v242, 10, v242
    v_lshl_add_u32 v242, v238, 4, v242
    v_lshl_add_u32 v240, v243, 5, v242
    s_mul_i32 s84, s50, 458752
    s_lshl_b32 s85, s81, 7
    s_add_u32 s84, s84, s85
    s_mul_i32 s85, s50, 20480
    """)
def g2_dma_ops(k):
    j, fl = KORD[k]
    row = 112*j + fl
    slot = k % G2_RK
    return [f"""s_add_u32 s86, s84, {(row + 8*jj)*1024}
            s_add_u32 m0, s85, {slot*2048 + jj*1024}
            s_nop 0
            buffer_load_dwordx4 v240, s[52:55], s86 offen lds""" for jj in range(2)]
def g2_dma_issue(a, vm, k):
    for o in g2_dma_ops(k): a(o)
    vm.issue(f"d{k}", 2)

def g_gemm2(a, vm):
    a.comment("==== G: GEMM2 ====")
    ACC = 8; AB = 72; NA = 4; BF = 104; NBK = 10; AD = 232; AT = 234
    NK = 28
    a(f"""
    v_and_b32 v1, 31, v0
    v_lshrrev_b32 v2, 5, v0
    s_mul_i32 s88, s50, 56
    v_add_u32 v2, s88, v2
    v_lshlrev_b32 v2, 10, v2
    v_lshl_add_u32 v1, v1, 4, v2
    s_mul_i32 s88, s80, 229376
    s_add_u32 s88, s88, {HQ}
    s_add_u32 s92, s{P_WS}, s88
    s_addc_u32 s93, s{P_WS+1}, 0
    """)
    def bload(k):
        j, fl = KORD[k]
        off = (14*j + fl//8)*1024
        b = BF + 8*(k % NBK)
        a(f"s_add_u32 s66, s92, {off}\n s_addc_u32 s67, s93, 0")
        a(f"global_load_dwordx4 {vr(b,4)}, v1, s[66:67]")
        a(f"global_load_dwordx4 {vr(b+4,4)}, v1, s[66:67] offset:512")
        vm.issue(f"c{k}", 2)
    PF = NBK - 2
    for k in range(PF): bload(k)
    a(f"""
    s_and_b32 s82, s50, 1
    s_lshr_b32 s83, s50, 1
    s_lshl_b32 s87, s80, 6
    s_lshl_b32 s88, s82, 5
    s_add_u32 s87, s87, s88
    v_and_b32 v3, 31, v0
    v_add_u32 v3, s87, v3
    v_lshrrev_b32 v4, 5, v0
    s_lshl_b32 s88, s83, 5
    s_lshl_b32 s89, s81, 6
    s_add_u32 s88, s88, s89
    v_lshlrev_b32 v4, 2, v4
    v_add_u32 v4, s88, v4
    v_lshlrev_b32 v236, 10, v3
    v_lshl_add_u32 v236, v4, 1, v236
    v_lshlrev_b32 v237, 12, v4
    v_lshl_add_u32 v237, v3, 1, v237
    """)
    for g in range(4):
        a(f"global_load_dwordx2 {vr(184+2*g,2)}, v236, s[{P_X}:{P_X+1}] offset:{16*g}")
    vm.issue("xe", 4)
    a(f"""
    v_lshrrev_b32 v2, 4, v0
    v_and_b32 v3, 1, v2
    v_lshrrev_b32 v2, 1, v2
    v_bfe_u32 v4, v0, 2, 2
    v_and_b32 v5, 3, v0
    v_and_b32 v6, 2, v4
    v_lshl_add_u32 v7, v2, 3, v4
    v_lshlrev_b32 v7, 7, v7
    v_lshl_add_u32 v7, v5, 3, v7
    v_add_u32 v7, s85, v7
    """)
    for mt in range(2):
        a(f"""
        v_add_u32 v2, {2*mt}, v3
        v_xor_b32 v2, v2, v6
        v_lshl_add_u32 v{AD+mt}, v2, 5, v7
        """)
    for i in range(64):
        a(f"v_mov_b32 v{ACC+i}, 0")
    def rd(k, mt):
        dst = AB + 8*(k % NA) + 4*mt
        return [f"ds_read_b64_tr_b16 {vr(dst+2*h2,2)}, v{AD+mt} offset:{(k % G2_RK)*2048+h2*512}" for h2 in range(2)]
    vm.wait(a, ["d0", "d1"])
    for k in range(2):
        for mt in range(2):
            for l in rd(k, mt): a(l)
    nd = 8
    for k in range(NK):
        if k == 8:
            poll(a, 3, group_sreg=90, nflags=16)
        tags = [f"c{k}"]
        if k+2 < NK: tags.append(f"d{k+2}")
        vm.wait(a, tags)
        if k % 8 == 7: stamp(a)
        b = BF + 8*(k % NBK)
        fill = []
        if k+2 < NK: fill = [rd(k+2, 0), rd(k+2, 1)]
        post = []
        if nd < NK and nd <= k + 7:
            post += [("dma", o) for o in g2_dma_ops(nd)]
        if k + PF < NK: post.append(("b", k+PF))
        rem_new = 0
        for mt in range(2):
            later = (1-mt)*2 + (4 if k+1 < NK else 0) + rem_new
            a(lgk(later))
            for nt in range(2):
                D = ACC + 16*(2*mt+nt)
                a(f"v_mfma_f32_32x32x16_bf16 {vr(D,16)}, {vr(AB+8*(k%NA)+4*mt,4)}, {vr(b+4*nt,4)}, {vr(D,16)}")
                if nt == 0 and fill:
                    for l in fill.pop(0): a(l)
                    rem_new += 2
                elif post:
                    kind, o = post.pop(0)
                    if kind == "dma": a(o); vm.issue(f"d{nd}")
                    else: bload(o)
        while post:
            kind, o = post.pop(0)
            if kind == "dma": a(o); vm.issue(f"d{nd}")
            else: bload(o)
        if nd < NK and nd <= k + 7: nd += 1
    stamp(a)
    a("s_barrier\n s_nop 7")
    a(f"""
    s_lshl_b32 s88, s50, 14
    v_lshlrev_b32 v1, 4, v0
    v_add_u32 v2, s88, v1
    """)
    for dst in range(4):
        for k in range(4):
            a(f"ds_write_b128 v2, {vr(ACC+16*dst+4*k,4)} offset:{dst*4096+k*1024}")
    a("s_waitcnt lgkmcnt(0)")

def g_epi(a, vm):
    a.comment("==== G: final epilogue ====")
    a(f"""
    s_lshl_b32 s88, s50, 12
    v_lshlrev_b32 v1, 4, v0
    v_add_u32 v2, s88, v1
    """)
    for src in range(4):
        for k in range(4):
            a(f"ds_read_b128 {vr(72+16*src+4*k,4)}, v2 offset:{src*16384+k*1024}")
    a(f"""
    s_add_u32 s64, s{P_WS}, {ST}
    s_addc_u32 s65, s{P_WS+1}, 0
    """)
    for i in range(16):
        dd = (i&3) + 8*(i>>2)
        a(f"v_add_u32 v{8+i}, {dd*4096}, v237")
        a(f"global_load_ushort v{24+i}, v{8+i}, s[64:65] sc1")
    a("s_waitcnt lgkmcnt(0)")
    for i in range(16):
        a(f"""
        v_add_f32 v{72+i}, v{72+i}, v{88+i}
        v_add_f32 v{104+i}, v{104+i}, v{120+i}
        v_add_f32 v{72+i}, v{72+i}, v{104+i}
        """)
    a("s_mov_b32 s69, 0xbfb8aa3b")
    st = []
    for p in range(8):
        x = 72+2*p; t = 88+2*p; c = 104+p
        st.append(lines(f"""
        v_cvt_pk_bf16_f32 v{c}, v{x}, v{x+1}
        v_lshlrev_b32 v{x}, 16, v{c}
        v_and_b32 v{x+1}, 0xffff0000, v{c}
        v_mul_f32 v{t}, s69, v{x}
        v_mul_f32 v{t+1}, s69, v{x+1}
        v_exp_f32 v{t}, v{t}
        v_exp_f32 v{t+1}, v{t+1}
        v_add_f32 v{t}, 1.0, v{t}
        v_add_f32 v{t+1}, 1.0, v{t+1}
        v_rcp_f32 v{t}, v{t}
        v_rcp_f32 v{t+1}, v{t+1}
        v_mul_f32 v{x}, v{x}, v{t}
        v_mul_f32 v{x+1}, v{x+1}, v{t+1}
        v_cvt_pk_bf16_f32 v{c}, v{x}, v{x+1}
        v_lshlrev_b32 v{x}, 16, v{c}
        v_and_b32 v{x+1}, 0xffff0000, v{c}"""))
    interleave(a, st)
    a("s_waitcnt vmcnt(0)")
    st = []
    for p in range(8):
        x = 72+2*p; t = 88+2*p; c = 104+p; sv = 24+2*p
        st.append(lines(f"""
        v_lshlrev_b32 v{sv}, 16, v{sv}
        v_lshlrev_b32 v{sv+1}, 16, v{sv+1}
        v_mul_f32 v{x}, v{x}, v{sv}
        v_mul_f32 v{x+1}, v{x+1}, v{sv+1}
        v_cvt_pk_bf16_f32 v{c}, v{x}, v{x+1}
        v_lshlrev_b32 v{x}, 16, v{c}
        v_and_b32 v{x+1}, 0xffff0000, v{c}
        v_lshlrev_b32 v{t}, 16, v{184+p}
        v_and_b32 v{t+1}, 0xffff0000, v{184+p}
        v_add_f32 v{x}, v{x}, v{t}
        v_add_f32 v{x+1}, v{x+1}, v{t+1}
        v_cvt_pk_bf16_f32 v{112+p}, v{x}, v{x+1}"""))
    interleave(a, st)
    for g in range(4):
        a(f"global_store_dwordx2 v236, {vr(112+2*g,2)}, s[{P_OUT}:{P_OUT+1}] offset:{16*g}")

def prog_g(a):
    vm = Vm()
    stamp_begin(a)
    g_ln(a, vm)
    stamp(a)
    nonce_get(a)
    if FINE: stamp(a)
    vm.wait(a, "xqst")
    if FINE: stamp(a)
    a("s_barrier")
    flag_set(a, 0)
    if FINE: stamp(a)
    for s in range(9): g1_dma_issue(a, vm, s)
    stamp(a)
    poll(a, 0, group_sreg=48, nflags=16)
    stamp(a)
    g_gemm1(a, vm)
    stamp(a)
    poll(a, 1, group_sreg=90, nflags=16)
    vm.wait(a, "hstb")
    a("s_barrier")
    flag_set(a, 3)
    stamp(a)
    g_gemm2(a, vm)
    poll(a, 2, group_sreg=81, nflags=32)
    stamp(a)
    g_epi(a, vm)
    a("s_waitcnt vmcnt(0)")
    stamp(a)
    stamp_flush(a)
    a("s_branch Lend")

X_T = 0; X_KC = 0; X_U = 33280; X_R = 48640; X_RED = 57088
INV2PI = 0x3e22f983
def x_early(a, vm):
    a(f"""
    s_mov_b32 s71, s50
    s_lshl_b32 s72, s4, 6
    s_lshl_b32 s73, s5, 1
    s_add_u32 s72, s72, s73            ; d0
    v_and_b32 v1, 31, v0
    s_lshl_b32 s73, s72, 7
    s_lshl_b32 s74, s71, 5
    s_add_u32 s73, s73, s74
    v_add_u32 v1, s73, v1
    v_lshlrev_b32 v1, 1, v1
    s_lshl_b32 s73, s72, 1
    v_mov_b32 v2, s73
    """)
    for ch in range(2):
        B = 224 + 8*ch
        for i, p in enumerate((P_ARE, P_AIM, P_BRE, P_BIM, P_CRE, P_CIM)):
            a(f"global_load_ushort v{B+i}, v1, s[{p}:{p+1}] offset:{256*ch}")
        a(f"global_load_ushort v{B+6}, v2, s[{P_LDT}:{P_LDT+1}] offset:{2*ch}")
        a(f"global_load_ushort v{B+7}, v2, s[{P_DSK}:{P_DSK+1}] offset:{2*ch}")
        vm.issue(f"par{ch}", 8)
    a(f"""
    v_min_u32 v4, 55, v0
    v_lshlrev_b32 v4, 7, v4
    s_mul_i32 s6, s3, 7168
    v_add_u32 v4, s6, v4
    s_cmp_eq_u32 s50, 0
    s_cselect_b32 s6, s{P_WG}, s{P_WU}
    s_cselect_b32 s7, s{P_WG+1}, s{P_WU+1}
    s_cmp_eq_u32 s50, 2
    s_cselect_b32 s6, s{P_WD}, s6
    s_cselect_b32 s7, s{P_WD+1}, s7
    global_load_dword v243, v4, s[6:7]
    """)
    vm.issue("t1", 1)

def x_touch_w(a, vm):
    for dj in range(2):
        a(f"""
        s_and_b32 s6, s5, 3
        s_lshl_b32 s6, s6, 7
        s_lshl_b32 s7, s50, 5
        s_add_u32 s6, s6, s7
        s_add_u32 s6, s6, {16*dj}
        v_lshrrev_b32 v180, 2, v0
        v_add_u32 v180, s6, v180
        v_mul_u32_u24 v180, 3584, v180
        v_and_b32 v181, 3, v0
        v_mul_u32_u24 v181, 72, v181
        v_and_b32 v181, 0xfc, v181
        v_add_u32 v180, v180, v181
        s_mul_i32 s6, s49, 224
        v_add_u32 v180, s6, v180
        global_load_dword v243, v180, s[{P_WG}:{P_WG+1}]
        global_load_dword v243, v180, s[{P_WU}:{P_WU+1}]
        """)
    vm.issue("tw", 4)

def x_touch_wd(a, vm):
    a(f"""
    s_and_b32 s6, s5, 7
    s_mul_i32 s6, s6, 224
    s_mul_i32 s7, s50, 56
    s_add_u32 s6, s6, s7
    v_min_u32 v180, 55, v0
    v_add_u32 v180, s6, v180
    v_lshlrev_b32 v180, 10, v180
    s_and_b32 s6, s4, 1
    s_lshl_b32 s6, s6, 2
    s_lshr_b32 s7, s5, 3
    s_add_u32 s6, s6, s7
    s_lshl_b32 s6, s6, 7
    v_add_u32 v180, s6, v180
    global_load_dword v243, v180, s[{P_WD}:{P_WD+1}]
    """)
    vm.issue("twd", 1)

def cmul(a, d, x, y):
    a(f"""
    v_pk_mul_f32 {vr(d,2)}, {vr(x,2)}, {vr(y,2)} op_sel_hi:[1,0]
    v_pk_fma_f32 {vr(d,2)}, {vr(x,2)}, {vr(y,2)}, {vr(d,2)} op_sel:[1,1,0] op_sel_hi:[0,1,1] neg_lo:[1,0,0]
    """)

def x_kgen(a, vm, ch, mid=None):
    a.comment(f"==== X: Kgen ch{ch} ====")
    B = 224 + 8*ch
    vm.wait(a, f"par{ch}")
    for r in range(B, B+8):
        a(f"v_lshlrev_b32 v{r}, 16, v{r}")
    a(f"""
    s_mov_b32 s74, 0x3fb8aa3b
    s_mov_b32 s75, 0x32a57060
    v_mul_f32 v15, s74, v{B+6}
    v_fma_f32 v16, v{B+6}, s74, -v15
    v_fma_f32 v16, v{B+6}, s75, v16
    v_exp_f32 v15, v15
    v_mul_f32 v16, 0x3f317218, v16
    v_fma_f32 v15, v15, v16, v15
    """)
    bf16_round(a, 15, 15)
    a(f"""
    v_mul_f32 v8, v15, v{B}
    v_mul_f32 v9, v15, v{B+1}
    v_mul_f32 v10, v15, v{B+2}
    v_mul_f32 v11, v15, v{B+3}
    """)
    cmul(a, 18, B+4, 10)
    a(f"v_mul_f32 v16, s74, v8\n v_mul_f32 v17, 0x{INV2PI:08x}, v9")
    def cexp_lit(d, p, t):
        return lines(f"""
        v_mul_f32 v{t}, {p}, v16
        v_mul_f32 v{t+1}, {p}, v17
        v_exp_f32 v{t}, v{t}
        v_fract_f32 v{t+1}, v{t+1}
        v_cos_f32 v{d}, v{t+1}
        v_sin_f32 v{d+1}, v{t+1}
        s_nop 0
        v_mul_f32 v{d}, v{d}, v{t}
        v_mul_f32 v{d+1}, v{d+1}, v{t}""")
    interleave(a, [cexp_lit(20, "0x41800000", 30), cexp_lit(22, "0x44000000", 32), cexp_lit(24, "0x45000000", 34)])
    a(f"""
    v_mul_f32 v26, v19, v25
    v_fma_f32 v26, v18, v24, -v26
    v_mul_f32 v27, 0x45000000, v16
    v_max_f32 v27, 0, v27
    v_exp_f32 v27, v27
    v_add_f32 v28, abs(v18), abs(v19)
    v_mul_f32 v27, v27, v28
    v_cmp_gt_u32 vcc, 32, v0
    s_nop 1
    v_cndmask_b32 v26, 0, v26, vcc
    v_cndmask_b32 v27, 0, v27, vcc
    """)
    wave_reduce(a, 26)
    wave_reduce(a, 27)
    if ch == 1: a("s_barrier")
    a(f"""
    s_mul_i32 s78, s50, 9360
    s_add_u32 s78, s78, {X_T}
    v_and_b32 v1, 31, v0
    v_lshlrev_b32 v1, 5, v1
    v_add_u32 v1, s78, v1
    ds_write_b128 v1, v[16:19]
    ds_write_b128 v1, v[20:23] offset:16
    v_readlane_b32 s76, v26, 63
    v_readlane_b32 s77, v27, 63
    s_nop 1
    v_mov_b32 v2, s76
    v_mov_b32 v3, s77
    v_mov_b32 v1, s78
    ds_write_b64 v1, v[2:3] offset:{64*144}
    """)
    ACC = 192
    for i in range(32):
        a(f"v_mov_b32 v{ACC+i}, 0")
    a(f"""
    v_and_b32 v1, 15, v0
    v_cvt_f32_u32 v2, v1
    v_mul_f32 v4, 0x42000000, v2
    v_mov_b32 v3, v2
    v_mov_b32 v5, v4
    v_lshrrev_b32 v6, 4, v0
    v_lshlrev_b32 v6, 7, v6
    v_add_u32 v6, s78, v6
    s_waitcnt lgkmcnt(0)
    """)
    HF = 16; GF = 32
    def eblock(ks, e, TB):
        ops = []
        A = ops.append
        h0, h1, g = TB+8, TB+10, TB+12
        er, t0, t1, t2 = TB+20, TB+22, TB+24, TB+26
        A(f"v_pk_mul_f32 {vr(t0,2)}, {vr(TB,2)}, v[2:3]")
        A(f"v_pk_mul_f32 {vr(t1,2)}, {vr(TB,2)}, v[4:5]")
        A(f"v_exp_f32 v{t0}, v{t0}")
        A(f"v_exp_f32 v{t1}, v{t1}")
        A(f"v_fract_f32 v{t0+1}, v{t0+1}")
        A(f"v_fract_f32 v{t1+1}, v{t1+1}")
        A(f"v_cos_f32 v{h0}, v{t0+1}")
        A(f"v_sin_f32 v{h0+1}, v{t0+1}")
        A(f"v_cos_f32 v{er}, v{t1+1}")
        A(f"v_sin_f32 v{er+1}, v{t1+1}")
        A("s_nop 0")
        A(f"v_pk_mul_f32 {vr(h0,2)}, {vr(h0,2)}, {vr(t0,2)} op_sel_hi:[1,0]")
        A(f"v_pk_mul_f32 {vr(er,2)}, {vr(er,2)}, {vr(t1,2)} op_sel_hi:[1,0]")
        def cm(d, x, y):
            A(f"v_pk_mul_f32 {vr(d,2)}, {vr(x,2)}, {vr(y,2)} op_sel_hi:[1,0]")
            A(f"v_pk_fma_f32 {vr(d,2)}, {vr(x,2)}, {vr(y,2)}, {vr(d,2)} op_sel:[1,1,0] op_sel_hi:[0,1,1] neg_lo:[1,0,0]")
        cm(h1, h0, TB+4)
        cm(g, er, TB+2)
        cm(g+2, g, TB+6)
        cm(g+4, g+2, TB+6)
        cm(g+6, g+4, TB+6)
        def sp(hi, lo, x, t, neg):
            n = "-" if neg else ""
            A(f"v_cvt_pk_bf16_f32 v{hi}, v{x}, {n}v{x+1}")
            A(f"v_lshlrev_b32 v{t}, 16, v{hi}")
            A(f"v_and_b32 v{t+1}, 0xffff0000, v{hi}")
            if neg: A(f"v_pk_add_f32 {vr(t,2)}, {vr(x,2)}, {vr(t,2)} neg_lo:[0,1] neg_hi:[1,1]")
            else:   A(f"v_pk_add_f32 {vr(t,2)}, {vr(x,2)}, {vr(t,2)} neg_lo:[0,1] neg_hi:[0,1]")
            A(f"v_cvt_pk_bf16_f32 v{lo}, v{t}, v{t+1}")
        for ct in range(2):
            sp(HF+(ct*2)*4+e, HF+(ct*2+1)*4+e, h0+2*ct, (t0, t1)[ct], True)
        for rt in range(4):
            sp(GF+(rt*2)*4+e, GF+(rt*2+1)*4+e, g+2*rt, (t2, t0, t1, t2)[rt], False)
        return ops
    TBs = (64, 92, 120, 148)
    for ks in range(2):
        for e in range(4):
            off = (16*ks+e)*32
            a(f"ds_read_b128 {vr(TBs[e],4)}, v6 offset:{off}\n ds_read_b128 {vr(TBs[e]+4,4)}, v6 offset:{off+16}")
        a("s_waitcnt lgkmcnt(0)")
        interleave(a, [eblock(ks, e, TBs[e]) for e in range(4)])
        a("s_nop 1")
        for pas in range(3):
            for rt in range(4):
                for ct in range(2):
                    D = ACC+(rt*2+ct)*4
                    hh = HF+(ct*2)*4; hl = HF+(ct*2+1)*4; gh = GF+(rt*2)*4; gl = GF+(rt*2+1)*4
                    x, y = ((hh, gh), (hl, gh), (hh, gl))[pas]
                    a(f"v_mfma_f32_16x16x32_bf16 {vr(D,4)}, {vr(x,4)}, {vr(y,4)}, {vr(D,4)}")
        if ks == 0 and mid: mid()
    a(f"""
    v_and_b32 v1, 15, v0
    v_mul_u32_u24 v1, 144, v1
    v_lshrrev_b32 v4, 4, v0
    v_lshl_add_u32 v1, v4, 4, v1
    v_add_u32 v1, s78, v1
    s_lshl_b32 s73, s71, 6
    v_add_u32 v7, s73, v0
    v_sub_u32 v2, 2047, v7
    """)
    for e in range(8):
        a(f"""
        v_subrev_u32 v8, {256*e}, v2
        v_cvt_f32_u32 v8, v8
        v_cvt_pk_bf16_f32 v8, v8, v8
        v_lshlrev_b32 v8, 16, v8
        v_cvt_u32_f32 v8, v8
        v_lshrrev_b32 v9, 5, v8
        v_and_b32 v10, 31, v8
        v_mul_u32_u24 v9, 144, v9
        v_lshl_add_u32 v{64+e}, v10, 2, v9
        """)
    for rt in range(4):
        for ct in range(2):
            D = ACC+(rt*2+ct)*4
            a(f"ds_write_b128 v1, {vr(D,4)} offset:{rt*16*144 + ct*64}")
    a("v_mov_b32 v72, 0")
    a("s_waitcnt lgkmcnt(0)\n s_barrier")
    for e in range(8):
        for qq in range(4):
            a(f"ds_read_b32 v{16+e*4+qq}, v{64+e} offset:{X_T + qq*9360}")
    for qq in range(4):
        a(f"ds_read_b32 v{48+qq}, v72 offset:{X_T + qq*9360 + 64*144 + 4}")
    a(f"""
    v_lshlrev_b32 v3, 1, v7
    v_add_u32 v3, {X_R + ch*4224}, v3
    v_mov_b32 v56, 0
    v_mov_b32 v57, 0
    v_mov_b32 v58, 0
    v_mov_b32 v59, 0
    v_mov_b32 v4, {X_R + ch*4224}
    ds_write_b128 v4, v[56:59] offset:4096
    ds_write_b128 v4, v[56:59] offset:4112
    ds_write_b128 v4, v[56:59] offset:4128
    ds_write_b128 v4, v[56:59] offset:4144
    s_waitcnt lgkmcnt(4)
    v_add_f32 v48, v48, v49
    v_add_f32 v50, v50, v51
    v_add_f32 v48, v48, v50
    v_frexp_exp_i32_f32 v49, v48
    v_sub_u32 v50, 14, v49
    v_subrev_u32 v51, 14, v49
    v_ldexp_f32 v50, 1.0, v50
    v_ldexp_f32 v{240+ch}, 1.0, v51
    """)
    for e in range(8):
        b = 16+e*4
        a(f"""
        v_add_f32 v{b}, v{b}, v{b+1}
        v_add_f32 v{b+2}, v{b+2}, v{b+3}
        v_add_f32 v{b}, v{b}, v{b+2}
        v_mul_f32 v{b}, v50, v{b}
        v_cvt_f16_f32 v{b}, v{b}
        ds_write_b16 v3, v{b} offset:{512*e}
        """)

def x_uload(a, vm):
    a(f"""
    s_lshl_b32 s73, s50, 6
    v_add_u32 v1, s73, v0
    s_lshr_b32 s75, s72, 3
    s_lshl_b32 s75, s75, 11
    s_and_b32 s74, s72, 7
    s_lshl_b32 s74, s74, 1
    s_add_u32 s75, s75, s74
    s_add_u32 s74, s{P_WS}, s75
    s_addc_u32 s75, s{P_WS+1}, 0
    v_lshrrev_b32 v2, 7, v1
    v_lshlrev_b32 v2, 17, v2
    v_and_b32 v3, 127, v1
    v_lshl_add_u32 v2, v3, 4, v2
    """)
    for i in range(8):
        a(f"global_load_dword v{8+i}, v2, s[74:75] sc1")
        if i < 7: a("v_add_u32 v2, 0x40000, v2")
    vm.issue("u", 8)
    a(f"""
    v_mov_b32 v56, 0
    v_mov_b32 v57, 0
    v_mov_b32 v58, 0
    v_mov_b32 v59, 0
    v_cmp_gt_u32 vcc, 160, v1
    v_lshlrev_b32 v3, 4, v1
    v_add_u32 v3, {X_U}, v3
    s_and_saveexec_b64 s[76:77], vcc
    ds_write_b128 v3, v[56:59]
    ds_write_b128 v3, v[56:59] offset:7680
    s_mov_b64 exec, s[76:77]
    v_lshrrev_b32 v3, 5, v1
    v_mul_u32_u24 v3, 80, v3
    v_and_b32 v4, 31, v1
    v_lshl_add_u32 v3, v4, 1, v3
    v_add_u32 v3, {X_U+2560}, v3
    """)

def x_uwrite(a, vm):
    vm.wait(a, "u")
    for i in range(8):
        a(f"""
        v_lshlrev_b32 v16, 16, v{8+i}
        v_and_b32 v17, 0xffff0000, v{8+i}
        v_cvt_f16_f32 v16, v16
        v_cvt_f16_f32 v17, v17
        ds_write_b16 v3, v16 offset:{i*8*80}
        ds_write_b16 v3, v17 offset:{7680 + i*8*80}
        """)

def kc_build_one(a, vz, ch):
    a(f"""
    v_lshlrev_b32 v5, 4, v{vz}
    v_add_u32 v4, {X_KC}, v5
    v_add_u32 v5, {X_R + ch*4224}, v5
    ds_read_b128 v[64:67], v5
    ds_read_b128 v[68:71], v5 offset:16
    s_waitcnt lgkmcnt(0)
    """)
    for c in range(8):
        sft = 7-c
        dst = 72+4*c
        for k in range(4):
            if sft % 2 == 0: a(f"v_mov_b32 v{dst+k}, v{64+sft//2+k}")
            else: a(f"v_alignbit_b32 v{dst+k}, v{64+sft//2+k+1}, v{64+sft//2+k}, 16")
        a(f"ds_write_b128 v4, {vr(dst,4)} offset:{c*4160}")

def x_kc(a, ch):
    a(f"s_lshl_b32 s74, s71, 6\n v_add_u32 v1, s74, v0")
    kc_build_one(a, 1, ch)
    Ls = a.newlabel("kcskip")
    a(f"""
    s_cmp_lg_u32 s71, 0
    s_cbranch_scc1 {Ls}
    v_cmp_gt_u32 vcc, 3, v0
    s_and_saveexec_b64 s[76:77], vcc
    v_add_u32 v2, 256, v0
    """)
    kc_build_one(a, 2, ch)
    a("s_mov_b64 exec, s[76:77]")
    a.label(Ls)

def x_conv(a, vm, ch):
    a.comment(f"==== X: conv ch{ch} ====")
    ACC0 = 192; ACC1 = 208
    a(f"""
    v_and_b32 v1, 31, v0
    v_lshrrev_b32 v2, 5, v0
    v_and_b32 v3, 7, v1
    v_lshrrev_b32 v4, 3, v1
    v_mul_u32_u24 v3, 4160, v3
    v_sub_u32 v4, v2, v4
    v_add_u32 v4, 255, v4
    v_lshl_add_u32 v3, v4, 4, v3
    s_lshl_b32 s73, s71, 9
    s_add_u32 s73, s73, {64*7+2048}
    s_sub_u32 s74, {X_KC}, s73
    v_add_u32 v5, s74, v3
    v_mul_u32_u24 v6, 80, v1
    v_lshl_add_u32 v6, v2, 4, v6
    s_lshl_b32 s73, s71, 3
    s_sub_u32 s73, 25, s73
    s_mul_i32 s73, s73, 80
    s_add_u32 s73, s73, {X_U + ch*7680}
    v_add_u32 v6, s73, v6
    """)
    for i in range(32):
        a(f"v_mov_b32 v{ACC0+i}, 0")
    def reads(i, base):
        for ks in range(2):
            a(f"ds_read_b128 {vr(base+ks*16,4)}, v5 offset:{64*(7-i)+32*ks+2048}")
            a(f"ds_read_b128 {vr(base+ks*16+4,4)}, v5 offset:{64*(7-i)+32*ks}")
            a(f"ds_read_b128 {vr(base+ks*16+8,4)}, v6 offset:{(7-i)*80+ks*32}")
            a(f"ds_read_b128 {vr(base+ks*16+12,4)}, v6 offset:{(7-i)*80+2560+ks*32}")
    reads(0, 8)
    for i in range(8):
        base = 8 + 32*(i&1)
        if i < 7:
            reads(i+1, 8+32*((i+1)&1))
            a("s_waitcnt lgkmcnt(8)")
        else:
            a("s_waitcnt lgkmcnt(0)")
        for ks in range(2):
            An = base+ks*16; Af = An+4; B0 = An+8; B1 = An+12
            a(f"v_mfma_f32_32x32x16_f16 {vr(ACC0,16)}, {vr(An,4)}, {vr(B0,4)}, {vr(ACC0,16)}")
            a(f"v_mfma_f32_32x32x16_f16 {vr(ACC1,16)}, {vr(An,4)}, {vr(B1,4)}, {vr(ACC1,16)}")
            a(f"v_mfma_f32_32x32x16_f16 {vr(ACC1,16)}, {vr(Af,4)}, {vr(B0,4)}, {vr(ACC1,16)}")
    a(f"""
    v_lshlrev_b32 v1, 4, v0
    s_nop 7
    """)
    for dq in range(4):
        L = a.newlabel("rs")
        a(f"""
        s_cmp_eq_u32 s71, {dq}
        s_cbranch_scc1 {L}
        s_sub_u32 s73, s71, {dq+1}
        s_and_b32 s73, s73, 3
        s_lshl_b32 s73, s73, 11
        s_add_u32 s73, s73, {X_RED + dq*6144}
        v_add_u32 v2, s73, v1
        ds_write_b128 v2, {vr(ACC0+8*dq,4)}
        ds_write_b128 v2, {vr(ACC0+8*dq+4,4)} offset:1024
        """)
        a.label(L)
    Ld = a.newlabel("mvd")
    for dq in range(4):
        L = a.newlabel("mv")
        a(f"s_cmp_lg_u32 s71, {dq}\n s_cbranch_scc1 {L}")
        for i in range(8): a(f"v_mov_b32 v{8+i}, v{ACC0+8*dq+i}")
        a(f"s_branch {Ld}")
        a.label(L)
    a.label(Ld)
    a(f"""
    s_waitcnt lgkmcnt(0)
    s_barrier
    s_mul_i32 s73, s71, 6144
    s_add_u32 s73, s73, {X_RED}
    v_add_u32 v2, s73, v1
    """)
    for sl in range(3):
        a(f"ds_read_b128 {vr(16+8*sl,4)}, v2 offset:{sl*2048}")
        a(f"ds_read_b128 {vr(20+8*sl,4)}, v2 offset:{sl*2048+1024}")
    a(f"""
    v_and_b32 v3, 31, v0
    v_lshrrev_b32 v4, 5, v0
    s_lshr_b32 s73, s71, 1
    s_lshl_b32 s73, s73, 5
    s_and_b32 s74, s71, 1
    s_lshl_b32 s74, s74, 4
    v_add_u32 v5, s73, v3
    v_mul_u32_u24 v6, 80, v5
    v_lshl_add_u32 v6, v4, 3, v6
    s_lshl_b32 s76, s74, 1
    s_add_u32 s75, s76, {X_U + ch*7680 + 2560}
    v_add_u32 v6, s75, v6
    ds_read_b64 v[40:41], v6
    ds_read_b64 v[42:43], v6 offset:16
    v_lshlrev_b32 v5, 5, v5
    v_lshl_add_u32 v5, v4, 2, v5
    v_add_u32 v5, s74, v5
    v_lshlrev_b32 v5, 1, v5
    s_add_u32 s75, s72, {ch}
    s_lshl_b32 s75, s75, 12
    s_add_u32 s74, s{P_WS}, s75
    s_addc_u32 s75, s{P_WS+1}, 0
    s_add_u32 s74, s74, {ST}
    s_addc_u32 s75, s75, 0
    s_waitcnt lgkmcnt(0)
    """)
    DSK = 224 + 8*ch + 7
    for i in range(8):
        a(f"""
        v_add_f32 v{8+i}, v{8+i}, v{16+i}
        v_add_f32 v{24+i}, v{24+i}, v{32+i}
        v_add_f32 v{8+i}, v{8+i}, v{24+i}
        v_mul_f32 v{8+i}, v{240+ch}, v{8+i}
        """)
    st = []
    for p in range(4):
        st.append(lines(f"""
        v_cvt_f32_f16 v{44+2*p}, v{40+p}
        v_cvt_f32_f16_sdwa v{45+2*p}, v{40+p} dst_sel:DWORD dst_unused:UNUSED_PAD src0_sel:WORD_1
        v_mul_f32 v{44+2*p}, v{DSK}, v{44+2*p}
        v_mul_f32 v{45+2*p}, v{DSK}, v{45+2*p}
        v_cvt_pk_bf16_f32 v{52+p}, v{44+2*p}, v{45+2*p}
        v_cvt_pk_bf16_f32 v{56+p}, v{8+2*p}, v{9+2*p}
        v_lshlrev_b32 v{44+2*p}, 16, v{52+p}
        v_and_b32 v{45+2*p}, 0xffff0000, v{52+p}
        v_lshlrev_b32 v{8+2*p}, 16, v{56+p}
        v_and_b32 v{9+2*p}, 0xffff0000, v{56+p}
        v_add_f32 v{8+2*p}, v{8+2*p}, v{44+2*p}
        v_add_f32 v{9+2*p}, v{9+2*p}, v{45+2*p}
        v_cvt_pk_bf16_f32 v{60+p}, v{8+2*p}, v{9+2*p}"""))
    interleave(a, st)
    a(f"""
    global_store_dwordx2 v5, v[60:61], s[74:75] sc1
    global_store_dwordx2 v5, v[62:63], s[74:75] offset:16 sc1
    """)
    vm.issue("sst", 2)

def prog_x(a):
    vm = Vm()
    stamp_begin(a)
    if "xprio" in OPTS: a("s_setprio 2")
    x_early(a, vm)
    if "xskip" in OPTS:
        nonce_get(a)
        a("s_waitcnt vmcnt(0)\n s_barrier")
        flag_set(a, 2)
        a("s_waitcnt vmcnt(0)")
        stamp(a)
        stamp_flush(a)
        return
    x_kgen(a, vm, 0, mid=lambda: x_touch_w(a, vm))
    stamp(a)
    if "xprio3" in OPTS: a("s_setprio 0")
    x_kgen(a, vm, 1, mid=lambda: x_touch_wd(a, vm))
    stamp(a)
    if "xprio2" in OPTS: a("s_setprio 2")
    nonce_get(a)
    a("s_waitcnt lgkmcnt(0)")
    poll(a, 0)
    stamp(a)
    x_uload(a, vm)
    x_kc(a, 0)
    x_uwrite(a, vm)
    a("s_waitcnt lgkmcnt(0)\n s_barrier")
    stamp(a)
    x_conv(a, vm, 0)
    stamp(a)
    a("s_barrier")
    x_kc(a, 1)
    a("s_waitcnt lgkmcnt(0)\n s_barrier")
    x_conv(a, vm, 1)
    stamp(a)
    vm.wait(a, "sst")
    a("s_barrier")
    flag_set(a, 2)
    a("s_waitcnt vmcnt(0)")
    stamp(a)
    stamp_flush(a)

def build():
    a = Asm()
    prologue(a)
    prog_g(a)
    a.label("LprogX")
    prog_x(a)
    a.label("Lend")
    a("s_endpgm")
    hdr = HEADER_COMMENT + f"; @launch grid=(512,1,1) block=(256,1,1) lds={LDS_BYTES}\n"
    txt = hdr + '.amdgcn_target "amdgcn-amd-amdhsa--gfx950"\n.text\n' + kernel_header(KNAME) + a.text()
    txt += '.section .rodata,"a"\n' + kernel_desc(KNAME)
    return txt

if __name__ == "__main__":
    opts = sys.argv[2].split(",") if len(sys.argv) > 2 else []
    OPTS = opts
    if "stamps" in opts: STAMPS = True
    if "fine" in opts: FINE = True
    if "dbgx" in opts: DBGWG[0] = 264
    open(sys.argv[1], "w").write(build())
```

```python
import sys, copy
from asmlib import *

XQ = 0
HQ = 0x200000
ST = 0x900000
FLG = 0xC00000
P_X, P_ARE, P_AIM, P_BRE, P_BIM, P_CRE, P_CIM, P_LDT = 16,18,20,22,24,26,28,30
P_DSK, P_BX, P_WG, P_WU, P_WD, P_OUT, P_DBG, P_WS = 32,34,36,38,40,42,44,46
KNAME = "recurrent_scan__ssm_conv_s4__glu_gated_glu__prompt_kernel"
LDS_BYTES = 81920
OPTS = []
DBGWG = [8]
SLEEP = 4
FINE = False
STAMPS = False
_stamp_n = [0]
def stamp(a, name=""):
    if not STAMPS: return
    i = _stamp_n[0]; _stamp_n[0] += 1
    a(f"s_memtime s[98:99]\n s_waitcnt lgkmcnt(0)\n v_writelane_b32 v255, s98, {i}")
def stamp_begin(a):
    _stamp_n[0] = 0
    if STAMPS: a("s_memrealtime s[98:99]\n s_waitcnt lgkmcnt(0)\n v_writelane_b32 v255, s98, 62")
    stamp(a)
def stamp_flush(a):
    if not STAMPS: return
    if "dbgst" in OPTS:
        L = a.newlabel("dbs")
        a(f"""
        s_cmp_lg_u32 s2, {DBGWG[0]}
        s_cbranch_scc1 {L}
        s_cmp_lg_u32 s50, 0
        s_cbranch_scc1 {L}
        v_readlane_b32 s98, v255, 0
        s_nop 3
        v_subrev_u32 v254, s98, v255
        v_lshlrev_b32 v253, 2, v0
        v_add_u32 v253, 4, v253
        v_cmp_gt_u32 vcc, 15, v0
        v_cmp_lt_u32 s[96:97], 0, v0
        s_nop 1
        s_and_b64 vcc, vcc, s[96:97]
        s_and_saveexec_b64 s[96:97], vcc
        global_store_dword v253, v254, s[{P_DBG}:{P_DBG+1}]
        s_mov_b64 exec, s[96:97]
        """)
        a.label(L)
        return
    a("s_memrealtime s[98:99]\n s_waitcnt lgkmcnt(0)\n v_writelane_b32 v255, s98, 63")
    a(f"v_writelane_b32 v255, 0, {_stamp_n[0]}")
    a(f"""
    s_lshl_b32 s98, s2, 2
    s_add_u32 s98, s98, s50
    s_lshl_b32 s98, s98, 8
    s_add_u32 s98, s98, 0x2000000
    s_add_u32 s96, s{P_WS}, s98
    s_addc_u32 s97, s{P_WS+1}, 0
    v_lshlrev_b32 v254, 2, v0
    global_store_dword v254, v255, s[96:97]
    """)

class Vm:
    def __init__(self): self.ops = []
    def issue(self, tag, n=1):
        for _ in range(n): self.ops.append(tag)
    def wait(self, a, tags):
        if isinstance(tags, str): tags = [tags]
        last = -1
        for i, t in enumerate(self.ops):
            if t in tags: last = i
        assert last >= 0, tags
        n = len(self.ops) - 1 - last
        a(f"s_waitcnt vmcnt({min(n,63)})")

def lgk(n): return f"s_waitcnt lgkmcnt({min(n,15)})"

def wave_reduce(a, v, op="add"):
    for sh in (1,2,4,8):
        a(f"s_nop 1\n v_{op}_f32_dpp v{v}, v{v}, v{v} row_shr:{sh} row_mask:0xf bank_mask:0xf bound_ctrl:0")
    a(f"s_nop 1\n v_{op}_f32_dpp v{v}, v{v}, v{v} row_bcast:15 row_mask:0xa bank_mask:0xf")
    a(f"s_nop 1\n v_{op}_f32_dpp v{v}, v{v}, v{v} row_bcast:31 row_mask:0xc bank_mask:0xf")
    a("s_nop 1")
def bf16_round(a, dst, src):
    a(f"v_cvt_pk_bf16_f32 v{dst}, v{src}, v{src}\n v_lshlrev_b32 v{dst}, 16, v{dst}")
def make_srd(a, s, ptr, nbytes):
    a(f"""
    s_mov_b32 s{s}, s{ptr}
    s_and_b32 s{s+1}, s{ptr+1}, 0xffff
    s_mov_b32 s{s+2}, {nbytes}
    s_mov_b32 s{s+3}, 0x00020000
    """)
def interleave(a, streams):
    n = max(len(s) for s in streams)
    for k in range(n):
        for s in streams:
            if k < len(s): a(s[k])
def lines(s): return [l.strip() for l in s.strip("\n").split("\n") if l.strip()]

PT = (246, 248, 250, 252)
def nonce_publish(a):
    L = a.newlabel("np")
    a(f"""
    s_or_b32 s6, s2, s50
    s_cmp_lg_u32 s6, 0
    s_cbranch_scc1 {L}
    s_memrealtime s[6:7]
    s_waitcnt lgkmcnt(0)
    s_or_b32 s6, s6, 1
    v_mov_b32 v244, 0
    v_mov_b32 v246, s6
    v_mov_b32 v247, s7
    s_mov_b64 s[6:7], exec
    s_mov_b64 exec, 1
    global_store_dwordx2 v244, v[246:247], s[{P_DBG}:{P_DBG+1}] sc1
    s_mov_b64 exec, s[6:7]
    """)
    a.label(L)
def nonce_get(a):
    L = a.newlabel("ng"); Lp = a.newlabel("ngp"); Ld = a.newlabel("ngd")
    a(f"""
    s_cmp_lg_u32 s50, 0
    s_cbranch_scc1 {L}
    v_mov_b32 v244, 0
    s_mov_b32 s6, 0
    """)
    a.label(Lp)
    a(f"""
    global_load_dwordx2 v[246:247], v244, s[{P_DBG}:{P_DBG+1}] sc1
    s_waitcnt vmcnt(0)
    v_cmp_eq_u32 vcc, 0, v246
    s_add_u32 s6, s6, 1
    s_cmp_gt_u32 s6, 200000
    s_cbranch_scc1 {Ld}
    s_cbranch_vccz {Ld}
    s_sleep 2
    s_branch {Lp}
    """)
    a.label(Ld)
    a("v_readfirstlane_b32 s8, v246\n v_readfirstlane_b32 s9, v247")
    a.label(L)
def flag_set(a, phase):
    L = a.newlabel("fs")
    a(f"s_cmp_lg_u32 s50, 0\n s_cbranch_scc1 {L}")
    if phase != 2: a("s_lshl_b32 s6, s48, 4\n s_add_u32 s6, s6, s49")
    else: a("s_lshl_b32 s6, s4, 5\n s_add_u32 s6, s6, s5")
    a(f"""
    s_lshl_b32 s6, s6, 3
    s_add_u32 s6, s6, {FLG + phase*2048}
    v_mov_b32 v244, s6
    v_mov_b32 v246, s8
    v_mov_b32 v247, s9
    s_mov_b64 s[6:7], exec
    s_mov_b64 exec, 1
    global_store_dwordx2 v244, v[246:247], s[{P_WS}:{P_WS+1}] sc1
    s_mov_b64 exec, s[6:7]
    """)
    a.label(L)
def poll(a, phase, group_sreg=None, nflags=256):
    L = a.newlabel("pl"); Lp = a.newlabel("plp"); Ld = a.newlabel("pld")
    a(f"s_cmp_lg_u32 s50, 0\n s_cbranch_scc1 {L}")
    if group_sreg is None:
        a(f"v_lshlrev_b32 v244, 3, v0\n v_add_u32 v244, {FLG + phase*2048}, v244")
        nl = 4
    else:
        a(f"""
        v_and_b32 v244, {nflags-1}, v0
        v_lshlrev_b32 v244, 3, v244
        s_mul_i32 s6, s{group_sreg}, {nflags*8}
        s_add_u32 s6, s6, {FLG + phase*2048}
        v_add_u32 v244, s6, v244
        """)
        nl = 1
    a("s_mov_b32 s6, 0")
    a.label(Lp)
    for k in range(nl):
        a(f"global_load_dwordx2 v[{PT[k]}:{PT[k]+1}], v244, s[{P_WS}:{P_WS+1}] offset:{k*512} sc1")
    a("s_waitcnt vmcnt(0)")
    for k in range(nl):
        a(f"v_xor_b32 v{PT[k]}, s8, v{PT[k]}\n v_xor_b32 v{PT[k]+1}, s9, v{PT[k]+1}")
    for k in range(nl):
        if k > 0: a(f"v_or_b32 v{PT[0]}, v{PT[0]}, v{PT[k]}")
        a(f"v_or_b32 v{PT[0]}, v{PT[0]}, v{PT[k]+1}")
    a(f"""
    v_cmp_ne_u32 vcc, 0, v{PT[0]}
    s_add_u32 s6, s6, 1
    s_cmp_gt_u32 s6, 200000
    s_cbranch_scc1 {Ld}
    s_cbranch_vccz {Ld}
    s_sleep {SLEEP}
    s_branch {Lp}
    """)
    a.label(Ld)
    a.label(L)
    a("s_barrier")

def prologue(a):
    a(f"""
    s_cmp_ge_u32 s2, 512
    s_cbranch_scc1 Lend
    s_load_dwordx16 s[16:31], s[0:1], 0
    s_load_dwordx16 s[32:47], s[0:1], 64
    v_lshrrev_b32 v1, 6, v0
    v_and_b32 v0, 63, v0
    v_readfirstlane_b32 s50, v1
    s_and_b32 s3, s2, 255
    s_and_b32 s4, s3, 7
    s_lshr_b32 s5, s3, 3
    s_lshr_b32 s6, s4, 1
    s_lshl_b32 s6, s6, 2
    s_and_b32 s7, s5, 3
    s_add_u32 s48, s6, s7
    s_and_b32 s6, s4, 1
    s_lshl_b32 s6, s6, 3
    s_lshr_b32 s7, s5, 2
    s_add_u32 s49, s6, s7
    s_waitcnt lgkmcnt(0)
    s_cmp_ge_u32 s2, 256
    s_cbranch_scc1 LprogX
    """)

G1_R = 10
def g_ln(a, vm):
    a.comment("==== G: LN (2 rows per wave) ====")
    a(f"""
    s_lshl_b32 s51, s48, 7
    s_lshl_b32 s52, s49, 3
    s_add_u32 s91, s51, s52
    s_lshl_b32 s51, s50, 1
    s_add_u32 s51, s51, s91
    s_lshl_b32 s52, s51, 10
    s_add_u32 s92, s{P_X}, s52
    s_addc_u32 s93, s{P_X+1}, 0
    v_lshlrev_b32 v3, 4, v0
    global_load_dwordx4 v[4:7], v3, s[92:93]
    global_load_dwordx4 v[44:47], v3, s[92:93] offset:1024
    """)
    vm.issue("x", 2)
    nonce_publish(a)
    g1_dma_setup(a)
    vm.wait(a, "x")
    def row(B, sreg):
        o = []
        for i in range(4):
            o += [f"v_lshlrev_b32 v{B+4+2*i}, 16, v{B+i}", f"v_and_b32 v{B+5+2*i}, 0xffff0000, v{B+i}"]
        o += lines(f"""
        v_add_f32 v{B+12}, v{B+4}, v{B+5}
        v_add_f32 v{B+13}, v{B+6}, v{B+7}
        v_add_f32 v{B+14}, v{B+8}, v{B+9}
        v_add_f32 v{B+15}, v{B+10}, v{B+11}
        v_add_f32 v{B+12}, v{B+12}, v{B+13}
        v_add_f32 v{B+14}, v{B+14}, v{B+15}
        v_add_f32 v{B+12}, v{B+12}, v{B+14}""")
        def red(v):
            r = []
            for sh in (1,2,4,8):
                r += ["s_nop 0", f"v_add_f32_dpp v{v}, v{v}, v{v} row_shr:{sh} row_mask:0xf bank_mask:0xf bound_ctrl:0"]
            r += ["s_nop 0", f"v_add_f32_dpp v{v}, v{v}, v{v} row_bcast:15 row_mask:0xa bank_mask:0xf"]
            r += ["s_nop 0", f"v_add_f32_dpp v{v}, v{v}, v{v} row_bcast:31 row_mask:0xc bank_mask:0xf", "s_nop 0"]
            return r
        o += red(B+12)
        o += [f"v_readlane_b32 s{sreg}, v{B+12}, 63", "s_nop 1", f"v_mov_b32 v{B+13}, s{sreg}", f"v_mul_f32 v{B+13}, 0x3b000000, v{B+13}"]
        for i in range(8): o.append(f"v_sub_f32 v{B+16+i}, v{B+4+i}, v{B+13}")
        o.append(f"v_mul_f32 v{B+12}, v{B+16}, v{B+16}")
        for i in range(1,8): o.append(f"v_fmac_f32 v{B+12}, v{B+16+i}, v{B+16+i}")
        o += red(B+12)
        o += [f"v_readlane_b32 s{sreg+1}, v{B+12}, 63", "s_nop 1", f"v_mov_b32 v{B+14}, s{sreg+1}", f"v_mul_f32 v{B+14}, 0x3b000000, v{B+14}"]
        def rnd(v): return [f"v_cvt_pk_bf16_f32 v{v}, v{v}, v{v}", f"v_lshlrev_b32 v{v}, 16, v{v}"]
        o += rnd(B+14) + [f"v_add_f32 v{B+14}, 0x3727c5ac, v{B+14}"] + rnd(B+14) + [f"v_sqrt_f32 v{B+14}, v{B+14}", "s_nop 0"] + rnd(B+14)
        o += [f"v_rcp_f32 v{B+15}, v{B+14}"] + rnd(B+13)
        for i in range(8): o.append(f"v_sub_f32 v{B+16+i}, v{B+4+i}, v{B+13}")
        for i in range(4): o.append(f"v_cvt_pk_bf16_f32 v{B+24+i}, v{B+16+2*i}, v{B+17+2*i}")
        for i in range(4): o += [f"v_lshlrev_b32 v{B+16+2*i}, 16, v{B+24+i}", f"v_and_b32 v{B+17+2*i}, 0xffff0000, v{B+24+i}"]
        for i in range(8):
            o += [f"v_mul_f32 v{B+4+i}, v{B+16+i}, v{B+15}", f"v_fma_f32 v{B+28+i}, -v{B+4+i}, v{B+14}, v{B+16+i}", f"v_fma_f32 v{B+4+i}, v{B+28+i}, v{B+15}, v{B+4+i}"]
        for i in range(4): o.append(f"v_cvt_pk_bf16_f32 v{B+i}, v{B+4+2*i}, v{B+5+2*i}")
        return o
    interleave(a, [row(4, 94), row(44, 96)])
    LN_SCR = 65536
    a(f"""
    s_mul_i32 s94, s50, 2080
    s_add_u32 s94, s94, {LN_SCR}
    v_lshlrev_b32 v3, 4, v0
    v_add_u32 v3, s94, v3
    ds_write_b128 v3, v[4:7]
    ds_write_b128 v3, v[44:47] offset:1040
    v_and_b32 v8, 7, v0
    v_lshrrev_b32 v9, 3, v0
    s_lshl_b32 s94, s50, 4
    v_add_u32 v9, s94, v9             ; group g = 16w + (lane>>3)  (+8 second)
    v_mul_u32_u24 v10, 1040, v8
    v_lshl_add_u32 v10, v9, 4, v10
    v_add_u32 v10, {LN_SCR}, v10
    s_waitcnt lgkmcnt(0)
    s_barrier
    ds_read_b128 v[4:7], v10
    ds_read_b128 v[12:15], v10 offset:128
    v_lshlrev_b32 v11, 11, v9
    s_lshl_b32 s94, s49, 3
    v_add_u32 v12+0, s94, v8
    """.replace("v12+0", "v16"))
    a(f"""
    v_lshl_add_u32 v11, v16, 4, v11
    s_lshl_b32 s94, s48, 17
    s_add_u32 s92, s{P_WS}, s94
    s_addc_u32 s93, s{P_WS+1}, 0
    v_add_u32 v17, 16384, v11
    s_waitcnt lgkmcnt(0)
    global_store_dwordx4 v11, v[4:7], s[92:93] sc1
    global_store_dwordx4 v17, v[12:15], s[92:93] sc1
    """)
    vm.issue("xqst", 2)

def g1_dma_setup(a):
    make_srd(a, 52, P_WG, 512*3584)
    make_srd(a, 56, P_WU, 512*3584)
    a("""
    v_lshrrev_b32 v242, 3, v0          ; r_local
    v_bfe_u32 v243, v0, 1, 2           ; chunk'
    v_and_b32 v238, 1, v0
    v_bfe_u32 v239, v242, 1, 1
    v_xor_b32 v239, v243, v239
    v_xor_b32 v243, 2, v239
    v_mul_u32_u24 v242, 3584, v242
    v_lshl_add_u32 v242, v238, 4, v242
    v_lshl_add_u32 v240, v239, 5, v242
    v_lshl_add_u32 v241, v243, 5, v242
    s_mul_i32 s60, s49, 224
    s_mul_i32 s61, s50, 28672
    s_add_u32 s60, s60, s61
    s_lshl_b32 s62, s50, 10
    """)
def g1_dma_ops(stage):
    slot = stage % G1_R
    so = (stage % 16)*32*3584 + (stage // 16)*128
    return [f"""s_add_u32 s61, s60, {so}
            s_add_u32 m0, s62, {slot*8192}
            s_nop 0
            buffer_load_dwordx4 v240, s[52:55], s61 offen lds""",
            f"""s_add_u32 m0, s62, {slot*8192 + 4096}
            s_nop 0
            buffer_load_dwordx4 v241, s[56:59], s61 offen lds"""]
def g1_dma_issue(a, vm, stage):
    for o in g1_dma_ops(stage): a(o)
    vm.issue(f"w{stage}", 2)

def g_gemm1(a, vm):
    a.comment("==== G: GEMM1 (F-split) ====")
    if "gprio" in OPTS: a("s_setprio 3")
    BF = 8; ACC = 136; AX = 200; AY = 216; AD = 232
    AT = [2,3,4,5]
    a(f"""
    s_lshl_b32 s63, s50, 5
    s_lshl_b32 s64, s48, 7
    s_add_u32 s63, s63, s64
    s_lshl_b32 s64, s50, 5
    v_and_b32 v1, 31, v0
    v_add_u32 v1, s64, v1
    v_lshrrev_b32 v2, 5, v0
    v_lshlrev_b32 v2, 11, v2
    v_lshl_add_u32 v1, v1, 4, v2
    s_lshl_b32 s65, s48, 17
    s_add_u32 s64, s{P_WS}, s65
    s_addc_u32 s65, s{P_WS+1}, 0
    """)
    def bload(ks):
        a(f"global_load_dwordx4 {vr(BF+4*ks,4)}, v1, s[64:65]")
        a("s_add_u32 s64, s64, 4096\n s_addc_u32 s65, s65, 0")
        vm.issue(f"b{ks}")
    PF = 12
    for ks in range(PF): bload(ks)
    a(f"""
    v_lshrrev_b32 v2, 4, v0
    v_and_b32 v3, 1, v2                ; region
    v_lshrrev_b32 v2, 1, v2            ; khalf
    v_bfe_u32 v4, v0, 2, 2             ; r4
    v_and_b32 v5, 3, v0                ; cq
    v_lshrrev_b32 v6, 1, v4
    v_lshl_add_u32 v6, v3, 1, v6       ; e = (r4>>1) | region<<1
    v_lshlrev_b32 v6, 5, v6
    v_lshl_add_u32 v7, v2, 3, v4
    v_lshlrev_b32 v7, 7, v7            ; (8khalf + r4)*128
    v_lshl_add_u32 v7, v3, 12, v7
    v_lshl_add_u32 v7, v5, 3, v7
    """)
    for t in range(4):
        a(f"v_xor_b32 v{AD+t}, {t*32}, v6\n v_add_u32 v{AD+t}, v{AD+t}, v7")
    a(f"""
    s_and_b32 s66, s63, 63
    v_and_b32 v6, 31, v0
    v_add_u32 v6, s66, v6
    v_lshrrev_b32 v7, 5, v0
    s_mul_i32 s68, s49, 14
    v_add_u32 v7, s68, v7
    v_lshlrev_b32 v7, 10, v7
    v_lshl_add_u32 v6, v6, 4, v7
    s_lshr_b32 s68, s63, 6
    s_mul_i32 s68, s68, 229376
    s_add_u32 s68, s68, {HQ}
    s_add_u32 s88, s{P_WS}, s68
    s_addc_u32 s89, s{P_WS+1}, 0
    s_mov_b32 s69, 0xbfb8aa3b
    """)
    def rd(k2, dst, t):
        return [f"ds_read_b64_tr_b16 {vr(dst+4*t+2*h2,2)}, v{AT[t]} offset:{k2*2048+h2*512}" for h2 in range(2)]
    def mf(src, ks, t):
        return f"v_mfma_f32_32x32x16_bf16 {vr(ACC+16*t,16)}, {vr(src+4*t,4)}, {vr(BF+4*ks,4)}, {vr(ACC+16*t,16)}"
    def ntiles(stage): return 4 if stage < 16 else 3
    def epilogue(nt, tag):
        for t in range(nt):
            A = ACC+16*t
            R = (236, 248)[t & 1]
            st = []
            for p in range(4):
                g0 = A+2*p; u0 = A+8+2*p
                b = 200 + 8*p
                st.append(lines(f"""
                v_cvt_pk_bf16_f32 v{b}, v{g0}, v{g0+1}
                v_cvt_pk_bf16_f32 v{b+1}, v{u0}, v{u0+1}
                v_lshlrev_b32 v{b+2}, 16, v{b}
                v_and_b32 v{b+3}, 0xffff0000, v{b}
                v_mul_f32 v{b+2}, s69, v{b+2}
                v_mul_f32 v{b+3}, s69, v{b+3}
                v_exp_f32 v{b+2}, v{b+2}
                v_exp_f32 v{b+3}, v{b+3}
                v_lshlrev_b32 v{b+4}, 16, v{b+1}
                v_and_b32 v{b+5}, 0xffff0000, v{b+1}
                v_add_f32 v{b+2}, 1.0, v{b+2}
                v_add_f32 v{b+3}, 1.0, v{b+3}
                v_rcp_f32 v{b+2}, v{b+2}
                v_rcp_f32 v{b+3}, v{b+3}
                v_cvt_pk_bf16_f32 v{b+6}, v{b+2}, v{b+3}
                v_lshlrev_b32 v{b+2}, 16, v{b+6}
                v_and_b32 v{b+3}, 0xffff0000, v{b+6}
                v_pk_mul_f32 {vr(b+2,2)}, {vr(b+2,2)}, {vr(b+4,2)}
                v_cvt_pk_bf16_f32 v{R+p}, v{b+2}, v{b+3}"""))
            interleave(a, st)
            a(f"""
            s_nop 1
            v_permlane32_swap_b32 v{R}, v{R+2}
            v_permlane32_swap_b32 v{R+1}, v{R+3}
            global_store_dwordx4 v6, {vr(R,4)}, s[88:89] sc1
            s_add_u32 s88, s88, 2048
            s_addc_u32 s89, s89, 0
            """)
            vm.issue(tag)
    NSG = 32
    for pas in range(2):
        nt = 4 if pas == 0 else 3
        s0 = 16*pas
        for i in range(16*nt): a(f"v_mov_b32 v{ACC+i}, 0")
        vm.wait(a, [f"w{s0}", "b0", "b1"] if pas == 0 else [f"w{s0}"])
        a("s_barrier")
        for t in range(nt): a(f"v_add_u32 v{AT[t]}, {(s0 % G1_R)*8192}, v{AD+t}")
        for t in range(nt):
            for l in rd(0, AX, t): a(l)
        a("s_waitcnt lgkmcnt(4)")
        for t in range(nt):
            for l in rd(1, AY, t): a(l)
        for sl in range(16):
            s = s0 + sl
            last = (sl == 15)
            even = (sl % 2 == 0)
            if not last:
                tags = []
                if even: tags += [f"w{s+1}"] + ([f"w{s+2}"] if s+2 < NSG and sl+2 < 16+1 and (s+2) < s0+16 else [])
                if pas == 0: tags += [f"b{2*sl+2}", f"b{2*sl+1}"]
                if pas == 1 and sl == 6: tags.append("hsta")
                if tags: vm.wait(a, tags)
                if even:
                    a("s_barrier")
                    if pas == 1 and sl == 6: flag_set(a, 1)
                if sl % 8 == 6: stamp(a)
                for t in range(nt): a(f"v_add_u32 v{AT[t]}, {((s+1) % G1_R)*8192}, v{AD+t}")
            extra = []
            if even:
                for nd in (s+8, s+9):
                    if nd < NSG: extra += [("dma", o, nd) for o in g1_dma_ops(nd)]
            if pas == 0:
                for ks in (2*sl+PF, 2*sl+PF+1):
                    if ks < 32: extra.append(("b", ks, None))
            for half, buf in ((0, AX), (1, AY)):
                for t in range(nt):
                    if not last: a(lgk(4*nt - 4))
                    else: a(lgk(2*(nt-1-t) + (2*nt if half == 0 else 0)))
                    a(mf(buf, 2*sl+half, t))
                    if not last:
                        for l in rd(half, buf, t): a(l)
                    if extra:
                        kind, o, tg = extra.pop(0)
                        if kind == "dma": a(o); vm.issue(f"w{tg}")
                        else: bload(o)
            assert not extra
        stamp(a)
        if pas == 1:
            a("s_barrier")
            g2_setup(a)
            for k in range(8): g2_dma_issue(a, vm, k)
        else:
            a("s_nop 7\n s_nop 3")
        epilogue(nt, "hsta" if pas == 0 else "hstb")

G2_RK = 10
def g2_korder():
    ks = []
    for j in range(4):
        for i in range(4): ks.append((j, 16*i))
    for j in range(4):
        for i in range(3): ks.append((j, 64+16*i))
    return ks
KORD = g2_korder()
def g2_setup(a):
    make_srd(a, 52, P_WD, 1792*1024)
    a("""
    s_lshr_b32 s80, s4, 1
    s_lshl_b32 s80, s80, 3
    s_and_b32 s81, s5, 7
    s_add_u32 s80, s80, s81
    s_and_b32 s81, s4, 1
    s_lshl_b32 s81, s81, 2
    s_lshr_b32 s82, s5, 3
    s_add_u32 s81, s81, s82
    s_lshr_b32 s90, s80, 1
    v_lshrrev_b32 v242, 3, v0
    v_bfe_u32 v243, v0, 1, 2
    v_and_b32 v238, 1, v0
    v_and_b32 v239, 2, v242
    v_xor_b32 v243, v243, v239
    v_lshlrev_b32 v242, 10, v242
    v_lshl_add_u32 v242, v238, 4, v242
    v_lshl_add_u32 v240, v243, 5, v242
    s_mul_i32 s84, s50, 458752
    s_lshl_b32 s85, s81, 7
    s_add_u32 s84, s84, s85
    s_mul_i32 s85, s50, 20480
    """)
def g2_dma_ops(k):
    j, fl = KORD[k]
    row = 112*j + fl
    slot = k % G2_RK
    return [f"""s_add_u32 s86, s84, {(row + 8*jj)*1024}
            s_add_u32 m0, s85, {slot*2048 + jj*1024}
            s_nop 0
            buffer_load_dwordx4 v240, s[52:55], s86 offen lds""" for jj in range(2)]
def g2_dma_issue(a, vm, k):
    for o in g2_dma_ops(k): a(o)
    vm.issue(f"d{k}", 2)

def g_gemm2(a, vm):
    a.comment("==== G: GEMM2 ====")
    if "gprio" in OPTS: a("s_setprio 0")
    if "gprio2" in OPTS: a("s_setprio 3")
    ACC = 8; AB = 72; NA = 4; BF = 104; NBK = 10; AD = 232; AT = 234
    NK = 28
    a(f"""
    v_and_b32 v1, 31, v0
    v_lshrrev_b32 v2, 5, v0
    s_mul_i32 s88, s50, 56
    v_add_u32 v2, s88, v2
    v_lshlrev_b32 v2, 10, v2
    v_lshl_add_u32 v1, v1, 4, v2
    s_mul_i32 s88, s80, 229376
    s_add_u32 s88, s88, {HQ}
    s_add_u32 s92, s{P_WS}, s88
    s_addc_u32 s93, s{P_WS+1}, 0
    """)
    def bload(k):
        j, fl = KORD[k]
        off = (14*j + fl//8)*1024
        b = BF + 8*(k % NBK)
        a(f"s_add_u32 s66, s92, {off}\n s_addc_u32 s67, s93, 0")
        a(f"global_load_dwordx4 {vr(b,4)}, v1, s[66:67]")
        a(f"global_load_dwordx4 {vr(b+4,4)}, v1, s[66:67] offset:512")
        vm.issue(f"c{k}", 2)
    PF = NBK - 2
    for k in range(PF): bload(k)
    a(f"""
    s_and_b32 s82, s50, 1
    s_lshr_b32 s83, s50, 1
    s_lshl_b32 s87, s80, 6
    s_lshl_b32 s88, s82, 5
    s_add_u32 s87, s87, s88
    v_and_b32 v3, 31, v0
    v_add_u32 v3, s87, v3
    v_lshrrev_b32 v4, 5, v0
    s_lshl_b32 s88, s83, 5
    s_lshl_b32 s89, s81, 6
    s_add_u32 s88, s88, s89
    v_lshlrev_b32 v4, 2, v4
    v_add_u32 v4, s88, v4
    v_lshlrev_b32 v236, 10, v3
    v_lshl_add_u32 v236, v4, 1, v236
    v_lshlrev_b32 v237, 12, v4
    v_lshl_add_u32 v237, v3, 1, v237
    """)
    for g in range(4):
        a(f"global_load_dwordx2 {vr(184+2*g,2)}, v236, s[{P_X}:{P_X+1}] offset:{16*g}")
    vm.issue("xe", 4)
    a(f"""
    v_lshrrev_b32 v2, 4, v0
    v_and_b32 v3, 1, v2
    v_lshrrev_b32 v2, 1, v2
    v_bfe_u32 v4, v0, 2, 2
    v_and_b32 v5, 3, v0
    v_and_b32 v6, 2, v4
    v_lshl_add_u32 v7, v2, 3, v4
    v_lshlrev_b32 v7, 7, v7
    v_lshl_add_u32 v7, v5, 3, v7
    v_add_u32 v7, s85, v7
    """)
    for mt in range(2):
        a(f"""
        v_add_u32 v2, {2*mt}, v3
        v_xor_b32 v2, v2, v6
        v_lshl_add_u32 v{AD+mt}, v2, 5, v7
        """)
    for i in range(64):
        a(f"v_mov_b32 v{ACC+i}, 0")
    def rd(k, mt):
        dst = AB + 8*(k % NA) + 4*mt
        return [f"ds_read_b64_tr_b16 {vr(dst+2*h2,2)}, v{AD+mt} offset:{(k % G2_RK)*2048+h2*512}" for h2 in range(2)]
    vm.wait(a, ["d0", "d1"])
    for k in range(2):
        for mt in range(2):
            for l in rd(k, mt): a(l)
    nd = 8
    for k in range(NK):
        if k == 8:
            poll(a, 3, group_sreg=90, nflags=16)
        tags = [f"c{k}"]
        if k+2 < NK: tags.append(f"d{k+2}")
        vm.wait(a, tags)
        if k % 8 == 7: stamp(a)
        b = BF + 8*(k % NBK)
        fill = []
        if k+2 < NK: fill = [rd(k+2, 0), rd(k+2, 1)]
        post = []
        if nd < NK and nd <= k + 7:
            post += [("dma", o) for o in g2_dma_ops(nd)]
        if k + PF < NK: post.append(("b", k+PF))
        rem_new = 0
        for mt in range(2):
            later = (1-mt)*2 + (4 if k+1 < NK else 0) + rem_new
            a(lgk(later))
            for nt in range(2):
                D = ACC + 16*(2*mt+nt)
                a(f"v_mfma_f32_32x32x16_bf16 {vr(D,16)}, {vr(AB+8*(k%NA)+4*mt,4)}, {vr(b+4*nt,4)}, {vr(D,16)}")
                if nt == 0 and fill:
                    for l in fill.pop(0): a(l)
                    rem_new += 2
                elif post:
                    kind, o = post.pop(0)
                    if kind == "dma": a(o); vm.issue(f"d{nd}")
                    else: bload(o)
        while post:
            kind, o = post.pop(0)
            if kind == "dma": a(o); vm.issue(f"d{nd}")
            else: bload(o)
        if nd < NK and nd <= k + 7: nd += 1
    stamp(a)
    a("s_barrier\n s_nop 7")
    a(f"""
    s_lshl_b32 s88, s50, 14
    v_lshlrev_b32 v1, 4, v0
    v_add_u32 v2, s88, v1
    """)
    for dst in range(4):
        for k in range(4):
            a(f"ds_write_b128 v2, {vr(ACC+16*dst+4*k,4)} offset:{dst*4096+k*1024}")
    a("s_waitcnt lgkmcnt(0)")

def g_epi(a, vm):
    a.comment("==== G: final epilogue ====")
    a(f"""
    s_lshl_b32 s88, s50, 12
    v_lshlrev_b32 v1, 4, v0
    v_add_u32 v2, s88, v1
    """)
    for src in range(4):
        for k in range(4):
            a(f"ds_read_b128 {vr(72+16*src+4*k,4)}, v2 offset:{src*16384+k*1024}")
    a(f"""
    s_add_u32 s64, s{P_WS}, {ST}
    s_addc_u32 s65, s{P_WS+1}, 0
    """)
    for i in range(16):
        dd = (i&3) + 8*(i>>2)
        a(f"v_add_u32 v{8+i}, {dd*4096}, v237")
        a(f"global_load_ushort v{24+i}, v{8+i}, s[64:65] sc1")
    a("s_waitcnt lgkmcnt(0)")
    for i in range(16):
        a(f"""
        v_add_f32 v{72+i}, v{72+i}, v{88+i}
        v_add_f32 v{104+i}, v{104+i}, v{120+i}
        v_add_f32 v{72+i}, v{72+i}, v{104+i}
        """)
    a("s_mov_b32 s69, 0xbfb8aa3b")
    st = []
    for p in range(8):
        x = 72+2*p; t = 88+2*p; c = 104+p
        st.append(lines(f"""
        v_cvt_pk_bf16_f32 v{c}, v{x}, v{x+1}
        v_lshlrev_b32 v{x}, 16, v{c}
        v_and_b32 v{x+1}, 0xffff0000, v{c}
        v_mul_f32 v{t}, s69, v{x}
        v_mul_f32 v{t+1}, s69, v{x+1}
        v_exp_f32 v{t}, v{t}
        v_exp_f32 v{t+1}, v{t+1}
        v_add_f32 v{t}, 1.0, v{t}
        v_add_f32 v{t+1}, 1.0, v{t+1}
        v_rcp_f32 v{t}, v{t}
        v_rcp_f32 v{t+1}, v{t+1}
        v_mul_f32 v{x}, v{x}, v{t}
        v_mul_f32 v{x+1}, v{x+1}, v{t+1}
        v_cvt_pk_bf16_f32 v{c}, v{x}, v{x+1}
        v_lshlrev_b32 v{x}, 16, v{c}
        v_and_b32 v{x+1}, 0xffff0000, v{c}"""))
    interleave(a, st)
    a("s_waitcnt vmcnt(0)")
    st = []
    for p in range(8):
        x = 72+2*p; t = 88+2*p; c = 104+p; sv = 24+2*p
        st.append(lines(f"""
        v_lshlrev_b32 v{sv}, 16, v{sv}
        v_lshlrev_b32 v{sv+1}, 16, v{sv+1}
        v_mul_f32 v{x}, v{x}, v{sv}
        v_mul_f32 v{x+1}, v{x+1}, v{sv+1}
        v_cvt_pk_bf16_f32 v{c}, v{x}, v{x+1}
        v_lshlrev_b32 v{x}, 16, v{c}
        v_and_b32 v{x+1}, 0xffff0000, v{c}
        v_lshlrev_b32 v{t}, 16, v{184+p}
        v_and_b32 v{t+1}, 0xffff0000, v{184+p}
        v_add_f32 v{x}, v{x}, v{t}
        v_add_f32 v{x+1}, v{x+1}, v{t+1}
        v_cvt_pk_bf16_f32 v{112+p}, v{x}, v{x+1}"""))
    interleave(a, st)
    for g in range(4):
        a(f"global_store_dwordx2 v236, {vr(112+2*g,2)}, s[{P_OUT}:{P_OUT+1}] offset:{16*g}")

def prog_g(a):
    vm = Vm()
    stamp_begin(a)
    g_ln(a, vm)
    stamp(a)
    nonce_get(a)
    if FINE: stamp(a)
    vm.wait(a, "xqst")
    if FINE: stamp(a)
    a("s_barrier")
    flag_set(a, 0)
    if FINE: stamp(a)
    for s in range(8): g1_dma_issue(a, vm, s)
    stamp(a)
    poll(a, 0, group_sreg=48, nflags=16)
    stamp(a)
    g_gemm1(a, vm)
    stamp(a)
    poll(a, 1, group_sreg=90, nflags=16)
    vm.wait(a, "hstb")
    a("s_barrier")
    flag_set(a, 3)
    stamp(a)
    g_gemm2(a, vm)
    poll(a, 2, group_sreg=81, nflags=32)
    stamp(a)
    g_epi(a, vm)
    a("s_waitcnt vmcnt(0)")
    stamp(a)
    stamp_flush(a)
    a("s_branch Lend")

X_T = 0; X_KC = 0; X_U = 33280; X_R = 48640; X_RED = 57088
INV2PI = 0x3e22f983
def x_early(a, vm):
    a(f"""
    s_mov_b32 s71, s50
    s_lshl_b32 s72, s4, 6
    s_lshl_b32 s73, s5, 1
    s_add_u32 s72, s72, s73            ; d0
    v_and_b32 v1, 31, v0
    s_lshl_b32 s73, s72, 7
    s_lshl_b32 s74, s71, 5
    s_add_u32 s73, s73, s74
    v_add_u32 v1, s73, v1
    v_lshlrev_b32 v1, 1, v1
    s_lshl_b32 s73, s72, 1
    v_mov_b32 v2, s73
    """)
    for ch in range(2):
        B = 224 + 8*ch
        for i, p in enumerate((P_ARE, P_AIM, P_BRE, P_BIM, P_CRE, P_CIM)):
            a(f"global_load_ushort v{B+i}, v1, s[{p}:{p+1}] offset:{256*ch}")
        a(f"global_load_ushort v{B+6}, v2, s[{P_LDT}:{P_LDT+1}] offset:{2*ch}")
        a(f"global_load_ushort v{B+7}, v2, s[{P_DSK}:{P_DSK+1}] offset:{2*ch}")
        vm.issue(f"par{ch}", 8)
    a(f"""
    v_min_u32 v4, 55, v0
    v_lshlrev_b32 v4, 7, v4
    s_mul_i32 s6, s3, 7168
    v_add_u32 v4, s6, v4
    s_cmp_eq_u32 s50, 0
    s_cselect_b32 s6, s{P_WG}, s{P_WU}
    s_cselect_b32 s7, s{P_WG+1}, s{P_WU+1}
    s_cmp_eq_u32 s50, 2
    s_cselect_b32 s6, s{P_WD}, s6
    s_cselect_b32 s7, s{P_WD+1}, s7
    global_load_dword v243, v4, s[6:7]
    """)
    vm.issue("t1", 1)

def x_touch_w(a, vm):
    for dj in range(2):
        a(f"""
        s_and_b32 s6, s5, 3
        s_lshl_b32 s6, s6, 7
        s_lshl_b32 s7, s50, 5
        s_add_u32 s6, s6, s7
        s_add_u32 s6, s6, {16*dj}
        v_lshrrev_b32 v180, 2, v0
        v_add_u32 v180, s6, v180
        v_mul_u32_u24 v180, 3584, v180
        v_and_b32 v181, 3, v0
        v_mul_u32_u24 v181, 72, v181
        v_and_b32 v181, 0xfc, v181
        v_add_u32 v180, v180, v181
        s_mul_i32 s6, s49, 224
        v_add_u32 v180, s6, v180
        global_load_dword v243, v180, s[{P_WG}:{P_WG+1}]
        global_load_dword v243, v180, s[{P_WU}:{P_WU+1}]
        """)
    vm.issue("tw", 4)

def x_touch_wd(a, vm):
    a(f"""
    s_and_b32 s6, s5, 7
    s_mul_i32 s6, s6, 224
    s_mul_i32 s7, s50, 56
    s_add_u32 s6, s6, s7
    v_min_u32 v180, 55, v0
    v_add_u32 v180, s6, v180
    v_lshlrev_b32 v180, 10, v180
    s_and_b32 s6, s4, 1
    s_lshl_b32 s6, s6, 2
    s_lshr_b32 s7, s5, 3
    s_add_u32 s6, s6, s7
    s_lshl_b32 s6, s6, 7
    v_add_u32 v180, s6, v180
    global_load_dword v243, v180, s[{P_WD}:{P_WD+1}]
    """)
    vm.issue("twd", 1)

def cmul(a, d, x, y):
    a(f"""
    v_pk_mul_f32 {vr(d,2)}, {vr(x,2)}, {vr(y,2)} op_sel_hi:[1,0]
    v_pk_fma_f32 {vr(d,2)}, {vr(x,2)}, {vr(y,2)}, {vr(d,2)} op_sel:[1,1,0] op_sel_hi:[0,1,1] neg_lo:[1,0,0]
    """)

def x_kgen(a, vm, ch, mid=None):
    a.comment(f"==== X: Kgen ch{ch} ====")
    B = 224 + 8*ch
    vm.wait(a, f"par{ch}")
    for r in range(B, B+8):
        a(f"v_lshlrev_b32 v{r}, 16, v{r}")
    a(f"""
    s_mov_b32 s74, 0x3fb8aa3b
    s_mov_b32 s75, 0x32a57060
    v_mul_f32 v15, s74, v{B+6}
    v_fma_f32 v16, v{B+6}, s74, -v15
    v_fma_f32 v16, v{B+6}, s75, v16
    v_exp_f32 v15, v15
    v_mul_f32 v16, 0x3f317218, v16
    v_fma_f32 v15, v15, v16, v15
    """)
    bf16_round(a, 15, 15)
    a(f"""
    v_mul_f32 v8, v15, v{B}
    v_mul_f32 v9, v15, v{B+1}
    v_mul_f32 v10, v15, v{B+2}
    v_mul_f32 v11, v15, v{B+3}
    """)
    cmul(a, 18, B+4, 10)
    a(f"v_mul_f32 v16, s74, v8\n v_mul_f32 v17, 0x{INV2PI:08x}, v9")
    def cexp_lit(d, p, t):
        return lines(f"""
        v_mul_f32 v{t}, {p}, v16
        v_mul_f32 v{t+1}, {p}, v17
        v_exp_f32 v{t}, v{t}
        v_fract_f32 v{t+1}, v{t+1}
        v_cos_f32 v{d}, v{t+1}
        v_sin_f32 v{d+1}, v{t+1}
        s_nop 0
        v_mul_f32 v{d}, v{d}, v{t}
        v_mul_f32 v{d+1}, v{d+1}, v{t}""")
    interleave(a, [cexp_lit(20, "0x41800000", 30), cexp_lit(22, "0x44000000", 32), cexp_lit(24, "0x45000000", 34)])
    a(f"""
    v_mul_f32 v26, v19, v25
    v_fma_f32 v26, v18, v24, -v26
    v_mul_f32 v27, 0x45000000, v16
    v_max_f32 v27, 0, v27
    v_exp_f32 v27, v27
    v_add_f32 v28, abs(v18), abs(v19)
    v_mul_f32 v27, v27, v28
    v_cmp_gt_u32 vcc, 32, v0
    s_nop 1
    v_cndmask_b32 v26, 0, v26, vcc
    v_cndmask_b32 v27, 0, v27, vcc
    """)
    wave_reduce(a, 26)
    wave_reduce(a, 27)
    if ch == 1: a("s_barrier")
    a(f"""
    s_mul_i32 s78, s50, 9360
    s_add_u32 s78, s78, {X_T}
    v_and_b32 v1, 31, v0
    v_lshlrev_b32 v1, 5, v1
    v_add_u32 v1, s78, v1
    ds_write_b128 v1, v[16:19]
    ds_write_b128 v1, v[20:23] offset:16
    v_readlane_b32 s76, v26, 63
    v_readlane_b32 s77, v27, 63
    s_nop 1
    v_mov_b32 v2, s76
    v_mov_b32 v3, s77
    v_mov_b32 v1, s78
    ds_write_b64 v1, v[2:3] offset:{64*144}
    """)
    ACC = 192
    for i in range(32):
        a(f"v_mov_b32 v{ACC+i}, 0")
    a(f"""
    v_and_b32 v1, 15, v0
    v_cvt_f32_u32 v2, v1
    v_mul_f32 v4, 0x42000000, v2
    v_mov_b32 v3, v2
    v_mov_b32 v5, v4
    v_lshrrev_b32 v6, 4, v0
    v_lshlrev_b32 v6, 7, v6
    v_add_u32 v6, s78, v6
    s_waitcnt lgkmcnt(0)
    """)
    HF = 16; GF = 32
    def eblock(ks, e, TB):
        ops = []
        A = ops.append
        h0, h1, g = TB+8, TB+10, TB+12
        er, t0, t1, t2 = TB+20, TB+22, TB+24, TB+26
        A(f"v_pk_mul_f32 {vr(t0,2)}, {vr(TB,2)}, v[2:3]")
        A(f"v_pk_mul_f32 {vr(t1,2)}, {vr(TB,2)}, v[4:5]")
        A(f"v_exp_f32 v{t0}, v{t0}")
        A(f"v_exp_f32 v{t1}, v{t1}")
        A(f"v_fract_f32 v{t0+1}, v{t0+1}")
        A(f"v_fract_f32 v{t1+1}, v{t1+1}")
        A(f"v_cos_f32 v{h0}, v{t0+1}")
        A(f"v_sin_f32 v{h0+1}, v{t0+1}")
        A(f"v_cos_f32 v{er}, v{t1+1}")
        A(f"v_sin_f32 v{er+1}, v{t1+1}")
        A("s_nop 0")
        A(f"v_pk_mul_f32 {vr(h0,2)}, {vr(h0,2)}, {vr(t0,2)} op_sel_hi:[1,0]")
        A(f"v_pk_mul_f32 {vr(er,2)}, {vr(er,2)}, {vr(t1,2)} op_sel_hi:[1,0]")
        def cm(d, x, y):
            A(f"v_pk_mul_f32 {vr(d,2)}, {vr(x,2)}, {vr(y,2)} op_sel_hi:[1,0]")
            A(f"v_pk_fma_f32 {vr(d,2)}, {vr(x,2)}, {vr(y,2)}, {vr(d,2)} op_sel:[1,1,0] op_sel_hi:[0,1,1] neg_lo:[1,0,0]")
        cm(h1, h0, TB+4)
        cm(g, er, TB+2)
        cm(g+2, g, TB+6)
        cm(g+4, g+2, TB+6)
        cm(g+6, g+4, TB+6)
        def sp(hi, lo, x, t, neg):
            n = "-" if neg else ""
            A(f"v_cvt_pk_bf16_f32 v{hi}, v{x}, {n}v{x+1}")
            A(f"v_lshlrev_b32 v{t}, 16, v{hi}")
            A(f"v_and_b32 v{t+1}, 0xffff0000, v{hi}")
            if neg: A(f"v_pk_add_f32 {vr(t,2)}, {vr(x,2)}, {vr(t,2)} neg_lo:[0,1] neg_hi:[1,1]")
            else:   A(f"v_pk_add_f32 {vr(t,2)}, {vr(x,2)}, {vr(t,2)} neg_lo:[0,1] neg_hi:[0,1]")
            A(f"v_cvt_pk_bf16_f32 v{lo}, v{t}, v{t+1}")
        for ct in range(2):
            sp(HF+(ct*2)*4+e, HF+(ct*2+1)*4+e, h0+2*ct, (t0, t1)[ct], True)
        for rt in range(4):
            sp(GF+(rt*2)*4+e, GF+(rt*2+1)*4+e, g+2*rt, (t2, t0, t1, t2)[rt], False)
        return ops
    TBs = (64, 92, 120, 148)
    for ks in range(2):
        for e in range(4):
            off = (16*ks+e)*32
            a(f"ds_read_b128 {vr(TBs[e],4)}, v6 offset:{off}\n ds_read_b128 {vr(TBs[e]+4,4)}, v6 offset:{off+16}")
        a("s_waitcnt lgkmcnt(0)")
        interleave(a, [eblock(ks, e, TBs[e]) for e in range(4)])
        a("s_nop 1")
        for pas in range(3):
            for rt in range(4):
                for ct in range(2):
                    D = ACC+(rt*2+ct)*4
                    hh = HF+(ct*2)*4; hl = HF+(ct*2+1)*4; gh = GF+(rt*2)*4; gl = GF+(rt*2+1)*4
                    x, y = ((hh, gh), (hl, gh), (hh, gl))[pas]
                    a(f"v_mfma_f32_16x16x32_bf16 {vr(D,4)}, {vr(x,4)}, {vr(y,4)}, {vr(D,4)}")
        if ks == 0 and mid: mid()
    a(f"""
    v_and_b32 v1, 15, v0
    v_mul_u32_u24 v1, 144, v1
    v_lshrrev_b32 v4, 4, v0
    v_lshl_add_u32 v1, v4, 4, v1
    v_add_u32 v1, s78, v1
    s_lshl_b32 s73, s71, 6
    v_add_u32 v7, s73, v0
    v_sub_u32 v2, 2047, v7
    """)
    for e in range(8):
        a(f"""
        v_subrev_u32 v8, {256*e}, v2
        v_cvt_f32_u32 v8, v8
        v_cvt_pk_bf16_f32 v8, v8, v8
        v_lshlrev_b32 v8, 16, v8
        v_cvt_u32_f32 v8, v8
        v_lshrrev_b32 v9, 5, v8
        v_and_b32 v10, 31, v8
        v_mul_u32_u24 v9, 144, v9
        v_lshl_add_u32 v{64+e}, v10, 2, v9
        """)
    for rt in range(4):
        for ct in range(2):
            D = ACC+(rt*2+ct)*4
            a(f"ds_write_b128 v1, {vr(D,4)} offset:{rt*16*144 + ct*64}")
    a("v_mov_b32 v72, 0")
    a("s_waitcnt lgkmcnt(0)\n s_barrier")
    for e in range(8):
        for qq in range(4):
            a(f"ds_read_b32 v{16+e*4+qq}, v{64+e} offset:{X_T + qq*9360}")
    for qq in range(4):
        a(f"ds_read_b32 v{48+qq}, v72 offset:{X_T + qq*9360 + 64*144 + 4}")
    a(f"""
    v_lshlrev_b32 v3, 1, v7
    v_add_u32 v3, {X_R + ch*4224}, v3
    v_mov_b32 v56, 0
    v_mov_b32 v57, 0
    v_mov_b32 v58, 0
    v_mov_b32 v59, 0
    v_mov_b32 v4, {X_R + ch*4224}
    ds_write_b128 v4, v[56:59] offset:4096
    ds_write_b128 v4, v[56:59] offset:4112
    ds_write_b128 v4, v[56:59] offset:4128
    ds_write_b128 v4, v[56:59] offset:4144
    s_waitcnt lgkmcnt(4)
    v_add_f32 v48, v48, v49
    v_add_f32 v50, v50, v51
    v_add_f32 v48, v48, v50
    v_frexp_exp_i32_f32 v49, v48
    v_sub_u32 v50, 14, v49
    v_subrev_u32 v51, 14, v49
    v_ldexp_f32 v50, 1.0, v50
    v_ldexp_f32 v{240+ch}, 1.0, v51
    """)
    for e in range(8):
        b = 16+e*4
        a(f"""
        v_add_f32 v{b}, v{b}, v{b+1}
        v_add_f32 v{b+2}, v{b+2}, v{b+3}
        v_add_f32 v{b}, v{b}, v{b+2}
        v_mul_f32 v{b}, v50, v{b}
        v_cvt_f16_f32 v{b}, v{b}
        ds_write_b16 v3, v{b} offset:{512*e}
        """)

def x_uload(a, vm):
    a(f"""
    s_lshl_b32 s73, s50, 6
    v_add_u32 v1, s73, v0
    s_lshr_b32 s75, s72, 3
    s_lshl_b32 s75, s75, 11
    s_and_b32 s74, s72, 7
    s_lshl_b32 s74, s74, 1
    s_add_u32 s75, s75, s74
    s_add_u32 s74, s{P_WS}, s75
    s_addc_u32 s75, s{P_WS+1}, 0
    v_lshrrev_b32 v2, 7, v1
    v_lshlrev_b32 v2, 17, v2
    v_and_b32 v3, 127, v1
    v_lshl_add_u32 v2, v3, 4, v2
    """)
    for i in range(8):
        a(f"global_load_dword v{8+i}, v2, s[74:75] sc1")
        if i < 7: a("v_add_u32 v2, 0x40000, v2")
    vm.issue("u", 8)
    a(f"""
    v_mov_b32 v56, 0
    v_mov_b32 v57, 0
    v_mov_b32 v58, 0
    v_mov_b32 v59, 0
    v_cmp_gt_u32 vcc, 160, v1
    v_lshlrev_b32 v3, 4, v1
    v_add_u32 v3, {X_U}, v3
    s_and_saveexec_b64 s[76:77], vcc
    ds_write_b128 v3, v[56:59]
    ds_write_b128 v3, v[56:59] offset:7680
    s_mov_b64 exec, s[76:77]
    v_lshrrev_b32 v3, 5, v1
    v_mul_u32_u24 v3, 80, v3
    v_and_b32 v4, 31, v1
    v_lshl_add_u32 v3, v4, 1, v3
    v_add_u32 v3, {X_U+2560}, v3
    """)

def x_uwrite(a, vm):
    vm.wait(a, "u")
    for i in range(8):
        a(f"""
        v_lshlrev_b32 v16, 16, v{8+i}
        v_and_b32 v17, 0xffff0000, v{8+i}
        v_cvt_f16_f32 v16, v16
        v_cvt_f16_f32 v17, v17
        ds_write_b16 v3, v16 offset:{i*8*80}
        ds_write_b16 v3, v17 offset:{7680 + i*8*80}
        """)

def kc_build_one(a, vz, ch):
    a(f"""
    v_lshlrev_b32 v5, 4, v{vz}
    v_add_u32 v4, {X_KC}, v5
    v_add_u32 v5, {X_R + ch*4224}, v5
    ds_read_b128 v[64:67], v5
    ds_read_b128 v[68:71], v5 offset:16
    s_waitcnt lgkmcnt(0)
    """)
    for c in range(8):
        sft = 7-c
        dst = 72+4*c
        for k in range(4):
            if sft % 2 == 0: a(f"v_mov_b32 v{dst+k}, v{64+sft//2+k}")
            else: a(f"v_alignbit_b32 v{dst+k}, v{64+sft//2+k+1}, v{64+sft//2+k}, 16")
        a(f"ds_write_b128 v4, {vr(dst,4)} offset:{c*4160}")

def x_kc(a, ch):
    a(f"s_lshl_b32 s74, s71, 6\n v_add_u32 v1, s74, v0")
    kc_build_one(a, 1, ch)
    Ls = a.newlabel("kcskip")
    a(f"""
    s_cmp_lg_u32 s71, 0
    s_cbranch_scc1 {Ls}
    v_cmp_gt_u32 vcc, 3, v0
    s_and_saveexec_b64 s[76:77], vcc
    v_add_u32 v2, 256, v0
    """)
    kc_build_one(a, 2, ch)
    a("s_mov_b64 exec, s[76:77]")
    a.label(Ls)

def x_conv(a, vm, ch):
    a.comment(f"==== X: conv ch{ch} ====")
    ACC0 = 192; ACC1 = 208
    a(f"""
    v_and_b32 v1, 31, v0
    v_lshrrev_b32 v2, 5, v0
    v_and_b32 v3, 7, v1
    v_lshrrev_b32 v4, 3, v1
    v_mul_u32_u24 v3, 4160, v3
    v_sub_u32 v4, v2, v4
    v_add_u32 v4, 255, v4
    v_lshl_add_u32 v3, v4, 4, v3
    s_lshl_b32 s73, s71, 9
    s_add_u32 s73, s73, {64*7+2048}
    s_sub_u32 s74, {X_KC}, s73
    v_add_u32 v5, s74, v3
    v_mul_u32_u24 v6, 80, v1
    v_lshl_add_u32 v6, v2, 4, v6
    s_lshl_b32 s73, s71, 3
    s_sub_u32 s73, 25, s73
    s_mul_i32 s73, s73, 80
    s_add_u32 s73, s73, {X_U + ch*7680}
    v_add_u32 v6, s73, v6
    """)
    for i in range(32):
        a(f"v_mov_b32 v{ACC0+i}, 0")
    def reads(i, base):
        for ks in range(2):
            a(f"ds_read_b128 {vr(base+ks*16,4)}, v5 offset:{64*(7-i)+32*ks+2048}")
            a(f"ds_read_b128 {vr(base+ks*16+4,4)}, v5 offset:{64*(7-i)+32*ks}")
            a(f"ds_read_b128 {vr(base+ks*16+8,4)}, v6 offset:{(7-i)*80+ks*32}")
            a(f"ds_read_b128 {vr(base+ks*16+12,4)}, v6 offset:{(7-i)*80+2560+ks*32}")
    reads(0, 8)
    for i in range(8):
        base = 8 + 32*(i&1)
        if i < 7:
            reads(i+1, 8+32*((i+1)&1))
            a("s_waitcnt lgkmcnt(8)")
        else:
            a("s_waitcnt lgkmcnt(0)")
        for ks in range(2):
            An = base+ks*16; Af = An+4; B0 = An+8; B1 = An+12
            a(f"v_mfma_f32_32x32x16_f16 {vr(ACC0,16)}, {vr(An,4)}, {vr(B0,4)}, {vr(ACC0,16)}")
            a(f"v_mfma_f32_32x32x16_f16 {vr(ACC1,16)}, {vr(An,4)}, {vr(B1,4)}, {vr(ACC1,16)}")
            a(f"v_mfma_f32_32x32x16_f16 {vr(ACC1,16)}, {vr(Af,4)}, {vr(B0,4)}, {vr(ACC1,16)}")
    a(f"""
    v_lshlrev_b32 v1, 4, v0
    s_nop 7
    """)
    for dq in range(4):
        L = a.newlabel("rs")
        a(f"""
        s_cmp_eq_u32 s71, {dq}
        s_cbranch_scc1 {L}
        s_sub_u32 s73, s71, {dq+1}
        s_and_b32 s73, s73, 3
        s_lshl_b32 s73, s73, 11
        s_add_u32 s73, s73, {X_RED + dq*6144}
        v_add_u32 v2, s73, v1
        ds_write_b128 v2, {vr(ACC0+8*dq,4)}
        ds_write_b128 v2, {vr(ACC0+8*dq+4,4)} offset:1024
        """)
        a.label(L)
    Ld = a.newlabel("mvd")
    for dq in range(4):
        L = a.newlabel("mv")
        a(f"s_cmp_lg_u32 s71, {dq}\n s_cbranch_scc1 {L}")
        for i in range(8): a(f"v_mov_b32 v{8+i}, v{ACC0+8*dq+i}")
        a(f"s_branch {Ld}")
        a.label(L)
    a.label(Ld)
    a(f"""
    s_waitcnt lgkmcnt(0)
    s_barrier
    s_mul_i32 s73, s71, 6144
    s_add_u32 s73, s73, {X_RED}
    v_add_u32 v2, s73, v1
    """)
    for sl in range(3):
        a(f"ds_read_b128 {vr(16+8*sl,4)}, v2 offset:{sl*2048}")
        a(f"ds_read_b128 {vr(20+8*sl,4)}, v2 offset:{sl*2048+1024}")
    a(f"""
    v_and_b32 v3, 31, v0
    v_lshrrev_b32 v4, 5, v0
    s_lshr_b32 s73, s71, 1
    s_lshl_b32 s73, s73, 5
    s_and_b32 s74, s71, 1
    s_lshl_b32 s74, s74, 4
    v_add_u32 v5, s73, v3
    v_mul_u32_u24 v6, 80, v5
    v_lshl_add_u32 v6, v4, 3, v6
    s_lshl_b32 s76, s74, 1
    s_add_u32 s75, s76, {X_U + ch*7680 + 2560}
    v_add_u32 v6, s75, v6
    ds_read_b64 v[40:41], v6
    ds_read_b64 v[42:43], v6 offset:16
    v_lshlrev_b32 v5, 5, v5
    v_lshl_add_u32 v5, v4, 2, v5
    v_add_u32 v5, s74, v5
    v_lshlrev_b32 v5, 1, v5
    s_add_u32 s75, s72, {ch}
    s_lshl_b32 s75, s75, 12
    s_add_u32 s74, s{P_WS}, s75
    s_addc_u32 s75, s{P_WS+1}, 0
    s_add_u32 s74, s74, {ST}
    s_addc_u32 s75, s75, 0
    s_waitcnt lgkmcnt(0)
    """)
    DSK = 224 + 8*ch + 7
    for i in range(8):
        a(f"""
        v_add_f32 v{8+i}, v{8+i}, v{16+i}
        v_add_f32 v{24+i}, v{24+i}, v{32+i}
        v_add_f32 v{8+i}, v{8+i}, v{24+i}
        v_mul_f32 v{8+i}, v{240+ch}, v{8+i}
        """)
    st = []
    for p in range(4):
        st.append(lines(f"""
        v_cvt_f32_f16 v{44+2*p}, v{40+p}
        v_cvt_f32_f16_sdwa v{45+2*p}, v{40+p} dst_sel:DWORD dst_unused:UNUSED_PAD src0_sel:WORD_1
        v_mul_f32 v{44+2*p}, v{DSK}, v{44+2*p}
        v_mul_f32 v{45+2*p}, v{DSK}, v{45+2*p}
        v_cvt_pk_bf16_f32 v{52+p}, v{44+2*p}, v{45+2*p}
        v_cvt_pk_bf16_f32 v{56+p}, v{8+2*p}, v{9+2*p}
        v_lshlrev_b32 v{44+2*p}, 16, v{52+p}
        v_and_b32 v{45+2*p}, 0xffff0000, v{52+p}
        v_lshlrev_b32 v{8+2*p}, 16, v{56+p}
        v_and_b32 v{9+2*p}, 0xffff0000, v{56+p}
        v_add_f32 v{8+2*p}, v{8+2*p}, v{44+2*p}
        v_add_f32 v{9+2*p}, v{9+2*p}, v{45+2*p}
        v_cvt_pk_bf16_f32 v{60+p}, v{8+2*p}, v{9+2*p}"""))
    interleave(a, st)
    a(f"""
    global_store_dwordx2 v5, v[60:61], s[74:75] sc1
    global_store_dwordx2 v5, v[62:63], s[74:75] offset:16 sc1
    """)
    vm.issue("sst", 2)

def prog_x(a):
    vm = Vm()
    stamp_begin(a)
    if "xprio" in OPTS: a("s_setprio 2")
    x_early(a, vm)
    if "xskip" in OPTS:
        nonce_get(a)
        a("s_waitcnt vmcnt(0)\n s_barrier")
        flag_set(a, 2)
        a("s_waitcnt vmcnt(0)")
        stamp(a)
        stamp_flush(a)
        return
    x_kgen(a, vm, 0, mid=lambda: x_touch_w(a, vm))
    stamp(a)
    if "xprio3" in OPTS: a("s_setprio 0")
    x_kgen(a, vm, 1, mid=lambda: x_touch_wd(a, vm))
    stamp(a)
    if "xprio2" in OPTS: a("s_setprio 2")
    nonce_get(a)
    a("s_waitcnt lgkmcnt(0)")
    poll(a, 0)
    stamp(a)
    x_uload(a, vm)
    x_kc(a, 0)
    x_uwrite(a, vm)
    a("s_waitcnt lgkmcnt(0)\n s_barrier")
    stamp(a)
    x_conv(a, vm, 0)
    stamp(a)
    a("s_barrier")
    x_kc(a, 1)
    a("s_waitcnt lgkmcnt(0)\n s_barrier")
    x_conv(a, vm, 1)
    stamp(a)
    vm.wait(a, "sst")
    a("s_barrier")
    flag_set(a, 2)
    a("s_waitcnt vmcnt(0)")
    stamp(a)
    stamp_flush(a)

def build():
    a = Asm()
    prologue(a)
    prog_g(a)
    a.label("LprogX")
    prog_x(a)
    a.label("Lend")
    a("s_endpgm")
    hdr = HEADER_COMMENT + f"; @launch grid=(512,1,1) block=(256,1,1) lds={LDS_BYTES}\n"
    txt = hdr + '.amdgcn_target "amdgcn-amd-amdhsa--gfx950"\n.text\n' + kernel_header(KNAME) + a.text()
    txt += '.section .rodata,"a"\n' + kernel_desc(KNAME)
    return txt

if __name__ == "__main__":
    opts = sys.argv[2].split(",") if len(sys.argv) > 2 else []
    OPTS = opts
    if "stamps" in opts: STAMPS = True
    if "fine" in opts: FINE = True
    if "dbgx" in opts: DBGWG[0] = 264
    open(sys.argv[1], "w").write(build())
```

```python
import sys, copy
from asmlib import *

XQ = 0
HQ = 0x200000
ST = 0x900000
FLG = 0xC00000
P_X, P_ARE, P_AIM, P_BRE, P_BIM, P_CRE, P_CIM, P_LDT = 16,18,20,22,24,26,28,30
P_DSK, P_BX, P_WG, P_WU, P_WD, P_OUT, P_DBG, P_WS = 32,34,36,38,40,42,44,46
KNAME = "recurrent_scan__ssm_conv_s4__glu_gated_glu__prompt_kernel"
LDS_BYTES = 81920
OPTS = []
DBGWG = [8]
SLEEP = 4
FINE = False
STAMPS = False
_stamp_n = [0]
def stamp(a, name=""):
    if not STAMPS: return
    i = _stamp_n[0]; _stamp_n[0] += 1
    a(f"s_memtime s[98:99]\n s_waitcnt lgkmcnt(0)\n v_writelane_b32 v255, s98, {i}")
def stamp_begin(a):
    _stamp_n[0] = 0
    if STAMPS: a("s_memrealtime s[98:99]\n s_waitcnt lgkmcnt(0)\n v_writelane_b32 v255, s98, 62")
    stamp(a)
def stamp_flush(a):
    if not STAMPS: return
    if "dbgst" in OPTS:
        L = a.newlabel("dbs")
        a(f"""
        s_cmp_lg_u32 s2, {DBGWG[0]}
        s_cbranch_scc1 {L}
        s_cmp_lg_u32 s50, 0
        s_cbranch_scc1 {L}
        v_readlane_b32 s98, v255, 0
        s_nop 3
        v_subrev_u32 v254, s98, v255
        v_lshlrev_b32 v253, 2, v0
        v_add_u32 v253, 4, v253
        v_cmp_gt_u32 vcc, 15, v0
        v_cmp_lt_u32 s[96:97], 0, v0
        s_nop 1
        s_and_b64 vcc, vcc, s[96:97]
        s_and_saveexec_b64 s[96:97], vcc
        global_store_dword v253, v254, s[{P_DBG}:{P_DBG+1}]
        s_mov_b64 exec, s[96:97]
        """)
        a.label(L)
        return
    a("s_memrealtime s[98:99]\n s_waitcnt lgkmcnt(0)\n v_writelane_b32 v255, s98, 63")
    a(f"v_writelane_b32 v255, 0, {_stamp_n[0]}")
    a(f"""
    s_lshl_b32 s98, s2, 2
    s_add_u32 s98, s98, s50
    s_lshl_b32 s98, s98, 8
    s_add_u32 s98, s98, 0x2000000
    s_add_u32 s96, s{P_WS}, s98
    s_addc_u32 s97, s{P_WS+1}, 0
    v_lshlrev_b32 v254, 2, v0
    global_store_dword v254, v255, s[96:97]
    """)

class Vm:
    STORES = ("xqst", "hst", "hsta", "hstb", "sst")
    def __init__(self): self.ops = []
    def issue(self, tag, n=1):
        for _ in range(n): self.ops.append(tag)
    def wait(self, a, tags):
        if isinstance(tags, str): tags = [tags]
        if any(t in self.STORES for t in tags):
            a("s_waitcnt vmcnt(0)")
            return
        last = -1
        for i, t in enumerate(self.ops):
            if t in tags: last = i
        assert last >= 0, tags
        n = sum(1 for t in self.ops[last+1:] if t not in self.STORES)
        a(f"s_waitcnt vmcnt({min(n,63)})")

def lgk(n): return f"s_waitcnt lgkmcnt({min(n,15)})"

def wave_reduce(a, v, op="add"):
    for sh in (1,2,4,8):
        a(f"s_nop 1\n v_{op}_f32_dpp v{v}, v{v}, v{v} row_shr:{sh} row_mask:0xf bank_mask:0xf bound_ctrl:0")
    a(f"s_nop 1\n v_{op}_f32_dpp v{v}, v{v}, v{v} row_bcast:15 row_mask:0xa bank_mask:0xf")
    a(f"s_nop 1\n v_{op}_f32_dpp v{v}, v{v}, v{v} row_bcast:31 row_mask:0xc bank_mask:0xf")
    a("s_nop 1")
def bf16_round(a, dst, src):
    a(f"v_cvt_pk_bf16_f32 v{dst}, v{src}, v{src}\n v_lshlrev_b32 v{dst}, 16, v{dst}")
def make_srd(a, s, ptr, nbytes):
    a(f"""
    s_mov_b32 s{s}, s{ptr}
    s_and_b32 s{s+1}, s{ptr+1}, 0xffff
    s_mov_b32 s{s+2}, {nbytes}
    s_mov_b32 s{s+3}, 0x00020000
    """)
def interleave(a, streams):
    n = max(len(s) for s in streams)
    for k in range(n):
        for s in streams:
            if k < len(s): a(s[k])
def lines(s): return [l.strip() for l in s.strip("\n").split("\n") if l.strip()]

PT = (246, 248, 250, 252)
def nonce_publish(a):
    L = a.newlabel("np")
    a(f"""
    s_or_b32 s6, s2, s50
    s_cmp_lg_u32 s6, 0
    s_cbranch_scc1 {L}
    s_memrealtime s[6:7]
    s_waitcnt lgkmcnt(0)
    s_or_b32 s6, s6, 1
    v_mov_b32 v244, 0
    v_mov_b32 v246, s6
    v_mov_b32 v247, s7
    s_mov_b64 s[6:7], exec
    s_mov_b64 exec, 1
    global_store_dwordx2 v244, v[246:247], s[{P_DBG}:{P_DBG+1}] sc1
    s_mov_b64 exec, s[6:7]
    """)
    a.label(L)
def nonce_get(a):
    L = a.newlabel("ng"); Lp = a.newlabel("ngp"); Ld = a.newlabel("ngd")
    a(f"""
    s_cmp_lg_u32 s50, 0
    s_cbranch_scc1 {L}
    v_mov_b32 v244, 0
    s_mov_b32 s6, 0
    """)
    a.label(Lp)
    a(f"""
    global_load_dwordx2 v[246:247], v244, s[{P_DBG}:{P_DBG+1}] sc1
    s_waitcnt vmcnt(0)
    v_cmp_eq_u32 vcc, 0, v246
    s_add_u32 s6, s6, 1
    s_cmp_gt_u32 s6, 200000
    s_cbranch_scc1 {Ld}
    s_cbranch_vccz {Ld}
    s_sleep 2
    s_branch {Lp}
    """)
    a.label(Ld)
    a("v_readfirstlane_b32 s8, v246\n v_readfirstlane_b32 s9, v247")
    a.label(L)
def flag_set(a, phase):
    L = a.newlabel("fs")
    a(f"s_cmp_lg_u32 s50, 0\n s_cbranch_scc1 {L}")
    if phase != 2: a("s_lshl_b32 s6, s48, 4\n s_add_u32 s6, s6, s49")
    else: a("s_lshl_b32 s6, s4, 5\n s_add_u32 s6, s6, s5")
    a(f"""
    s_lshl_b32 s6, s6, 3
    s_add_u32 s6, s6, {FLG + phase*2048}
    v_mov_b32 v244, s6
    v_mov_b32 v246, s8
    v_mov_b32 v247, s9
    s_mov_b64 s[6:7], exec
    s_mov_b64 exec, 1
    global_store_dwordx2 v244, v[246:247], s[{P_WS}:{P_WS+1}] sc1
    s_mov_b64 exec, s[6:7]
    """)
    a.label(L)
def poll(a, phase, group_sreg=None, nflags=256):
    L = a.newlabel("pl"); Lp = a.newlabel("plp"); Ld = a.newlabel("pld")
    a(f"s_cmp_lg_u32 s50, 0\n s_cbranch_scc1 {L}")
    if group_sreg is None:
        a(f"v_lshlrev_b32 v244, 3, v0\n v_add_u32 v244, {FLG + phase*2048}, v244")
        nl = 4
    else:
        a(f"""
        v_and_b32 v244, {nflags-1}, v0
        v_lshlrev_b32 v244, 3, v244
        s_mul_i32 s6, s{group_sreg}, {nflags*8}
        s_add_u32 s6, s6, {FLG + phase*2048}
        v_add_u32 v244, s6, v244
        """)
        nl = 1
    a("s_mov_b32 s6, 0")
    a.label(Lp)
    for k in range(nl):
        a(f"global_load_dwordx2 v[{PT[k]}:{PT[k]+1}], v244, s[{P_WS}:{P_WS+1}] offset:{k*512} sc1")
    a("s_waitcnt vmcnt(0)")
    for k in range(nl):
        a(f"v_xor_b32 v{PT[k]}, s8, v{PT[k]}\n v_xor_b32 v{PT[k]+1}, s9, v{PT[k]+1}")
    for k in range(nl):
        if k > 0: a(f"v_or_b32 v{PT[0]}, v{PT[0]}, v{PT[k]}")
        a(f"v_or_b32 v{PT[0]}, v{PT[0]}, v{PT[k]+1}")
    a(f"""
    v_cmp_ne_u32 vcc, 0, v{PT[0]}
    s_add_u32 s6, s6, 1
    s_cmp_gt_u32 s6, 200000
    s_cbranch_scc1 {Ld}
    s_cbranch_vccz {Ld}
    s_sleep {SLEEP}
    s_branch {Lp}
    """)
    a.label(Ld)
    a.label(L)
    a("s_barrier")

def prologue(a):
    a(f"""
    s_cmp_ge_u32 s2, 512
    s_cbranch_scc1 Lend
    s_load_dwordx16 s[16:31], s[0:1], 0
    s_load_dwordx16 s[32:47], s[0:1], 64
    v_lshrrev_b32 v1, 6, v0
    v_and_b32 v0, 63, v0
    v_readfirstlane_b32 s50, v1
    s_and_b32 s3, s2, 255
    s_and_b32 s4, s3, 7
    s_lshr_b32 s5, s3, 3
    s_lshr_b32 s6, s4, 1
    s_lshl_b32 s6, s6, 2
    s_and_b32 s7, s5, 3
    s_add_u32 s48, s6, s7
    s_and_b32 s6, s4, 1
    s_lshl_b32 s6, s6, 3
    s_lshr_b32 s7, s5, 2
    s_add_u32 s49, s6, s7
    s_waitcnt lgkmcnt(0)
    s_cmp_ge_u32 s2, 256
    s_cbranch_scc1 LprogX
    """)

G1_R = 10
def g_ln(a, vm):
    a.comment("==== G: LN (2 rows per wave) ====")
    a(f"""
    s_lshl_b32 s51, s48, 7
    s_lshl_b32 s52, s49, 3
    s_add_u32 s91, s51, s52
    s_lshl_b32 s51, s50, 1
    s_add_u32 s51, s51, s91
    s_lshl_b32 s52, s51, 10
    s_add_u32 s92, s{P_X}, s52
    s_addc_u32 s93, s{P_X+1}, 0
    v_lshlrev_b32 v3, 4, v0
    global_load_dwordx4 v[4:7], v3, s[92:93]
    global_load_dwordx4 v[44:47], v3, s[92:93] offset:1024
    """)
    vm.issue("x", 2)
    nonce_publish(a)
    g1_dma_setup(a)
    vm.wait(a, "x")
    def row(B, sreg):
        o = []
        for i in range(4):
            o += [f"v_lshlrev_b32 v{B+4+2*i}, 16, v{B+i}", f"v_and_b32 v{B+5+2*i}, 0xffff0000, v{B+i}"]
        o += lines(f"""
        v_add_f32 v{B+12}, v{B+4}, v{B+5}
        v_add_f32 v{B+13}, v{B+6}, v{B+7}
        v_add_f32 v{B+14}, v{B+8}, v{B+9}
        v_add_f32 v{B+15}, v{B+10}, v{B+11}
        v_add_f32 v{B+12}, v{B+12}, v{B+13}
        v_add_f32 v{B+14}, v{B+14}, v{B+15}
        v_add_f32 v{B+12}, v{B+12}, v{B+14}""")
        def red(v):
            r = []
            for sh in (1,2,4,8):
                r += ["s_nop 0", f"v_add_f32_dpp v{v}, v{v}, v{v} row_shr:{sh} row_mask:0xf bank_mask:0xf bound_ctrl:0"]
            r += ["s_nop 0", f"v_add_f32_dpp v{v}, v{v}, v{v} row_bcast:15 row_mask:0xa bank_mask:0xf"]
            r += ["s_nop 0", f"v_add_f32_dpp v{v}, v{v}, v{v} row_bcast:31 row_mask:0xc bank_mask:0xf", "s_nop 0"]
            return r
        o += red(B+12)
        o += [f"v_readlane_b32 s{sreg}, v{B+12}, 63", "s_nop 1", f"v_mov_b32 v{B+13}, s{sreg}", f"v_mul_f32 v{B+13}, 0x3b000000, v{B+13}"]
        for i in range(8): o.append(f"v_sub_f32 v{B+16+i}, v{B+4+i}, v{B+13}")
        o.append(f"v_mul_f32 v{B+12}, v{B+16}, v{B+16}")
        for i in range(1,8): o.append(f"v_fmac_f32 v{B+12}, v{B+16+i}, v{B+16+i}")
        o += red(B+12)
        o += [f"v_readlane_b32 s{sreg+1}, v{B+12}, 63", "s_nop 1", f"v_mov_b32 v{B+14}, s{sreg+1}", f"v_mul_f32 v{B+14}, 0x3b000000, v{B+14}"]
        def rnd(v): return [f"v_cvt_pk_bf16_f32 v{v}, v{v}, v{v}", f"v_lshlrev_b32 v{v}, 16, v{v}"]
        o += rnd(B+14) + [f"v_add_f32 v{B+14}, 0x3727c5ac, v{B+14}"] + rnd(B+14) + [f"v_sqrt_f32 v{B+14}, v{B+14}", "s_nop 0"] + rnd(B+14)
        o += [f"v_rcp_f32 v{B+15}, v{B+14}"] + rnd(B+13)
        for i in range(8): o.append(f"v_sub_f32 v{B+16+i}, v{B+4+i}, v{B+13}")
        for i in range(4): o.append(f"v_cvt_pk_bf16_f32 v{B+24+i}, v{B+16+2*i}, v{B+17+2*i}")
        for i in range(4): o += [f"v_lshlrev_b32 v{B+16+2*i}, 16, v{B+24+i}", f"v_and_b32 v{B+17+2*i}, 0xffff0000, v{B+24+i}"]
        for i in range(8):
            o += [f"v_mul_f32 v{B+4+i}, v{B+16+i}, v{B+15}", f"v_fma_f32 v{B+28+i}, -v{B+4+i}, v{B+14}, v{B+16+i}", f"v_fma_f32 v{B+4+i}, v{B+28+i}, v{B+15}, v{B+4+i}"]
        for i in range(4): o.append(f"v_cvt_pk_bf16_f32 v{B+i}, v{B+4+2*i}, v{B+5+2*i}")
        return o
    interleave(a, [row(4, 94), row(44, 96)])
    LN_SCR = 65536
    a(f"""
    s_mul_i32 s94, s50, 2080
    s_add_u32 s94, s94, {LN_SCR}
    v_lshlrev_b32 v3, 4, v0
    v_add_u32 v3, s94, v3
    ds_write_b128 v3, v[4:7]
    ds_write_b128 v3, v[44:47] offset:1040
    v_and_b32 v8, 7, v0
    v_lshrrev_b32 v9, 3, v0
    s_lshl_b32 s94, s50, 4
    v_add_u32 v9, s94, v9             ; group g = 16w + (lane>>3)  (+8 second)
    v_mul_u32_u24 v10, 1040, v8
    v_lshl_add_u32 v10, v9, 4, v10
    v_add_u32 v10, {LN_SCR}, v10
    s_waitcnt lgkmcnt(0)
    s_barrier
    ds_read_b128 v[4:7], v10
    ds_read_b128 v[12:15], v10 offset:128
    v_lshlrev_b32 v11, 11, v9
    s_lshl_b32 s94, s49, 3
    v_add_u32 v12+0, s94, v8
    """.replace("v12+0", "v16"))
    a(f"""
    v_lshl_add_u32 v11, v16, 4, v11
    s_lshl_b32 s94, s48, 17
    s_add_u32 s92, s{P_WS}, s94
    s_addc_u32 s93, s{P_WS+1}, 0
    v_add_u32 v17, 16384, v11
    s_waitcnt lgkmcnt(0)
    global_store_dwordx4 v11, v[4:7], s[92:93] sc1
    global_store_dwordx4 v17, v[12:15], s[92:93] sc1
    """)
    vm.issue("xqst", 2)

def g1_dma_setup(a):
    make_srd(a, 52, P_WG, 512*3584)
    make_srd(a, 56, P_WU, 512*3584)
    a("""
    v_lshrrev_b32 v242, 3, v0          ; r_local
    v_bfe_u32 v243, v0, 1, 2           ; chunk'
    v_and_b32 v238, 1, v0
    v_bfe_u32 v239, v242, 1, 1
    v_xor_b32 v239, v243, v239
    v_xor_b32 v243, 2, v239
    v_mul_u32_u24 v242, 3584, v242
    v_lshl_add_u32 v242, v238, 4, v242
    v_lshl_add_u32 v240, v239, 5, v242
    v_lshl_add_u32 v241, v243, 5, v242
    s_mul_i32 s60, s49, 224
    s_mul_i32 s61, s50, 28672
    s_add_u32 s60, s60, s61
    s_lshl_b32 s62, s50, 10
    """)
def g1_dma_ops(stage):
    slot = stage % G1_R
    so = (stage % 16)*32*3584 + (stage // 16)*128
    return [f"""s_add_u32 s61, s60, {so}
            s_add_u32 m0, s62, {slot*8192}
            s_nop 0
            buffer_load_dwordx4 v240, s[52:55], s61 offen lds""",
            f"""s_add_u32 m0, s62, {slot*8192 + 4096}
            s_nop 0
            buffer_load_dwordx4 v241, s[56:59], s61 offen lds"""]
def g1_dma_issue(a, vm, stage):
    for o in g1_dma_ops(stage): a(o)
    vm.issue(f"w{stage}", 2)

def g_gemm1(a, vm):
    a.comment("==== G: GEMM1 (F-split) ====")
    if "gprio" in OPTS: a("s_setprio 3")
    BF = 8; ACC = 136; AX = 200; AY = 216; AD = 232
    AT = [2,3,4,5]
    a(f"""
    s_lshl_b32 s63, s50, 5
    s_lshl_b32 s64, s48, 7
    s_add_u32 s63, s63, s64
    s_lshl_b32 s64, s50, 5
    v_and_b32 v1, 31, v0
    v_add_u32 v1, s64, v1
    v_lshrrev_b32 v2, 5, v0
    v_lshlrev_b32 v2, 11, v2
    v_lshl_add_u32 v1, v1, 4, v2
    s_lshl_b32 s65, s48, 17
    s_add_u32 s64, s{P_WS}, s65
    s_addc_u32 s65, s{P_WS+1}, 0
    """)
    def bload(ks):
        a(f"global_load_dwordx4 {vr(BF+4*ks,4)}, v1, s[64:65] sc1")
        a("s_add_u32 s64, s64, 4096\n s_addc_u32 s65, s65, 0")
        vm.issue(f"b{ks}")
    PF = 12
    for ks in range(PF): bload(ks)
    a(f"""
    v_lshrrev_b32 v2, 4, v0
    v_and_b32 v3, 1, v2                ; region
    v_lshrrev_b32 v2, 1, v2            ; khalf
    v_bfe_u32 v4, v0, 2, 2             ; r4
    v_and_b32 v5, 3, v0                ; cq
    v_lshrrev_b32 v6, 1, v4
    v_lshl_add_u32 v6, v3, 1, v6       ; e = (r4>>1) | region<<1
    v_lshlrev_b32 v6, 5, v6
    v_lshl_add_u32 v7, v2, 3, v4
    v_lshlrev_b32 v7, 7, v7            ; (8khalf + r4)*128
    v_lshl_add_u32 v7, v3, 12, v7
    v_lshl_add_u32 v7, v5, 3, v7
    """)
    for t in range(4):
        a(f"v_xor_b32 v{AD+t}, {t*32}, v6\n v_add_u32 v{AD+t}, v{AD+t}, v7")
    a(f"""
    s_and_b32 s66, s63, 63
    v_and_b32 v6, 31, v0
    v_add_u32 v6, s66, v6
    v_lshrrev_b32 v7, 5, v0
    s_mul_i32 s68, s49, 14
    v_add_u32 v7, s68, v7
    v_lshlrev_b32 v7, 10, v7
    v_lshl_add_u32 v6, v6, 4, v7
    s_lshr_b32 s68, s63, 6
    s_mul_i32 s68, s68, 229376
    s_add_u32 s68, s68, {HQ}
    s_add_u32 s88, s{P_WS}, s68
    s_addc_u32 s89, s{P_WS+1}, 0
    s_mov_b32 s69, 0xbfb8aa3b
    """)
    def rd(k2, dst, t):
        return [f"ds_read_b64_tr_b16 {vr(dst+4*t+2*h2,2)}, v{AT[t]} offset:{k2*2048+h2*512}" for h2 in range(2)]
    def mf(src, ks, t):
        return f"v_mfma_f32_32x32x16_bf16 {vr(ACC+16*t,16)}, {vr(src+4*t,4)}, {vr(BF+4*ks,4)}, {vr(ACC+16*t,16)}"
    def ntiles(stage): return 4 if stage < 16 else 3
    def epilogue(nt, tag):
        for t in range(nt):
            A = ACC+16*t
            R = (236, 248)[t & 1]
            st = []
            for p in range(4):
                g0 = A+2*p; u0 = A+8+2*p
                b = 200 + 8*p
                st.append(lines(f"""
                v_cvt_pk_bf16_f32 v{b}, v{g0}, v{g0+1}
                v_cvt_pk_bf16_f32 v{b+1}, v{u0}, v{u0+1}
                v_lshlrev_b32 v{b+2}, 16, v{b}
                v_and_b32 v{b+3}, 0xffff0000, v{b}
                v_mul_f32 v{b+2}, s69, v{b+2}
                v_mul_f32 v{b+3}, s69, v{b+3}
                v_exp_f32 v{b+2}, v{b+2}
                v_exp_f32 v{b+3}, v{b+3}
                v_lshlrev_b32 v{b+4}, 16, v{b+1}
                v_and_b32 v{b+5}, 0xffff0000, v{b+1}
                v_add_f32 v{b+2}, 1.0, v{b+2}
                v_add_f32 v{b+3}, 1.0, v{b+3}
                v_rcp_f32 v{b+2}, v{b+2}
                v_rcp_f32 v{b+3}, v{b+3}
                v_cvt_pk_bf16_f32 v{b+6}, v{b+2}, v{b+3}
                v_lshlrev_b32 v{b+2}, 16, v{b+6}
                v_and_b32 v{b+3}, 0xffff0000, v{b+6}
                v_pk_mul_f32 {vr(b+2,2)}, {vr(b+2,2)}, {vr(b+4,2)}
                v_cvt_pk_bf16_f32 v{R+p}, v{b+2}, v{b+3}"""))
            interleave(a, st)
            a(f"""
            s_nop 1
            v_permlane32_swap_b32 v{R}, v{R+2}
            v_permlane32_swap_b32 v{R+1}, v{R+3}
            global_store_dwordx4 v6, {vr(R,4)}, s[88:89] sc1
            s_add_u32 s88, s88, 2048
            s_addc_u32 s89, s89, 0
            """)
            vm.issue(tag)
    NSG = 32
    for pas in range(2):
        nt = 4 if pas == 0 else 3
        s0 = 16*pas
        for i in range(16*nt): a(f"v_mov_b32 v{ACC+i}, 0")
        vm.wait(a, [f"w{s0}", "b0", "b1"] if pas == 0 else [f"w{s0}"])
        a("s_barrier")
        for t in range(nt): a(f"v_add_u32 v{AT[t]}, {(s0 % G1_R)*8192}, v{AD+t}")
        for t in range(nt):
            for l in rd(0, AX, t): a(l)
        a("s_waitcnt lgkmcnt(4)")
        for t in range(nt):
            for l in rd(1, AY, t): a(l)
        for sl in range(16):
            s = s0 + sl
            last = (sl == 15)
            even = (sl % 2 == 0)
            if last and pas == 0: vm.wait(a, ["b31", "b30"])
            if not last:
                tags = []
                if even: tags += [f"w{s+1}"] + ([f"w{s+2}"] if s+2 < NSG and sl+2 < 16+1 and (s+2) < s0+16 else [])
                if pas == 0: tags += [f"b{2*sl+2}", f"b{2*sl+1}"]
                if pas == 1 and sl == 6: tags.append("hsta")
                if tags: vm.wait(a, tags)
                if even:
                    a("s_barrier")
                    if pas == 1 and sl == 6: flag_set(a, 1)
                if sl % 8 == 6: stamp(a)
                for t in range(nt): a(f"v_add_u32 v{AT[t]}, {((s+1) % G1_R)*8192}, v{AD+t}")
            extra = []
            if even:
                for nd in (s+8, s+9):
                    if nd < NSG: extra += [("dma", o, nd) for o in g1_dma_ops(nd)]
            if pas == 0:
                for ks in (2*sl+PF, 2*sl+PF+1):
                    if ks < 32: extra.append(("b", ks, None))
            for half, buf in ((0, AX), (1, AY)):
                for t in range(nt):
                    if not last: a(lgk(4*nt - 4))
                    else: a(lgk(2*(nt-1-t) + (2*nt if half == 0 else 0)))
                    a(mf(buf, 2*sl+half, t))
                    if not last:
                        for l in rd(half, buf, t): a(l)
                    if extra:
                        kind, o, tg = extra.pop(0)
                        if kind == "dma": a(o); vm.issue(f"w{tg}")
                        else: bload(o)
            assert not extra
        stamp(a)
        if pas == 1:
            a("s_barrier")
            g2_setup(a)
            for k in range(8): g2_dma_issue(a, vm, k)
        else:
            a("s_nop 7\n s_nop 3")
        epilogue(nt, "hsta" if pas == 0 else "hstb")

G2_RK = 10
def g2_korder():
    ks = []
    for j in range(4):
        for i in range(4): ks.append((j, 16*i))
    for j in range(4):
        for i in range(3): ks.append((j, 64+16*i))
    return ks
KORD = g2_korder()
def g2_setup(a):
    make_srd(a, 52, P_WD, 1792*1024)
    a("""
    s_lshr_b32 s80, s4, 1
    s_lshl_b32 s80, s80, 3
    s_and_b32 s81, s5, 7
    s_add_u32 s80, s80, s81
    s_and_b32 s81, s4, 1
    s_lshl_b32 s81, s81, 2
    s_lshr_b32 s82, s5, 3
    s_add_u32 s81, s81, s82
    s_lshr_b32 s90, s80, 1
    v_lshrrev_b32 v242, 3, v0
    v_bfe_u32 v243, v0, 1, 2
    v_and_b32 v238, 1, v0
    v_and_b32 v239, 2, v242
    v_xor_b32 v243, v243, v239
    v_lshlrev_b32 v242, 10, v242
    v_lshl_add_u32 v242, v238, 4, v242
    v_lshl_add_u32 v240, v243, 5, v242
    s_mul_i32 s84, s50, 458752
    s_lshl_b32 s85, s81, 7
    s_add_u32 s84, s84, s85
    s_mul_i32 s85, s50, 20480
    """)
def g2_dma_ops(k):
    j, fl = KORD[k]
    row = 112*j + fl
    slot = k % G2_RK
    return [f"""s_add_u32 s86, s84, {(row + 8*jj)*1024}
            s_add_u32 m0, s85, {slot*2048 + jj*1024}
            s_nop 0
            buffer_load_dwordx4 v240, s[52:55], s86 offen lds""" for jj in range(2)]
def g2_dma_issue(a, vm, k):
    for o in g2_dma_ops(k): a(o)
    vm.issue(f"d{k}", 2)

def g_gemm2(a, vm):
    a.comment("==== G: GEMM2 ====")
    if "gprio" in OPTS: a("s_setprio 0")
    if "gprio2" in OPTS: a("s_setprio 3")
    ACC = 8; AB = 72; NA = 4; BF = 104; NBK = 10; AD = 232; AT = 234
    NK = 28
    a(f"""
    v_and_b32 v1, 31, v0
    v_lshrrev_b32 v2, 5, v0
    s_mul_i32 s88, s50, 56
    v_add_u32 v2, s88, v2
    v_lshlrev_b32 v2, 10, v2
    v_lshl_add_u32 v1, v1, 4, v2
    s_mul_i32 s88, s80, 229376
    s_add_u32 s88, s88, {HQ}
    s_add_u32 s92, s{P_WS}, s88
    s_addc_u32 s93, s{P_WS+1}, 0
    """)
    def bload(k):
        j, fl = KORD[k]
        off = (14*j + fl//8)*1024
        b = BF + 8*(k % NBK)
        a(f"s_add_u32 s66, s92, {off}\n s_addc_u32 s67, s93, 0")
        a(f"global_load_dwordx4 {vr(b,4)}, v1, s[66:67] sc1")
        a(f"global_load_dwordx4 {vr(b+4,4)}, v1, s[66:67] offset:512 sc1")
        vm.issue(f"c{k}", 2)
    PF = NBK - 2
    for k in range(PF): bload(k)
    a(f"""
    s_and_b32 s82, s50, 1
    s_lshr_b32 s83, s50, 1
    s_lshl_b32 s87, s80, 6
    s_lshl_b32 s88, s82, 5
    s_add_u32 s87, s87, s88
    v_and_b32 v3, 31, v0
    v_add_u32 v3, s87, v3
    v_lshrrev_b32 v4, 5, v0
    s_lshl_b32 s88, s83, 5
    s_lshl_b32 s89, s81, 6
    s_add_u32 s88, s88, s89
    v_lshlrev_b32 v4, 2, v4
    v_add_u32 v4, s88, v4
    v_lshlrev_b32 v236, 10, v3
    v_lshl_add_u32 v236, v4, 1, v236
    v_lshlrev_b32 v237, 12, v4
    v_lshl_add_u32 v237, v3, 1, v237
    """)
    for g in range(4):
        a(f"global_load_dwordx2 {vr(184+2*g,2)}, v236, s[{P_X}:{P_X+1}] offset:{16*g}")
    vm.issue("xe", 4)
    a(f"""
    v_lshrrev_b32 v2, 4, v0
    v_and_b32 v3, 1, v2
    v_lshrrev_b32 v2, 1, v2
    v_bfe_u32 v4, v0, 2, 2
    v_and_b32 v5, 3, v0
    v_and_b32 v6, 2, v4
    v_lshl_add_u32 v7, v2, 3, v4
    v_lshlrev_b32 v7, 7, v7
    v_lshl_add_u32 v7, v5, 3, v7
    v_add_u32 v7, s85, v7
    """)
    for mt in range(2):
        a(f"""
        v_add_u32 v2, {2*mt}, v3
        v_xor_b32 v2, v2, v6
        v_lshl_add_u32 v{AD+mt}, v2, 5, v7
        """)
    for i in range(64):
        a(f"v_mov_b32 v{ACC+i}, 0")
    def rd(k, mt):
        dst = AB + 8*(k % NA) + 4*mt
        return [f"ds_read_b64_tr_b16 {vr(dst+2*h2,2)}, v{AD+mt} offset:{(k % G2_RK)*2048+h2*512}" for h2 in range(2)]
    vm.wait(a, ["d0", "d1"])
    for k in range(2):
        for mt in range(2):
            for l in rd(k, mt): a(l)
    nd = 8
    for k in range(NK):
        if k == 8:
            poll(a, 3, group_sreg=90, nflags=16)
        tags = [f"c{k}"]
        if k+2 < NK: tags.append(f"d{k+2}")
        vm.wait(a, tags)
        if k % 8 == 7: stamp(a)
        b = BF + 8*(k % NBK)
        fill = []
        if k+2 < NK: fill = [rd(k+2, 0), rd(k+2, 1)]
        post = []
        if nd < NK and nd <= k + 7:
            post += [("dma", o) for o in g2_dma_ops(nd)]
        if k + PF < NK: post.append(("b", k+PF))
        rem_new = 0
        for mt in range(2):
            later = (1-mt)*2 + (4 if k+1 < NK else 0) + rem_new
            a(lgk(later))
            for nt in range(2):
                D = ACC + 16*(2*mt+nt)
                a(f"v_mfma_f32_32x32x16_bf16 {vr(D,16)}, {vr(AB+8*(k%NA)+4*mt,4)}, {vr(b+4*nt,4)}, {vr(D,16)}")
                if nt == 0 and fill:
                    for l in fill.pop(0): a(l)
                    rem_new += 2
                elif post:
                    kind, o = post.pop(0)
                    if kind == "dma": a(o); vm.issue(f"d{nd}")
                    else: bload(o)
        while post:
            kind, o = post.pop(0)
            if kind == "dma": a(o); vm.issue(f"d{nd}")
            else: bload(o)
        if nd < NK and nd <= k + 7: nd += 1
    stamp(a)
    a("s_barrier\n s_nop 7")
    a(f"""
    s_lshl_b32 s88, s50, 14
    v_lshlrev_b32 v1, 4, v0
    v_add_u32 v2, s88, v1
    """)
    for dst in range(4):
        for k in range(4):
            a(f"ds_write_b128 v2, {vr(ACC+16*dst+4*k,4)} offset:{dst*4096+k*1024}")
    a("s_waitcnt lgkmcnt(0)")

def g_epi(a, vm):
    a.comment("==== G: final epilogue ====")
    a(f"""
    s_lshl_b32 s88, s50, 12
    v_lshlrev_b32 v1, 4, v0
    v_add_u32 v2, s88, v1
    """)
    for src in range(4):
        for k in range(4):
            a(f"ds_read_b128 {vr(72+16*src+4*k,4)}, v2 offset:{src*16384+k*1024}")
    a(f"""
    s_add_u32 s64, s{P_WS}, {ST}
    s_addc_u32 s65, s{P_WS+1}, 0
    """)
    for i in range(16):
        dd = (i&3) + 8*(i>>2)
        a(f"v_add_u32 v{8+i}, {dd*4096}, v237")
        a(f"global_load_ushort v{24+i}, v{8+i}, s[64:65] sc1")
    a("s_waitcnt lgkmcnt(0)")
    for i in range(16):
        a(f"""
        v_add_f32 v{72+i}, v{72+i}, v{88+i}
        v_add_f32 v{104+i}, v{104+i}, v{120+i}
        v_add_f32 v{72+i}, v{72+i}, v{104+i}
        """)
    a("s_mov_b32 s69, 0xbfb8aa3b")
    st = []
    for p in range(8):
        x = 72+2*p; t = 88+2*p; c = 104+p
        st.append(lines(f"""
        v_cvt_pk_bf16_f32 v{c}, v{x}, v{x+1}
        v_lshlrev_b32 v{x}, 16, v{c}
        v_and_b32 v{x+1}, 0xffff0000, v{c}
        v_mul_f32 v{t}, s69, v{x}
        v_mul_f32 v{t+1}, s69, v{x+1}
        v_exp_f32 v{t}, v{t}
        v_exp_f32 v{t+1}, v{t+1}
        v_add_f32 v{t}, 1.0, v{t}
        v_add_f32 v{t+1}, 1.0, v{t+1}
        v_rcp_f32 v{t}, v{t}
        v_rcp_f32 v{t+1}, v{t+1}
        v_mul_f32 v{x}, v{x}, v{t}
        v_mul_f32 v{x+1}, v{x+1}, v{t+1}
        v_cvt_pk_bf16_f32 v{c}, v{x}, v{x+1}
        v_lshlrev_b32 v{x}, 16, v{c}
        v_and_b32 v{x+1}, 0xffff0000, v{c}"""))
    interleave(a, st)
    a("s_waitcnt vmcnt(0)")
    st = []
    for p in range(8):
        x = 72+2*p; t = 88+2*p; c = 104+p; sv = 24+2*p
        st.append(lines(f"""
        v_lshlrev_b32 v{sv}, 16, v{sv}
        v_lshlrev_b32 v{sv+1}, 16, v{sv+1}
        v_mul_f32 v{x}, v{x}, v{sv}
        v_mul_f32 v{x+1}, v{x+1}, v{sv+1}
        v_cvt_pk_bf16_f32 v{c}, v{x}, v{x+1}
        v_lshlrev_b32 v{x}, 16, v{c}
        v_and_b32 v{x+1}, 0xffff0000, v{c}
        v_lshlrev_b32 v{t}, 16, v{184+p}
        v_and_b32 v{t+1}, 0xffff0000, v{184+p}
        v_add_f32 v{x}, v{x}, v{t}
        v_add_f32 v{x+1}, v{x+1}, v{t+1}
        v_cvt_pk_bf16_f32 v{112+p}, v{x}, v{x+1}"""))
    interleave(a, st)
    for g in range(4):
        a(f"global_store_dwordx2 v236, {vr(112+2*g,2)}, s[{P_OUT}:{P_OUT+1}] offset:{16*g}")

def prog_g(a):
    vm = Vm()
    stamp_begin(a)
    g_ln(a, vm)
    stamp(a)
    nonce_get(a)
    if FINE: stamp(a)
    vm.wait(a, "xqst")
    if FINE: stamp(a)
    a("s_barrier")
    flag_set(a, 0)
    if FINE: stamp(a)
    for s in range(8): g1_dma_issue(a, vm, s)
    stamp(a)
    poll(a, 0, group_sreg=48, nflags=16)
    stamp(a)
    g_gemm1(a, vm)
    stamp(a)
    poll(a, 1, group_sreg=90, nflags=16)
    vm.wait(a, "hstb")
    a("s_barrier")
    flag_set(a, 3)
    stamp(a)
    g_gemm2(a, vm)
    poll(a, 2, group_sreg=81, nflags=32)
    stamp(a)
    g_epi(a, vm)
    a("s_waitcnt vmcnt(0)")
    stamp(a)
    stamp_flush(a)
    a("s_branch Lend")

X_T = 0; X_KC = 0; X_U = 33280; X_R = 48640; X_RED = 57088
INV2PI = 0x3e22f983
def x_early(a, vm):
    a(f"""
    s_mov_b32 s71, s50
    s_lshl_b32 s72, s4, 6
    s_lshl_b32 s73, s5, 1
    s_add_u32 s72, s72, s73            ; d0
    v_and_b32 v1, 31, v0
    s_lshl_b32 s73, s72, 7
    s_lshl_b32 s74, s71, 5
    s_add_u32 s73, s73, s74
    v_add_u32 v1, s73, v1
    v_lshlrev_b32 v1, 1, v1
    s_lshl_b32 s73, s72, 1
    v_mov_b32 v2, s73
    """)
    for ch in range(2):
        B = 224 + 8*ch
        for i, p in enumerate((P_ARE, P_AIM, P_BRE, P_BIM, P_CRE, P_CIM)):
            a(f"global_load_ushort v{B+i}, v1, s[{p}:{p+1}] offset:{256*ch}")
        a(f"global_load_ushort v{B+6}, v2, s[{P_LDT}:{P_LDT+1}] offset:{2*ch}")
        a(f"global_load_ushort v{B+7}, v2, s[{P_DSK}:{P_DSK+1}] offset:{2*ch}")
        vm.issue(f"par{ch}", 8)
    a(f"""
    v_min_u32 v4, 55, v0
    v_lshlrev_b32 v4, 7, v4
    s_mul_i32 s6, s3, 7168
    v_add_u32 v4, s6, v4
    s_cmp_eq_u32 s50, 0
    s_cselect_b32 s6, s{P_WG}, s{P_WU}
    s_cselect_b32 s7, s{P_WG+1}, s{P_WU+1}
    s_cmp_eq_u32 s50, 2
    s_cselect_b32 s6, s{P_WD}, s6
    s_cselect_b32 s7, s{P_WD+1}, s7
    global_load_dword v243, v4, s[6:7]
    """)
    vm.issue("t1", 1)

def x_touch_w(a, vm):
    for dj in range(2):
        a(f"""
        s_and_b32 s6, s5, 3
        s_lshl_b32 s6, s6, 7
        s_lshl_b32 s7, s50, 5
        s_add_u32 s6, s6, s7
        s_add_u32 s6, s6, {16*dj}
        v_lshrrev_b32 v180, 2, v0
        v_add_u32 v180, s6, v180
        v_mul_u32_u24 v180, 3584, v180
        v_and_b32 v181, 3, v0
        v_mul_u32_u24 v181, 72, v181
        v_and_b32 v181, 0xfc, v181
        v_add_u32 v180, v180, v181
        s_mul_i32 s6, s49, 224
        v_add_u32 v180, s6, v180
        global_load_dword v243, v180, s[{P_WG}:{P_WG+1}]
        global_load_dword v243, v180, s[{P_WU}:{P_WU+1}]
        """)
    vm.issue("tw", 4)

def x_touch_wd(a, vm):
    a(f"""
    s_and_b32 s6, s5, 7
    s_mul_i32 s6, s6, 224
    s_mul_i32 s7, s50, 56
    s_add_u32 s6, s6, s7
    v_min_u32 v180, 55, v0
    v_add_u32 v180, s6, v180
    v_lshlrev_b32 v180, 10, v180
    s_and_b32 s6, s4, 1
    s_lshl_b32 s6, s6, 2
    s_lshr_b32 s7, s5, 3
    s_add_u32 s6, s6, s7
    s_lshl_b32 s6, s6, 7
    v_add_u32 v180, s6, v180
    global_load_dword v243, v180, s[{P_WD}:{P_WD+1}]
    """)
    vm.issue("twd", 1)

def cmul(a, d, x, y):
    a(f"""
    v_pk_mul_f32 {vr(d,2)}, {vr(x,2)}, {vr(y,2)} op_sel_hi:[1,0]
    v_pk_fma_f32 {vr(d,2)}, {vr(x,2)}, {vr(y,2)}, {vr(d,2)} op_sel:[1,1,0] op_sel_hi:[0,1,1] neg_lo:[1,0,0]
    """)

def x_kgen(a, vm, ch, mid=None):
    a.comment(f"==== X: Kgen ch{ch} ====")
    B = 224 + 8*ch
    vm.wait(a, f"par{ch}")
    for r in range(B, B+8):
        a(f"v_lshlrev_b32 v{r}, 16, v{r}")
    a(f"""
    s_mov_b32 s74, 0x3fb8aa3b
    s_mov_b32 s75, 0x32a57060
    v_mul_f32 v15, s74, v{B+6}
    v_fma_f32 v16, v{B+6}, s74, -v15
    v_fma_f32 v16, v{B+6}, s75, v16
    v_exp_f32 v15, v15
    v_mul_f32 v16, 0x3f317218, v16
    v_fma_f32 v15, v15, v16, v15
    """)
    bf16_round(a, 15, 15)
    a(f"""
    v_mul_f32 v8, v15, v{B}
    v_mul_f32 v9, v15, v{B+1}
    v_mul_f32 v10, v15, v{B+2}
    v_mul_f32 v11, v15, v{B+3}
    """)
    cmul(a, 18, B+4, 10)
    a(f"v_mul_f32 v16, s74, v8\n v_mul_f32 v17, 0x{INV2PI:08x}, v9")
    def cexp_lit(d, p, t):
        return lines(f"""
        v_mul_f32 v{t}, {p}, v16
        v_mul_f32 v{t+1}, {p}, v17
        v_exp_f32 v{t}, v{t}
        v_fract_f32 v{t+1}, v{t+1}
        v_cos_f32 v{d}, v{t+1}
        v_sin_f32 v{d+1}, v{t+1}
        s_nop 0
        v_mul_f32 v{d}, v{d}, v{t}
        v_mul_f32 v{d+1}, v{d+1}, v{t}""")
    interleave(a, [cexp_lit(20, "0x41800000", 30), cexp_lit(22, "0x44000000", 32), cexp_lit(24, "0x45000000", 34)])
    a(f"""
    v_mul_f32 v26, v19, v25
    v_fma_f32 v26, v18, v24, -v26
    v_mul_f32 v27, 0x45000000, v16
    v_max_f32 v27, 0, v27
    v_exp_f32 v27, v27
    v_add_f32 v28, abs(v18), abs(v19)
    v_mul_f32 v27, v27, v28
    v_cmp_gt_u32 vcc, 32, v0
    s_nop 1
    v_cndmask_b32 v26, 0, v26, vcc
    v_cndmask_b32 v27, 0, v27, vcc
    """)
    wave_reduce(a, 26)
    wave_reduce(a, 27)
    if ch == 1: a("s_barrier")
    a(f"""
    s_mul_i32 s78, s50, 9360
    s_add_u32 s78, s78, {X_T}
    v_and_b32 v1, 31, v0
    v_lshlrev_b32 v1, 5, v1
    v_add_u32 v1, s78, v1
    ds_write_b128 v1, v[16:19]
    ds_write_b128 v1, v[20:23] offset:16
    v_readlane_b32 s76, v26, 63
    v_readlane_b32 s77, v27, 63
    s_nop 1
    v_mov_b32 v2, s76
    v_mov_b32 v3, s77
    v_mov_b32 v1, s78
    ds_write_b64 v1, v[2:3] offset:{64*144}
    """)
    ACC = 192
    for i in range(32):
        a(f"v_mov_b32 v{ACC+i}, 0")
    a(f"""
    v_and_b32 v1, 15, v0
    v_cvt_f32_u32 v2, v1
    v_mul_f32 v4, 0x42000000, v2
    v_mov_b32 v3, v2
    v_mov_b32 v5, v4
    v_lshrrev_b32 v6, 4, v0
    v_lshlrev_b32 v6, 7, v6
    v_add_u32 v6, s78, v6
    s_waitcnt lgkmcnt(0)
    """)
    HF = 16; GF = 32
    def eblock(ks, e, TB):
        ops = []
        A = ops.append
        h0, h1, g = TB+8, TB+10, TB+12
        er, t0, t1, t2 = TB+20, TB+22, TB+24, TB+26
        A(f"v_pk_mul_f32 {vr(t0,2)}, {vr(TB,2)}, v[2:3]")
        A(f"v_pk_mul_f32 {vr(t1,2)}, {vr(TB,2)}, v[4:5]")
        A(f"v_exp_f32 v{t0}, v{t0}")
        A(f"v_exp_f32 v{t1}, v{t1}")
        A(f"v_fract_f32 v{t0+1}, v{t0+1}")
        A(f"v_fract_f32 v{t1+1}, v{t1+1}")
        A(f"v_cos_f32 v{h0}, v{t0+1}")
        A(f"v_sin_f32 v{h0+1}, v{t0+1}")
        A(f"v_cos_f32 v{er}, v{t1+1}")
        A(f"v_sin_f32 v{er+1}, v{t1+1}")
        A("s_nop 0")
        A(f"v_pk_mul_f32 {vr(h0,2)}, {vr(h0,2)}, {vr(t0,2)} op_sel_hi:[1,0]")
        A(f"v_pk_mul_f32 {vr(er,2)}, {vr(er,2)}, {vr(t1,2)} op_sel_hi:[1,0]")
        def cm(d, x, y):
            A(f"v_pk_mul_f32 {vr(d,2)}, {vr(x,2)}, {vr(y,2)} op_sel_hi:[1,0]")
            A(f"v_pk_fma_f32 {vr(d,2)}, {vr(x,2)}, {vr(y,2)}, {vr(d,2)} op_sel:[1,1,0] op_sel_hi:[0,1,1] neg_lo:[1,0,0]")
        cm(h1, h0, TB+4)
        cm(g, er, TB+2)
        cm(g+2, g, TB+6)
        cm(g+4, g+2, TB+6)
        cm(g+6, g+4, TB+6)
        def sp(hi, lo, x, t, neg):
            n = "-" if neg else ""
            A(f"v_cvt_pk_bf16_f32 v{hi}, v{x}, {n}v{x+1}")
            A(f"v_lshlrev_b32 v{t}, 16, v{hi}")
            A(f"v_and_b32 v{t+1}, 0xffff0000, v{hi}")
            if neg: A(f"v_pk_add_f32 {vr(t,2)}, {vr(x,2)}, {vr(t,2)} neg_lo:[0,1] neg_hi:[1,1]")
            else:   A(f"v_pk_add_f32 {vr(t,2)}, {vr(x,2)}, {vr(t,2)} neg_lo:[0,1] neg_hi:[0,1]")
            A(f"v_cvt_pk_bf16_f32 v{lo}, v{t}, v{t+1}")
        for ct in range(2):
            sp(HF+(ct*2)*4+e, HF+(ct*2+1)*4+e, h0+2*ct, (t0, t1)[ct], True)
        for rt in range(4):
            sp(GF+(rt*2)*4+e, GF+(rt*2+1)*4+e, g+2*rt, (t2, t0, t1, t2)[rt], False)
        return ops
    TBs = (64, 92, 120, 148)
    for ks in range(2):
        for e in range(4):
            off = (16*ks+e)*32
            a(f"ds_read_b128 {vr(TBs[e],4)}, v6 offset:{off}\n ds_read_b128 {vr(TBs[e]+4,4)}, v6 offset:{off+16}")
        a("s_waitcnt lgkmcnt(0)")
        interleave(a, [eblock(ks, e, TBs[e]) for e in range(4)])
        a("s_nop 1")
        for pas in range(3):
            for rt in range(4):
                for ct in range(2):
                    D = ACC+(rt*2+ct)*4
                    hh = HF+(ct*2)*4; hl = HF+(ct*2+1)*4; gh = GF+(rt*2)*4; gl = GF+(rt*2+1)*4
                    x, y = ((hh, gh), (hl, gh), (hh, gl))[pas]
                    a(f"v_mfma_f32_16x16x32_bf16 {vr(D,4)}, {vr(x,4)}, {vr(y,4)}, {vr(D,4)}")
        if ks == 0 and mid: mid()
    a(f"""
    v_and_b32 v1, 15, v0
    v_mul_u32_u24 v1, 144, v1
    v_lshrrev_b32 v4, 4, v0
    v_lshl_add_u32 v1, v4, 4, v1
    v_add_u32 v1, s78, v1
    s_lshl_b32 s73, s71, 6
    v_add_u32 v7, s73, v0
    v_sub_u32 v2, 2047, v7
    """)
    for e in range(8):
        a(f"""
        v_subrev_u32 v8, {256*e}, v2
        v_cvt_f32_u32 v8, v8
        v_cvt_pk_bf16_f32 v8, v8, v8
        v_lshlrev_b32 v8, 16, v8
        v_cvt_u32_f32 v8, v8
        v_lshrrev_b32 v9, 5, v8
        v_and_b32 v10, 31, v8
        v_mul_u32_u24 v9, 144, v9
        v_lshl_add_u32 v{64+e}, v10, 2, v9
        """)
    for rt in range(4):
        for ct in range(2):
            D = ACC+(rt*2+ct)*4
            a(f"ds_write_b128 v1, {vr(D,4)} offset:{rt*16*144 + ct*64}")
    a("v_mov_b32 v72, 0")
    a("s_waitcnt lgkmcnt(0)\n s_barrier")
    for e in range(8):
        for qq in range(4):
            a(f"ds_read_b32 v{16+e*4+qq}, v{64+e} offset:{X_T + qq*9360}")
    for qq in range(4):
        a(f"ds_read_b32 v{48+qq}, v72 offset:{X_T + qq*9360 + 64*144 + 4}")
    a(f"""
    v_lshlrev_b32 v3, 1, v7
    v_add_u32 v3, {X_R + ch*4224}, v3
    v_mov_b32 v56, 0
    v_mov_b32 v57, 0
    v_mov_b32 v58, 0
    v_mov_b32 v59, 0
    v_mov_b32 v4, {X_R + ch*4224}
    ds_write_b128 v4, v[56:59] offset:4096
    ds_write_b128 v4, v[56:59] offset:4112
    ds_write_b128 v4, v[56:59] offset:4128
    ds_write_b128 v4, v[56:59] offset:4144
    s_waitcnt lgkmcnt(4)
    v_add_f32 v48, v48, v49
    v_add_f32 v50, v50, v51
    v_add_f32 v48, v48, v50
    v_frexp_exp_i32_f32 v49, v48
    v_sub_u32 v50, 14, v49
    v_subrev_u32 v51, 14, v49
    v_ldexp_f32 v50, 1.0, v50
    v_ldexp_f32 v{240+ch}, 1.0, v51
    """)
    for e in range(8):
        b = 16+e*4
        a(f"""
        v_add_f32 v{b}, v{b}, v{b+1}
        v_add_f32 v{b+2}, v{b+2}, v{b+3}
        v_add_f32 v{b}, v{b}, v{b+2}
        v_mul_f32 v{b}, v50, v{b}
        v_cvt_f16_f32 v{b}, v{b}
        ds_write_b16 v3, v{b} offset:{512*e}
        """)

def x_uload(a, vm):
    a(f"""
    s_lshl_b32 s73, s50, 6
    v_add_u32 v1, s73, v0
    s_lshr_b32 s75, s72, 3
    s_lshl_b32 s75, s75, 11
    s_and_b32 s74, s72, 7
    s_lshl_b32 s74, s74, 1
    s_add_u32 s75, s75, s74
    s_add_u32 s74, s{P_WS}, s75
    s_addc_u32 s75, s{P_WS+1}, 0
    v_lshrrev_b32 v2, 7, v1
    v_lshlrev_b32 v2, 17, v2
    v_and_b32 v3, 127, v1
    v_lshl_add_u32 v2, v3, 4, v2
    """)
    for i in range(8):
        a(f"global_load_dword v{8+i}, v2, s[74:75] sc1")
        if i < 7: a("v_add_u32 v2, 0x40000, v2")
    vm.issue("u", 8)
    a(f"""
    v_mov_b32 v56, 0
    v_mov_b32 v57, 0
    v_mov_b32 v58, 0
    v_mov_b32 v59, 0
    v_cmp_gt_u32 vcc, 160, v1
    v_lshlrev_b32 v3, 4, v1
    v_add_u32 v3, {X_U}, v3
    s_and_saveexec_b64 s[76:77], vcc
    ds_write_b128 v3, v[56:59]
    ds_write_b128 v3, v[56:59] offset:7680
    s_mov_b64 exec, s[76:77]
    v_lshrrev_b32 v3, 5, v1
    v_mul_u32_u24 v3, 80, v3
    v_and_b32 v4, 31, v1
    v_lshl_add_u32 v3, v4, 1, v3
    v_add_u32 v3, {X_U+2560}, v3
    """)

def x_uwrite(a, vm):
    vm.wait(a, "u")
    for i in range(8):
        a(f"""
        v_lshlrev_b32 v16, 16, v{8+i}
        v_and_b32 v17, 0xffff0000, v{8+i}
        v_cvt_f16_f32 v16, v16
        v_cvt_f16_f32 v17, v17
        ds_write_b16 v3, v16 offset:{i*8*80}
        ds_write_b16 v3, v17 offset:{7680 + i*8*80}
        """)

def kc_build_one(a, vz, ch):
    a(f"""
    v_lshlrev_b32 v5, 4, v{vz}
    v_add_u32 v4, {X_KC}, v5
    v_add_u32 v5, {X_R + ch*4224}, v5
    ds_read_b128 v[64:67], v5
    ds_read_b128 v[68:71], v5 offset:16
    s_waitcnt lgkmcnt(0)
    """)
    for c in range(8):
        sft = 7-c
        dst = 72+4*c
        for k in range(4):
            if sft % 2 == 0: a(f"v_mov_b32 v{dst+k}, v{64+sft//2+k}")
            else: a(f"v_alignbit_b32 v{dst+k}, v{64+sft//2+k+1}, v{64+sft//2+k}, 16")
        a(f"ds_write_b128 v4, {vr(dst,4)} offset:{c*4160}")

def x_kc(a, ch):
    a(f"s_lshl_b32 s74, s71, 6\n v_add_u32 v1, s74, v0")
    kc_build_one(a, 1, ch)
    Ls = a.newlabel("kcskip")
    a(f"""
    s_cmp_lg_u32 s71, 0
    s_cbranch_scc1 {Ls}
    v_cmp_gt_u32 vcc, 3, v0
    s_and_saveexec_b64 s[76:77], vcc
    v_add_u32 v2, 256, v0
    """)
    kc_build_one(a, 2, ch)
    a("s_mov_b64 exec, s[76:77]")
    a.label(Ls)

def x_conv(a, vm, ch):
    a.comment(f"==== X: conv ch{ch} ====")
    ACC0 = 192; ACC1 = 208
    a(f"""
    v_and_b32 v1, 31, v0
    v_lshrrev_b32 v2, 5, v0
    v_and_b32 v3, 7, v1
    v_lshrrev_b32 v4, 3, v1
    v_mul_u32_u24 v3, 4160, v3
    v_sub_u32 v4, v2, v4
    v_add_u32 v4, 255, v4
    v_lshl_add_u32 v3, v4, 4, v3
    s_lshl_b32 s73, s71, 9
    s_add_u32 s73, s73, {64*7+2048}
    s_sub_u32 s74, {X_KC}, s73
    v_add_u32 v5, s74, v3
    v_mul_u32_u24 v6, 80, v1
    v_lshl_add_u32 v6, v2, 4, v6
    s_lshl_b32 s73, s71, 3
    s_sub_u32 s73, 25, s73
    s_mul_i32 s73, s73, 80
    s_add_u32 s73, s73, {X_U + ch*7680}
    v_add_u32 v6, s73, v6
    """)
    for i in range(32):
        a(f"v_mov_b32 v{ACC0+i}, 0")
    def reads(i, base):
        for ks in range(2):
            a(f"ds_read_b128 {vr(base+ks*16,4)}, v5 offset:{64*(7-i)+32*ks+2048}")
            a(f"ds_read_b128 {vr(base+ks*16+4,4)}, v5 offset:{64*(7-i)+32*ks}")
            a(f"ds_read_b128 {vr(base+ks*16+8,4)}, v6 offset:{(7-i)*80+ks*32}")
            a(f"ds_read_b128 {vr(base+ks*16+12,4)}, v6 offset:{(7-i)*80+2560+ks*32}")
    reads(0, 8)
    for i in range(8):
        base = 8 + 32*(i&1)
        if i < 7:
            reads(i+1, 8+32*((i+1)&1))
            a("s_waitcnt lgkmcnt(8)")
        else:
            a("s_waitcnt lgkmcnt(0)")
        for ks in range(2):
            An = base+ks*16; Af = An+4; B0 = An+8; B1 = An+12
            a(f"v_mfma_f32_32x32x16_f16 {vr(ACC0,16)}, {vr(An,4)}, {vr(B0,4)}, {vr(ACC0,16)}")
            a(f"v_mfma_f32_32x32x16_f16 {vr(ACC1,16)}, {vr(An,4)}, {vr(B1,4)}, {vr(ACC1,16)}")
            a(f"v_mfma_f32_32x32x16_f16 {vr(ACC1,16)}, {vr(Af,4)}, {vr(B0,4)}, {vr(ACC1,16)}")
    a(f"""
    v_lshlrev_b32 v1, 4, v0
    s_nop 7
    """)
    for dq in range(4):
        L = a.newlabel("rs")
        a(f"""
        s_cmp_eq_u32 s71, {dq}
        s_cbranch_scc1 {L}
        s_sub_u32 s73, s71, {dq+1}
        s_and_b32 s73, s73, 3
        s_lshl_b32 s73, s73, 11
        s_add_u32 s73, s73, {X_RED + dq*6144}
        v_add_u32 v2, s73, v1
        ds_write_b128 v2, {vr(ACC0+8*dq,4)}
        ds_write_b128 v2, {vr(ACC0+8*dq+4,4)} offset:1024
        """)
        a.label(L)
    Ld = a.newlabel("mvd")
    for dq in range(4):
        L = a.newlabel("mv")
        a(f"s_cmp_lg_u32 s71, {dq}\n s_cbranch_scc1 {L}")
        for i in range(8): a(f"v_mov_b32 v{8+i}, v{ACC0+8*dq+i}")
        a(f"s_branch {Ld}")
        a.label(L)
    a.label(Ld)
    a(f"""
    s_waitcnt lgkmcnt(0)
    s_barrier
    s_mul_i32 s73, s71, 6144
    s_add_u32 s73, s73, {X_RED}
    v_add_u32 v2, s73, v1
    """)
    for sl in range(3):
        a(f"ds_read_b128 {vr(16+8*sl,4)}, v2 offset:{sl*2048}")
        a(f"ds_read_b128 {vr(20+8*sl,4)}, v2 offset:{sl*2048+1024}")
    a(f"""
    v_and_b32 v3, 31, v0
    v_lshrrev_b32 v4, 5, v0
    s_lshr_b32 s73, s71, 1
    s_lshl_b32 s73, s73, 5
    s_and_b32 s74, s71, 1
    s_lshl_b32 s74, s74, 4
    v_add_u32 v5, s73, v3
    v_mul_u32_u24 v6, 80, v5
    v_lshl_add_u32 v6, v4, 3, v6
    s_lshl_b32 s76, s74, 1
    s_add_u32 s75, s76, {X_U + ch*7680 + 2560}
    v_add_u32 v6, s75, v6
    ds_read_b64 v[40:41], v6
    ds_read_b64 v[42:43], v6 offset:16
    v_lshlrev_b32 v5, 5, v5
    v_lshl_add_u32 v5, v4, 2, v5
    v_add_u32 v5, s74, v5
    v_lshlrev_b32 v5, 1, v5
    s_add_u32 s75, s72, {ch}
    s_lshl_b32 s75, s75, 12
    s_add_u32 s74, s{P_WS}, s75
    s_addc_u32 s75, s{P_WS+1}, 0
    s_add_u32 s74, s74, {ST}
    s_addc_u32 s75, s75, 0
    s_waitcnt lgkmcnt(0)
    """)
    DSK = 224 + 8*ch + 7
    for i in range(8):
        a(f"""
        v_add_f32 v{8+i}, v{8+i}, v{16+i}
        v_add_f32 v{24+i}, v{24+i}, v{32+i}
        v_add_f32 v{8+i}, v{8+i}, v{24+i}
        v_mul_f32 v{8+i}, v{240+ch}, v{8+i}
        """)
    st = []
    for p in range(4):
        st.append(lines(f"""
        v_cvt_f32_f16 v{44+2*p}, v{40+p}
        v_cvt_f32_f16_sdwa v{45+2*p}, v{40+p} dst_sel:DWORD dst_unused:UNUSED_PAD src0_sel:WORD_1
        v_mul_f32 v{44+2*p}, v{DSK}, v{44+2*p}
        v_mul_f32 v{45+2*p}, v{DSK}, v{45+2*p}
        v_cvt_pk_bf16_f32 v{52+p}, v{44+2*p}, v{45+2*p}
        v_cvt_pk_bf16_f32 v{56+p}, v{8+2*p}, v{9+2*p}
        v_lshlrev_b32 v{44+2*p}, 16, v{52+p}
        v_and_b32 v{45+2*p}, 0xffff0000, v{52+p}
        v_lshlrev_b32 v{8+2*p}, 16, v{56+p}
        v_and_b32 v{9+2*p}, 0xffff0000, v{56+p}
        v_add_f32 v{8+2*p}, v{8+2*p}, v{44+2*p}
        v_add_f32 v{9+2*p}, v{9+2*p}, v{45+2*p}
        v_cvt_pk_bf16_f32 v{60+p}, v{8+2*p}, v{9+2*p}"""))
    interleave(a, st)
    a(f"""
    global_store_dwordx2 v5, v[60:61], s[74:75] sc1
    global_store_dwordx2 v5, v[62:63], s[74:75] offset:16 sc1
    """)
    vm.issue("sst", 2)

def prog_x(a):
    vm = Vm()
    stamp_begin(a)
    if "xprio" in OPTS: a("s_setprio 2")
    x_early(a, vm)
    if "xskip" in OPTS:
        nonce_get(a)
        a("s_waitcnt vmcnt(0)\n s_barrier")
        flag_set(a, 2)
        a("s_waitcnt vmcnt(0)")
        stamp(a)
        stamp_flush(a)
        return
    x_kgen(a, vm, 0, mid=lambda: x_touch_w(a, vm))
    stamp(a)
    if "xprio3" in OPTS: a("s_setprio 0")
    x_kgen(a, vm, 1, mid=lambda: x_touch_wd(a, vm))
    stamp(a)
    if "xprio2" in OPTS: a("s_setprio 2")
    nonce_get(a)
    a("s_waitcnt lgkmcnt(0)")
    poll(a, 0)
    stamp(a)
    x_uload(a, vm)
    x_kc(a, 0)
    x_uwrite(a, vm)
    a("s_waitcnt lgkmcnt(0)\n s_barrier")
    stamp(a)
    x_conv(a, vm, 0)
    stamp(a)
    a("s_barrier")
    x_kc(a, 1)
    a("s_waitcnt lgkmcnt(0)\n s_barrier")
    x_conv(a, vm, 1)
    stamp(a)
    vm.wait(a, "sst")
    a("s_barrier")
    flag_set(a, 2)
    a("s_waitcnt vmcnt(0)")
    stamp(a)
    stamp_flush(a)

def build():
    a = Asm()
    prologue(a)
    prog_g(a)
    a.label("LprogX")
    prog_x(a)
    a.label("Lend")
    a("s_endpgm")
    hdr = HEADER_COMMENT + f"; @launch grid=(512,1,1) block=(256,1,1) lds={LDS_BYTES}\n"
    txt = hdr + '.amdgcn_target "amdgcn-amd-amdhsa--gfx950"\n.text\n' + kernel_header(KNAME) + a.text()
    txt += '.section .rodata,"a"\n' + kernel_desc(KNAME)
    return txt

if __name__ == "__main__":
    opts = sys.argv[2].split(",") if len(sys.argv) > 2 else []
    OPTS = opts
    if "stamps" in opts: STAMPS = True
    if "fine" in opts: FINE = True
    if "dbgx" in opts: DBGWG[0] = 264
    open(sys.argv[1], "w").write(build())
```

```python
import sys, copy
from asmlib import *

XQ = 0
HQ = 0x200000
ST = 0x900000
FLG = 0xC00000
P_X, P_ARE, P_AIM, P_BRE, P_BIM, P_CRE, P_CIM, P_LDT = 16,18,20,22,24,26,28,30
P_DSK, P_BX, P_WG, P_WU, P_WD, P_OUT, P_DBG, P_WS = 32,34,36,38,40,42,44,46
KNAME = "recurrent_scan__ssm_conv_s4__glu_gated_glu__prompt_kernel"
LDS_BYTES = 81920
OPTS = []
DBGWG = [8]
SLEEP = 4
FINE = False
STAMPS = False
_stamp_n = [0]
def stamp(a, name=""):
    if not STAMPS: return
    i = _stamp_n[0]; _stamp_n[0] += 1
    a(f"s_memtime s[98:99]\n s_waitcnt lgkmcnt(0)\n v_writelane_b32 v255, s98, {i}")
def stamp_begin(a):
    _stamp_n[0] = 0
    if STAMPS: a("s_memrealtime s[98:99]\n s_waitcnt lgkmcnt(0)\n v_writelane_b32 v255, s98, 62")
    stamp(a)
def stamp_flush(a):
    if not STAMPS: return
    if "dbgst" in OPTS:
        L = a.newlabel("dbs")
        a(f"""
        s_cmp_lg_u32 s2, {DBGWG[0]}
        s_cbranch_scc1 {L}
        s_cmp_lg_u32 s50, 0
        s_cbranch_scc1 {L}
        v_readlane_b32 s98, v255, 0
        s_nop 3
        v_subrev_u32 v254, s98, v255
        v_lshlrev_b32 v253, 2, v0
        v_add_u32 v253, 4, v253
        v_cmp_gt_u32 vcc, 15, v0
        v_cmp_lt_u32 s[96:97], 0, v0
        s_nop 1
        s_and_b64 vcc, vcc, s[96:97]
        s_and_saveexec_b64 s[96:97], vcc
        global_store_dword v253, v254, s[{P_DBG}:{P_DBG+1}]
        s_mov_b64 exec, s[96:97]
        """)
        a.label(L)
        return
    a("s_memrealtime s[98:99]\n s_waitcnt lgkmcnt(0)\n v_writelane_b32 v255, s98, 63")
    a(f"v_writelane_b32 v255, 0, {_stamp_n[0]}")
    a(f"""
    s_lshl_b32 s98, s2, 2
    s_add_u32 s98, s98, s50
    s_lshl_b32 s98, s98, 8
    s_add_u32 s98, s98, 0x2000000
    s_add_u32 s96, s{P_WS}, s98
    s_addc_u32 s97, s{P_WS+1}, 0
    v_lshlrev_b32 v254, 2, v0
    global_store_dword v254, v255, s[96:97]
    """)

class Vm:
    STORES = ("xqst", "hst", "hsta", "hstb", "sst")
    def __init__(self): self.ops = []
    def issue(self, tag, n=1):
        for _ in range(n): self.ops.append(tag)
    def wait(self, a, tags):
        if isinstance(tags, str): tags = [tags]
        if any(t in self.STORES for t in tags):
            a("s_waitcnt vmcnt(0)")
            return
        last = -1
        for i, t in enumerate(self.ops):
            if t in tags: last = i
        assert last >= 0, tags
        n = sum(1 for t in self.ops[last+1:] if t not in self.STORES)
        a(f"s_waitcnt vmcnt({min(n,63)})")

def lgk(n): return f"s_waitcnt lgkmcnt({min(n,15)})"

def wave_reduce(a, v, op="add"):
    for sh in (1,2,4,8):
        a(f"s_nop 1\n v_{op}_f32_dpp v{v}, v{v}, v{v} row_shr:{sh} row_mask:0xf bank_mask:0xf bound_ctrl:0")
    a(f"s_nop 1\n v_{op}_f32_dpp v{v}, v{v}, v{v} row_bcast:15 row_mask:0xa bank_mask:0xf")
    a(f"s_nop 1\n v_{op}_f32_dpp v{v}, v{v}, v{v} row_bcast:31 row_mask:0xc bank_mask:0xf")
    a("s_nop 1")
def bf16_round(a, dst, src):
    a(f"v_cvt_pk_bf16_f32 v{dst}, v{src}, v{src}\n v_lshlrev_b32 v{dst}, 16, v{dst}")
def make_srd(a, s, ptr, nbytes):
    a(f"""
    s_mov_b32 s{s}, s{ptr}
    s_and_b32 s{s+1}, s{ptr+1}, 0xffff
    s_mov_b32 s{s+2}, {nbytes}
    s_mov_b32 s{s+3}, 0x00020000
    """)
def interleave(a, streams):
    n = max(len(s) for s in streams)
    for k in range(n):
        for s in streams:
            if k < len(s): a(s[k])
def lines(s): return [l.strip() for l in s.strip("\n").split("\n") if l.strip()]

PT = (246, 248, 250, 252)
def nonce_publish(a):
    L = a.newlabel("np")
    a(f"""
    s_or_b32 s6, s2, s50
    s_cmp_lg_u32 s6, 0
    s_cbranch_scc1 {L}
    s_memrealtime s[6:7]
    s_waitcnt lgkmcnt(0)
    s_or_b32 s6, s6, 1
    v_mov_b32 v244, 0
    v_mov_b32 v246, s6
    v_mov_b32 v247, s7
    s_mov_b64 s[6:7], exec
    s_mov_b64 exec, 1
    global_store_dwordx2 v244, v[246:247], s[{P_DBG}:{P_DBG+1}] sc1
    s_mov_b64 exec, s[6:7]
    """)
    a.label(L)
def nonce_get(a):
    L = a.newlabel("ng"); Lp = a.newlabel("ngp"); Ld = a.newlabel("ngd")
    a(f"""
    s_cmp_lg_u32 s50, 0
    s_cbranch_scc1 {L}
    v_mov_b32 v244, 0
    s_mov_b32 s6, 0
    """)
    a.label(Lp)
    a(f"""
    global_load_dwordx2 v[246:247], v244, s[{P_DBG}:{P_DBG+1}] sc1
    s_waitcnt vmcnt(0)
    v_cmp_eq_u32 vcc, 0, v246
    s_add_u32 s6, s6, 1
    s_cmp_gt_u32 s6, 200000
    s_cbranch_scc1 {Ld}
    s_cbranch_vccz {Ld}
    s_sleep 2
    s_branch {Lp}
    """)
    a.label(Ld)
    a("v_readfirstlane_b32 s8, v246\n v_readfirstlane_b32 s9, v247")
    a.label(L)
def flag_set(a, phase):
    L = a.newlabel("fs")
    a(f"s_cmp_lg_u32 s50, 0\n s_cbranch_scc1 {L}")
    if phase != 2: a("s_lshl_b32 s6, s48, 4\n s_add_u32 s6, s6, s49")
    else: a("s_lshl_b32 s6, s4, 5\n s_add_u32 s6, s6, s5")
    a(f"""
    s_lshl_b32 s6, s6, 3
    s_add_u32 s6, s6, {FLG + phase*2048}
    v_mov_b32 v244, s6
    v_mov_b32 v246, s8
    v_mov_b32 v247, s9
    s_mov_b64 s[6:7], exec
    s_mov_b64 exec, 1
    global_store_dwordx2 v244, v[246:247], s[{P_WS}:{P_WS+1}] sc1
    s_mov_b64 exec, s[6:7]
    """)
    a.label(L)
def poll(a, phase, group_sreg=None, nflags=256):
    L = a.newlabel("pl"); Lp = a.newlabel("plp"); Ld = a.newlabel("pld")
    a(f"s_cmp_lg_u32 s50, 0\n s_cbranch_scc1 {L}")
    if group_sreg is None:
        a(f"v_lshlrev_b32 v244, 3, v0\n v_add_u32 v244, {FLG + phase*2048}, v244")
        nl = 4
    else:
        a(f"""
        v_and_b32 v244, {nflags-1}, v0
        v_lshlrev_b32 v244, 3, v244
        s_mul_i32 s6, s{group_sreg}, {nflags*8}
        s_add_u32 s6, s6, {FLG + phase*2048}
        v_add_u32 v244, s6, v244
        """)
        nl = 1
    a("s_mov_b32 s6, 0")
    a.label(Lp)
    for k in range(nl):
        a(f"global_load_dwordx2 v[{PT[k]}:{PT[k]+1}], v244, s[{P_WS}:{P_WS+1}] offset:{k*512} sc1")
    a("s_waitcnt vmcnt(0)")
    for k in range(nl):
        a(f"v_xor_b32 v{PT[k]}, s8, v{PT[k]}\n v_xor_b32 v{PT[k]+1}, s9, v{PT[k]+1}")
    for k in range(nl):
        if k > 0: a(f"v_or_b32 v{PT[0]}, v{PT[0]}, v{PT[k]}")
        a(f"v_or_b32 v{PT[0]}, v{PT[0]}, v{PT[k]+1}")
    a(f"""
    v_cmp_ne_u32 vcc, 0, v{PT[0]}
    s_add_u32 s6, s6, 1
    s_cmp_gt_u32 s6, 200000
    s_cbranch_scc1 {Ld}
    s_cbranch_vccz {Ld}
    s_sleep {SLEEP}
    s_branch {Lp}
    """)
    a.label(Ld)
    a.label(L)
    a("s_barrier")

def prologue(a):
    a(f"""
    s_cmp_ge_u32 s2, 512
    s_cbranch_scc1 Lend
    s_load_dwordx16 s[16:31], s[0:1], 0
    s_load_dwordx16 s[32:47], s[0:1], 64
    v_lshrrev_b32 v1, 6, v0
    v_and_b32 v0, 63, v0
    v_readfirstlane_b32 s50, v1
    s_and_b32 s3, s2, 255
    s_and_b32 s4, s3, 7
    s_lshr_b32 s5, s3, 3
    s_lshr_b32 s6, s4, 1
    s_lshl_b32 s6, s6, 2
    s_and_b32 s7, s5, 3
    s_add_u32 s48, s6, s7
    s_and_b32 s6, s4, 1
    s_lshl_b32 s6, s6, 3
    s_lshr_b32 s7, s5, 2
    s_add_u32 s49, s6, s7
    s_waitcnt lgkmcnt(0)
    s_cmp_ge_u32 s2, 256
    s_cbranch_scc1 LprogX
    """)

G1_R = 10
def g_ln(a, vm):
    a.comment("==== G: LN (2 rows per wave) ====")
    a(f"""
    s_lshl_b32 s51, s48, 7
    s_lshl_b32 s52, s49, 3
    s_add_u32 s91, s51, s52
    s_lshl_b32 s51, s50, 1
    s_add_u32 s51, s51, s91
    s_lshl_b32 s52, s51, 10
    s_add_u32 s92, s{P_X}, s52
    s_addc_u32 s93, s{P_X+1}, 0
    v_lshlrev_b32 v3, 4, v0
    global_load_dwordx4 v[4:7], v3, s[92:93]
    global_load_dwordx4 v[44:47], v3, s[92:93] offset:1024
    """)
    vm.issue("x", 2)
    nonce_publish(a)
    g1_dma_setup(a)
    vm.wait(a, "x")
    def row(B, sreg):
        o = []
        for i in range(4):
            o += [f"v_lshlrev_b32 v{B+4+2*i}, 16, v{B+i}", f"v_and_b32 v{B+5+2*i}, 0xffff0000, v{B+i}"]
        o += lines(f"""
        v_add_f32 v{B+12}, v{B+4}, v{B+5}
        v_add_f32 v{B+13}, v{B+6}, v{B+7}
        v_add_f32 v{B+14}, v{B+8}, v{B+9}
        v_add_f32 v{B+15}, v{B+10}, v{B+11}
        v_add_f32 v{B+12}, v{B+12}, v{B+13}
        v_add_f32 v{B+14}, v{B+14}, v{B+15}
        v_add_f32 v{B+12}, v{B+12}, v{B+14}""")
        def red(v):
            r = []
            for sh in (1,2,4,8):
                r += ["s_nop 0", f"v_add_f32_dpp v{v}, v{v}, v{v} row_shr:{sh} row_mask:0xf bank_mask:0xf bound_ctrl:0"]
            r += ["s_nop 0", f"v_add_f32_dpp v{v}, v{v}, v{v} row_bcast:15 row_mask:0xa bank_mask:0xf"]
            r += ["s_nop 0", f"v_add_f32_dpp v{v}, v{v}, v{v} row_bcast:31 row_mask:0xc bank_mask:0xf", "s_nop 0"]
            return r
        o += red(B+12)
        o += [f"v_readlane_b32 s{sreg}, v{B+12}, 63", "s_nop 1", f"v_mov_b32 v{B+13}, s{sreg}", f"v_mul_f32 v{B+13}, 0x3b000000, v{B+13}"]
        for i in range(8): o.append(f"v_sub_f32 v{B+16+i}, v{B+4+i}, v{B+13}")
        o.append(f"v_mul_f32 v{B+12}, v{B+16}, v{B+16}")
        for i in range(1,8): o.append(f"v_fmac_f32 v{B+12}, v{B+16+i}, v{B+16+i}")
        o += red(B+12)
        o += [f"v_readlane_b32 s{sreg+1}, v{B+12}, 63", "s_nop 1", f"v_mov_b32 v{B+14}, s{sreg+1}", f"v_mul_f32 v{B+14}, 0x3b000000, v{B+14}"]
        def rnd(v): return [f"v_cvt_pk_bf16_f32 v{v}, v{v}, v{v}", f"v_lshlrev_b32 v{v}, 16, v{v}"]
        o += rnd(B+14) + [f"v_add_f32 v{B+14}, 0x3727c5ac, v{B+14}"] + rnd(B+14) + [f"v_sqrt_f32 v{B+14}, v{B+14}", "s_nop 0"] + rnd(B+14)
        o += [f"v_rcp_f32 v{B+15}, v{B+14}"] + rnd(B+13)
        for i in range(8): o.append(f"v_sub_f32 v{B+16+i}, v{B+4+i}, v{B+13}")
        for i in range(4): o.append(f"v_cvt_pk_bf16_f32 v{B+24+i}, v{B+16+2*i}, v{B+17+2*i}")
        for i in range(4): o += [f"v_lshlrev_b32 v{B+16+2*i}, 16, v{B+24+i}", f"v_and_b32 v{B+17+2*i}, 0xffff0000, v{B+24+i}"]
        for i in range(8):
            o += [f"v_mul_f32 v{B+4+i}, v{B+16+i}, v{B+15}", f"v_fma_f32 v{B+28+i}, -v{B+4+i}, v{B+14}, v{B+16+i}", f"v_fma_f32 v{B+4+i}, v{B+28+i}, v{B+15}, v{B+4+i}"]
        for i in range(4): o.append(f"v_cvt_pk_bf16_f32 v{B+i}, v{B+4+2*i}, v{B+5+2*i}")
        return o
    interleave(a, [row(4, 94), row(44, 96)])
    LN_SCR = 65536
    a(f"""
    s_mul_i32 s94, s50, 2080
    s_add_u32 s94, s94, {LN_SCR}
    v_lshlrev_b32 v3, 4, v0
    v_add_u32 v3, s94, v3
    ds_write_b128 v3, v[4:7]
    ds_write_b128 v3, v[44:47] offset:1040
    v_and_b32 v8, 7, v0
    v_lshrrev_b32 v9, 3, v0
    s_lshl_b32 s94, s50, 4
    v_add_u32 v9, s94, v9             ; group g = 16w + (lane>>3)  (+8 second)
    v_mul_u32_u24 v10, 1040, v8
    v_lshl_add_u32 v10, v9, 4, v10
    v_add_u32 v10, {LN_SCR}, v10
    s_waitcnt lgkmcnt(0)
    s_barrier
    ds_read_b128 v[4:7], v10
    ds_read_b128 v[12:15], v10 offset:128
    v_lshlrev_b32 v11, 11, v9
    s_lshl_b32 s94, s49, 3
    v_add_u32 v12+0, s94, v8
    """.replace("v12+0", "v16"))
    a(f"""
    v_lshl_add_u32 v11, v16, 4, v11
    s_lshl_b32 s94, s48, 17
    s_add_u32 s92, s{P_WS}, s94
    s_addc_u32 s93, s{P_WS+1}, 0
    v_add_u32 v17, 16384, v11
    s_waitcnt lgkmcnt(0)
    global_store_dwordx4 v11, v[4:7], s[92:93] sc1
    global_store_dwordx4 v17, v[12:15], s[92:93] sc1
    """)
    vm.issue("xqst", 2)

def g1_dma_setup(a):
    make_srd(a, 52, P_WG, 512*3584)
    make_srd(a, 56, P_WU, 512*3584)
    a("""
    v_lshrrev_b32 v242, 3, v0          ; r_local
    v_bfe_u32 v243, v0, 1, 2           ; chunk'
    v_and_b32 v238, 1, v0
    v_bfe_u32 v239, v242, 1, 1
    v_xor_b32 v239, v243, v239
    v_xor_b32 v243, 2, v239
    v_mul_u32_u24 v242, 3584, v242
    v_lshl_add_u32 v242, v238, 4, v242
    v_lshl_add_u32 v240, v239, 5, v242
    v_lshl_add_u32 v241, v243, 5, v242
    s_mul_i32 s60, s49, 224
    s_mul_i32 s61, s50, 28672
    s_add_u32 s60, s60, s61
    s_lshl_b32 s62, s50, 10
    """)
def g1_dma_ops(stage):
    slot = stage % G1_R
    so = (stage % 16)*32*3584 + (stage // 16)*128
    return [f"""s_add_u32 s61, s60, {so}
            s_add_u32 m0, s62, {slot*8192}
            s_nop 0
            buffer_load_dwordx4 v240, s[52:55], s61 offen lds""",
            f"""s_add_u32 m0, s62, {slot*8192 + 4096}
            s_nop 0
            buffer_load_dwordx4 v241, s[56:59], s61 offen lds"""]
def g1_dma_issue(a, vm, stage):
    for o in g1_dma_ops(stage): a(o)
    vm.issue(f"w{stage}", 2)

def g_gemm1(a, vm):
    a.comment("==== G: GEMM1 (F-split) ====")
    if "gprio" in OPTS: a("s_setprio 3")
    BF = 8; ACC = 136; AX = 200; AY = 216; AD = 232
    AT = [2,3,4,5]
    a(f"""
    s_lshl_b32 s63, s50, 5
    s_lshl_b32 s64, s48, 7
    s_add_u32 s63, s63, s64
    s_lshl_b32 s64, s50, 5
    v_and_b32 v1, 31, v0
    v_add_u32 v1, s64, v1
    v_lshrrev_b32 v2, 5, v0
    v_lshlrev_b32 v2, 11, v2
    v_lshl_add_u32 v1, v1, 4, v2
    s_lshl_b32 s65, s48, 17
    s_add_u32 s64, s{P_WS}, s65
    s_addc_u32 s65, s{P_WS+1}, 0
    """)
    def bload(ks):
        a(f"global_load_dwordx4 {vr(BF+4*ks,4)}, v1, s[64:65] sc1")
        a("s_add_u32 s64, s64, 4096\n s_addc_u32 s65, s65, 0")
        vm.issue(f"b{ks}")
    PF = 12
    for ks in range(PF): bload(ks)
    a(f"""
    v_lshrrev_b32 v2, 4, v0
    v_and_b32 v3, 1, v2                ; region
    v_lshrrev_b32 v2, 1, v2            ; khalf
    v_bfe_u32 v4, v0, 2, 2             ; r4
    v_and_b32 v5, 3, v0                ; cq
    v_lshrrev_b32 v6, 1, v4
    v_lshl_add_u32 v6, v3, 1, v6       ; e = (r4>>1) | region<<1
    v_lshlrev_b32 v6, 5, v6
    v_lshl_add_u32 v7, v2, 3, v4
    v_lshlrev_b32 v7, 7, v7            ; (8khalf + r4)*128
    v_lshl_add_u32 v7, v3, 12, v7
    v_lshl_add_u32 v7, v5, 3, v7
    """)
    for t in range(4):
        a(f"v_xor_b32 v{AD+t}, {t*32}, v6\n v_add_u32 v{AD+t}, v{AD+t}, v7")
    a(f"""
    s_and_b32 s66, s63, 63
    v_and_b32 v6, 31, v0
    v_add_u32 v6, s66, v6
    v_lshrrev_b32 v7, 5, v0
    s_mul_i32 s68, s49, 14
    v_add_u32 v7, s68, v7
    v_lshlrev_b32 v7, 10, v7
    v_lshl_add_u32 v6, v6, 4, v7
    s_lshr_b32 s68, s63, 6
    s_mul_i32 s68, s68, 229376
    s_add_u32 s68, s68, {HQ}
    s_add_u32 s88, s{P_WS}, s68
    s_addc_u32 s89, s{P_WS+1}, 0
    s_mov_b32 s69, 0xbfb8aa3b
    """)
    def rd(k2, dst, t):
        return [f"ds_read_b64_tr_b16 {vr(dst+4*t+2*h2,2)}, v{AT[t]} offset:{k2*2048+h2*512}" for h2 in range(2)]
    def mf(src, ks, t):
        return f"v_mfma_f32_32x32x16_bf16 {vr(ACC+16*t,16)}, {vr(src+4*t,4)}, {vr(BF+4*ks,4)}, {vr(ACC+16*t,16)}"
    def ntiles(stage): return 4 if stage < 16 else 3
    def epilogue(nt, tag):
        for t in range(nt):
            A = ACC+16*t
            R = (236, 248)[t & 1]
            st = []
            for p in range(4):
                g0 = A+2*p; u0 = A+8+2*p
                b = 200 + 8*p
                st.append(lines(f"""
                v_cvt_pk_bf16_f32 v{b}, v{g0}, v{g0+1}
                v_cvt_pk_bf16_f32 v{b+1}, v{u0}, v{u0+1}
                v_lshlrev_b32 v{b+2}, 16, v{b}
                v_and_b32 v{b+3}, 0xffff0000, v{b}
                v_mul_f32 v{b+2}, s69, v{b+2}
                v_mul_f32 v{b+3}, s69, v{b+3}
                v_exp_f32 v{b+2}, v{b+2}
                v_exp_f32 v{b+3}, v{b+3}
                v_lshlrev_b32 v{b+4}, 16, v{b+1}
                v_and_b32 v{b+5}, 0xffff0000, v{b+1}
                v_add_f32 v{b+2}, 1.0, v{b+2}
                v_add_f32 v{b+3}, 1.0, v{b+3}
                v_rcp_f32 v{b+2}, v{b+2}
                v_rcp_f32 v{b+3}, v{b+3}
                v_cvt_pk_bf16_f32 v{b+6}, v{b+2}, v{b+3}
                v_lshlrev_b32 v{b+2}, 16, v{b+6}
                v_and_b32 v{b+3}, 0xffff0000, v{b+6}
                v_pk_mul_f32 {vr(b+2,2)}, {vr(b+2,2)}, {vr(b+4,2)}
                v_cvt_pk_bf16_f32 v{R+p}, v{b+2}, v{b+3}"""))
            interleave(a, st)
            a(f"""
            s_nop 1
            v_permlane32_swap_b32 v{R}, v{R+2}
            v_permlane32_swap_b32 v{R+1}, v{R+3}
            global_store_dwordx4 v6, {vr(R,4)}, s[88:89] sc1
            s_add_u32 s88, s88, 2048
            s_addc_u32 s89, s89, 0
            """)
            vm.issue(tag)
    NSG = 32
    for pas in range(2):
        nt = 4 if pas == 0 else 3
        s0 = 16*pas
        for i in range(16*nt): a(f"v_mov_b32 v{ACC+i}, 0")
        vm.wait(a, [f"w{s0}", "b0", "b1"] if pas == 0 else [f"w{s0}"])
        a("s_barrier")
        for t in range(nt): a(f"v_add_u32 v{AT[t]}, {(s0 % G1_R)*8192}, v{AD+t}")
        for t in range(nt):
            for l in rd(0, AX, t): a(l)
        a("s_waitcnt lgkmcnt(4)")
        for t in range(nt):
            for l in rd(1, AY, t): a(l)
        for sl in range(16):
            s = s0 + sl
            last = (sl == 15)
            even = (sl % 2 == 0)
            if last and pas == 0: vm.wait(a, ["b31", "b30"])
            if not last:
                tags = []
                if even: tags += [f"w{s+1}"] + ([f"w{s+2}"] if s+2 < NSG and sl+2 < 16+1 and (s+2) < s0+16 else [])
                if pas == 0: tags += [f"b{2*sl+2}", f"b{2*sl+1}"]
                if pas == 1 and sl == 6: tags.append("hsta")
                if tags: vm.wait(a, tags)
                if even:
                    a("s_barrier")
                    if pas == 1 and sl == 6: flag_set(a, 1)
                if sl % 8 == 6: stamp(a)
                for t in range(nt): a(f"v_add_u32 v{AT[t]}, {((s+1) % G1_R)*8192}, v{AD+t}")
            extra = []
            if even:
                for nd in (s+8, s+9):
                    if nd < NSG: extra += [("dma", o, nd) for o in g1_dma_ops(nd)]
            if pas == 0:
                for ks in (2*sl+PF, 2*sl+PF+1):
                    if ks < 32: extra.append(("b", ks, None))
            for half, buf in ((0, AX), (1, AY)):
                for t in range(nt):
                    if not last: a(lgk(4*nt - 4))
                    else: a(lgk(2*(nt-1-t) + (2*nt if half == 0 else 0)))
                    a(mf(buf, 2*sl+half, t))
                    if not last:
                        for l in rd(half, buf, t): a(l)
                    if extra:
                        kind, o, tg = extra.pop(0)
                        if kind == "dma": a(o); vm.issue(f"w{tg}")
                        else: bload(o)
            assert not extra
        stamp(a)
        if pas == 1:
            a("s_barrier")
            g2_setup(a)
            for k in range(8): g2_dma_issue(a, vm, k)
        else:
            a("s_nop 7\n s_nop 3")
        epilogue(nt, "hsta" if pas == 0 else "hstb")

G2_RK = 10
def g2_korder():
    ks = []
    for j in range(4):
        for i in range(4): ks.append((j, 16*i))
    for j in range(4):
        for i in range(3): ks.append((j, 64+16*i))
    return ks
KORD = g2_korder()
def g2_setup(a):
    make_srd(a, 52, P_WD, 1792*1024)
    a("""
    s_lshr_b32 s80, s4, 1
    s_lshl_b32 s80, s80, 3
    s_and_b32 s81, s5, 7
    s_add_u32 s80, s80, s81
    s_and_b32 s81, s4, 1
    s_lshl_b32 s81, s81, 2
    s_lshr_b32 s82, s5, 3
    s_add_u32 s81, s81, s82
    s_lshr_b32 s90, s80, 1
    v_lshrrev_b32 v242, 3, v0
    v_bfe_u32 v243, v0, 1, 2
    v_and_b32 v238, 1, v0
    v_and_b32 v239, 2, v242
    v_xor_b32 v243, v243, v239
    v_lshlrev_b32 v242, 10, v242
    v_lshl_add_u32 v242, v238, 4, v242
    v_lshl_add_u32 v240, v243, 5, v242
    s_mul_i32 s84, s50, 458752
    s_lshl_b32 s85, s81, 7
    s_add_u32 s84, s84, s85
    s_mul_i32 s85, s50, 20480
    """)
def g2_dma_ops(k):
    j, fl = KORD[k]
    row = 112*j + fl
    slot = k % G2_RK
    return [f"""s_add_u32 s86, s84, {(row + 8*jj)*1024}
            s_add_u32 m0, s85, {slot*2048 + jj*1024}
            s_nop 0
            buffer_load_dwordx4 v240, s[52:55], s86 offen lds""" for jj in range(2)]
def g2_dma_issue(a, vm, k):
    for o in g2_dma_ops(k): a(o)
    vm.issue(f"d{k}", 2)

def g_gemm2(a, vm):
    a.comment("==== G: GEMM2 ====")
    if "gprio" in OPTS: a("s_setprio 0")
    if "gprio2" in OPTS: a("s_setprio 3")
    ACC = 8; AB = 72; NA = 4; BF = 104; NBK = 10; AD = 232; AT = 234
    NK = 28
    a(f"""
    v_and_b32 v1, 31, v0
    v_lshrrev_b32 v2, 5, v0
    s_mul_i32 s88, s50, 56
    v_add_u32 v2, s88, v2
    v_lshlrev_b32 v2, 10, v2
    v_lshl_add_u32 v1, v1, 4, v2
    s_mul_i32 s88, s80, 229376
    s_add_u32 s88, s88, {HQ}
    s_add_u32 s92, s{P_WS}, s88
    s_addc_u32 s93, s{P_WS+1}, 0
    """)
    def bload(k):
        j, fl = KORD[k]
        off = (14*j + fl//8)*1024
        b = BF + 8*(k % NBK)
        a(f"s_add_u32 s66, s92, {off}\n s_addc_u32 s67, s93, 0")
        a(f"global_load_dwordx4 {vr(b,4)}, v1, s[66:67] sc1")
        a(f"global_load_dwordx4 {vr(b+4,4)}, v1, s[66:67] offset:512 sc1")
        vm.issue(f"c{k}", 2)
    PF = NBK - 2
    for k in range(PF): bload(k)
    a(f"""
    s_and_b32 s82, s50, 1
    s_lshr_b32 s83, s50, 1
    s_lshl_b32 s87, s80, 6
    s_lshl_b32 s88, s82, 5
    s_add_u32 s87, s87, s88
    v_and_b32 v3, 31, v0
    v_add_u32 v3, s87, v3
    v_lshrrev_b32 v4, 5, v0
    s_lshl_b32 s88, s83, 5
    s_lshl_b32 s89, s81, 6
    s_add_u32 s88, s88, s89
    v_lshlrev_b32 v4, 2, v4
    v_add_u32 v4, s88, v4
    v_lshlrev_b32 v236, 10, v3
    v_lshl_add_u32 v236, v4, 1, v236
    v_lshlrev_b32 v237, 12, v4
    v_lshl_add_u32 v237, v3, 1, v237
    """)
    for g in range(4):
        a(f"global_load_dwordx2 {vr(184+2*g,2)}, v236, s[{P_X}:{P_X+1}] offset:{16*g}")
    vm.issue("xe", 4)
    a(f"""
    v_lshrrev_b32 v2, 4, v0
    v_and_b32 v3, 1, v2
    v_lshrrev_b32 v2, 1, v2
    v_bfe_u32 v4, v0, 2, 2
    v_and_b32 v5, 3, v0
    v_and_b32 v6, 2, v4
    v_lshl_add_u32 v7, v2, 3, v4
    v_lshlrev_b32 v7, 7, v7
    v_lshl_add_u32 v7, v5, 3, v7
    v_add_u32 v7, s85, v7
    """)
    for mt in range(2):
        a(f"""
        v_add_u32 v2, {2*mt}, v3
        v_xor_b32 v2, v2, v6
        v_lshl_add_u32 v{AD+mt}, v2, 5, v7
        """)
    for i in range(64):
        a(f"v_mov_b32 v{ACC+i}, 0")
    def rd(k, mt):
        dst = AB + 8*(k % NA) + 4*mt
        return [f"ds_read_b64_tr_b16 {vr(dst+2*h2,2)}, v{AD+mt} offset:{(k % G2_RK)*2048+h2*512}" for h2 in range(2)]
    vm.wait(a, ["d0", "d1"])
    for k in range(2):
        for mt in range(2):
            for l in rd(k, mt): a(l)
    nd = 8
    for k in range(NK):
        if k == 8:
            poll(a, 3, group_sreg=90, nflags=16)
        if k == 22:
            poll(a, 2, group_sreg=81, nflags=32)
            a(f"s_add_u32 s64, s{P_WS}, {ST}\n s_addc_u32 s65, s{P_WS+1}, 0")
            for i in range(16):
                dd = (i&3) + 8*(i>>2)
                a(f"v_add_u32 v{208+i}, {dd*4096}, v237")
                a(f"global_load_ushort v{192+i}, v{208+i}, s[64:65] sc1")
            vm.issue("sv", 16)
        tags = [f"c{k}"]
        if k+2 < NK: tags.append(f"d{k+2}")
        vm.wait(a, tags)
        if k % 8 == 7: stamp(a)
        b = BF + 8*(k % NBK)
        fill = []
        if k+2 < NK: fill = [rd(k+2, 0), rd(k+2, 1)]
        post = []
        if nd < NK and nd <= k + 7:
            post += [("dma", o) for o in g2_dma_ops(nd)]
        if k + PF < NK: post.append(("b", k+PF))
        rem_new = 0
        for mt in range(2):
            later = (1-mt)*2 + (4 if k+1 < NK else 0) + rem_new
            a(lgk(later))
            for nt in range(2):
                D = ACC + 16*(2*mt+nt)
                a(f"v_mfma_f32_32x32x16_bf16 {vr(D,16)}, {vr(AB+8*(k%NA)+4*mt,4)}, {vr(b+4*nt,4)}, {vr(D,16)}")
                if nt == 0 and fill:
                    for l in fill.pop(0): a(l)
                    rem_new += 2
                elif post:
                    kind, o = post.pop(0)
                    if kind == "dma": a(o); vm.issue(f"d{nd}")
                    else: bload(o)
        while post:
            kind, o = post.pop(0)
            if kind == "dma": a(o); vm.issue(f"d{nd}")
            else: bload(o)
        if nd < NK and nd <= k + 7: nd += 1
    stamp(a)
    a("s_barrier\n s_nop 7")
    a(f"""
    s_lshl_b32 s88, s50, 14
    v_lshlrev_b32 v1, 4, v0
    v_add_u32 v2, s88, v1
    """)
    for dst in range(4):
        for k in range(4):
            a(f"ds_write_b128 v2, {vr(ACC+16*dst+4*k,4)} offset:{dst*4096+k*1024}")
    a("s_waitcnt lgkmcnt(0)")

def g_epi(a, vm):
    a.comment("==== G: final epilogue ====")
    a(f"""
    s_lshl_b32 s88, s50, 12
    v_lshlrev_b32 v1, 4, v0
    v_add_u32 v2, s88, v1
    """)
    for src in range(4):
        for k in range(4):
            a(f"ds_read_b128 {vr(72+16*src+4*k,4)}, v2 offset:{src*16384+k*1024}")
    a("s_waitcnt lgkmcnt(0)")
    for i in range(16):
        a(f"""
        v_add_f32 v{72+i}, v{72+i}, v{88+i}
        v_add_f32 v{104+i}, v{104+i}, v{120+i}
        v_add_f32 v{72+i}, v{72+i}, v{104+i}
        """)
    a("s_mov_b32 s69, 0xbfb8aa3b")
    st = []
    for p in range(8):
        x = 72+2*p; t = 88+2*p; c = 104+p
        st.append(lines(f"""
        v_cvt_pk_bf16_f32 v{c}, v{x}, v{x+1}
        v_lshlrev_b32 v{x}, 16, v{c}
        v_and_b32 v{x+1}, 0xffff0000, v{c}
        v_mul_f32 v{t}, s69, v{x}
        v_mul_f32 v{t+1}, s69, v{x+1}
        v_exp_f32 v{t}, v{t}
        v_exp_f32 v{t+1}, v{t+1}
        v_add_f32 v{t}, 1.0, v{t}
        v_add_f32 v{t+1}, 1.0, v{t+1}
        v_rcp_f32 v{t}, v{t}
        v_rcp_f32 v{t+1}, v{t+1}
        v_mul_f32 v{x}, v{x}, v{t}
        v_mul_f32 v{x+1}, v{x+1}, v{t+1}
        v_cvt_pk_bf16_f32 v{c}, v{x}, v{x+1}
        v_lshlrev_b32 v{x}, 16, v{c}
        v_and_b32 v{x+1}, 0xffff0000, v{c}"""))
    interleave(a, st)
    a("s_waitcnt vmcnt(0)")
    st = []
    for p in range(8):
        x = 72+2*p; t = 88+2*p; c = 104+p; sv = 192+2*p
        st.append(lines(f"""
        v_lshlrev_b32 v{sv}, 16, v{sv}
        v_lshlrev_b32 v{sv+1}, 16, v{sv+1}
        v_mul_f32 v{x}, v{x}, v{sv}
        v_mul_f32 v{x+1}, v{x+1}, v{sv+1}
        v_cvt_pk_bf16_f32 v{c}, v{x}, v{x+1}
        v_lshlrev_b32 v{x}, 16, v{c}
        v_and_b32 v{x+1}, 0xffff0000, v{c}
        v_lshlrev_b32 v{t}, 16, v{184+p}
        v_and_b32 v{t+1}, 0xffff0000, v{184+p}
        v_add_f32 v{x}, v{x}, v{t}
        v_add_f32 v{x+1}, v{x+1}, v{t+1}
        v_cvt_pk_bf16_f32 v{112+p}, v{x}, v{x+1}"""))
    interleave(a, st)
    for g in range(4):
        a(f"global_store_dwordx2 v236, {vr(112+2*g,2)}, s[{P_OUT}:{P_OUT+1}] offset:{16*g}")

def prog_g(a):
    vm = Vm()
    stamp_begin(a)
    g_ln(a, vm)
    stamp(a)
    nonce_get(a)
    if FINE: stamp(a)
    vm.wait(a, "xqst")
    if FINE: stamp(a)
    a("s_barrier")
    flag_set(a, 0)
    if FINE: stamp(a)
    for s in range(8): g1_dma_issue(a, vm, s)
    stamp(a)
    poll(a, 0, group_sreg=48, nflags=16)
    stamp(a)
    g_gemm1(a, vm)
    stamp(a)
    poll(a, 1, group_sreg=90, nflags=16)
    vm.wait(a, "hstb")
    a("s_barrier")
    flag_set(a, 3)
    stamp(a)
    g_gemm2(a, vm)
    a("s_barrier")
    stamp(a)
    g_epi(a, vm)
    a("s_waitcnt vmcnt(0)")
    stamp(a)
    stamp_flush(a)
    a("s_branch Lend")

X_T = 0; X_KC = 0; X_U = 33280; X_R = 48640; X_RED = 57088
INV2PI = 0x3e22f983
def x_early(a, vm):
    a(f"""
    s_mov_b32 s71, s50
    s_lshl_b32 s72, s4, 6
    s_lshl_b32 s73, s5, 1
    s_add_u32 s72, s72, s73            ; d0
    v_and_b32 v1, 31, v0
    s_lshl_b32 s73, s72, 7
    s_lshl_b32 s74, s71, 5
    s_add_u32 s73, s73, s74
    v_add_u32 v1, s73, v1
    v_lshlrev_b32 v1, 1, v1
    s_lshl_b32 s73, s72, 1
    v_mov_b32 v2, s73
    """)
    for ch in range(2):
        B = 224 + 8*ch
        for i, p in enumerate((P_ARE, P_AIM, P_BRE, P_BIM, P_CRE, P_CIM)):
            a(f"global_load_ushort v{B+i}, v1, s[{p}:{p+1}] offset:{256*ch}")
        a(f"global_load_ushort v{B+6}, v2, s[{P_LDT}:{P_LDT+1}] offset:{2*ch}")
        a(f"global_load_ushort v{B+7}, v2, s[{P_DSK}:{P_DSK+1}] offset:{2*ch}")
        vm.issue(f"par{ch}", 8)
    a(f"""
    v_min_u32 v4, 55, v0
    v_lshlrev_b32 v4, 7, v4
    s_mul_i32 s6, s3, 7168
    v_add_u32 v4, s6, v4
    s_cmp_eq_u32 s50, 0
    s_cselect_b32 s6, s{P_WG}, s{P_WU}
    s_cselect_b32 s7, s{P_WG+1}, s{P_WU+1}
    s_cmp_eq_u32 s50, 2
    s_cselect_b32 s6, s{P_WD}, s6
    s_cselect_b32 s7, s{P_WD+1}, s7
    global_load_dword v243, v4, s[6:7]
    """)
    vm.issue("t1", 1)

def x_touch_w(a, vm):
    for dj in range(2):
        a(f"""
        s_and_b32 s6, s5, 3
        s_lshl_b32 s6, s6, 7
        s_lshl_b32 s7, s50, 5
        s_add_u32 s6, s6, s7
        s_add_u32 s6, s6, {16*dj}
        v_lshrrev_b32 v180, 2, v0
        v_add_u32 v180, s6, v180
        v_mul_u32_u24 v180, 3584, v180
        v_and_b32 v181, 3, v0
        v_mul_u32_u24 v181, 72, v181
        v_and_b32 v181, 0xfc, v181
        v_add_u32 v180, v180, v181
        s_mul_i32 s6, s49, 224
        v_add_u32 v180, s6, v180
        global_load_dword v243, v180, s[{P_WG}:{P_WG+1}]
        global_load_dword v243, v180, s[{P_WU}:{P_WU+1}]
        """)
    vm.issue("tw", 4)

def x_touch_wd(a, vm):
    a(f"""
    s_and_b32 s6, s5, 7
    s_mul_i32 s6, s6, 224
    s_mul_i32 s7, s50, 56
    s_add_u32 s6, s6, s7
    v_min_u32 v180, 55, v0
    v_add_u32 v180, s6, v180
    v_lshlrev_b32 v180, 10, v180
    s_and_b32 s6, s4, 1
    s_lshl_b32 s6, s6, 2
    s_lshr_b32 s7, s5, 3
    s_add_u32 s6, s6, s7
    s_lshl_b32 s6, s6, 7
    v_add_u32 v180, s6, v180
    global_load_dword v243, v180, s[{P_WD}:{P_WD+1}]
    """)
    vm.issue("twd", 1)

def cmul(a, d, x, y):
    a(f"""
    v_pk_mul_f32 {vr(d,2)}, {vr(x,2)}, {vr(y,2)} op_sel_hi:[1,0]
    v_pk_fma_f32 {vr(d,2)}, {vr(x,2)}, {vr(y,2)}, {vr(d,2)} op_sel:[1,1,0] op_sel_hi:[0,1,1] neg_lo:[1,0,0]
    """)

def x_kgen(a, vm, ch, mid=None):
    a.comment(f"==== X: Kgen ch{ch} ====")
    B = 224 + 8*ch
    vm.wait(a, f"par{ch}")
    for r in range(B, B+8):
        a(f"v_lshlrev_b32 v{r}, 16, v{r}")
    a(f"""
    s_mov_b32 s74, 0x3fb8aa3b
    s_mov_b32 s75, 0x32a57060
    v_mul_f32 v15, s74, v{B+6}
    v_fma_f32 v16, v{B+6}, s74, -v15
    v_fma_f32 v16, v{B+6}, s75, v16
    v_exp_f32 v15, v15
    v_mul_f32 v16, 0x3f317218, v16
    v_fma_f32 v15, v15, v16, v15
    """)
    bf16_round(a, 15, 15)
    a(f"""
    v_mul_f32 v8, v15, v{B}
    v_mul_f32 v9, v15, v{B+1}
    v_mul_f32 v10, v15, v{B+2}
    v_mul_f32 v11, v15, v{B+3}
    """)
    cmul(a, 18, B+4, 10)
    a(f"v_mul_f32 v16, s74, v8\n v_mul_f32 v17, 0x{INV2PI:08x}, v9")
    def cexp_lit(d, p, t):
        return lines(f"""
        v_mul_f32 v{t}, {p}, v16
        v_mul_f32 v{t+1}, {p}, v17
        v_exp_f32 v{t}, v{t}
        v_fract_f32 v{t+1}, v{t+1}
        v_cos_f32 v{d}, v{t+1}
        v_sin_f32 v{d+1}, v{t+1}
        s_nop 0
        v_mul_f32 v{d}, v{d}, v{t}
        v_mul_f32 v{d+1}, v{d+1}, v{t}""")
    interleave(a, [cexp_lit(20, "0x41800000", 30), cexp_lit(22, "0x44000000", 32), cexp_lit(24, "0x45000000", 34)])
    a(f"""
    v_mul_f32 v26, v19, v25
    v_fma_f32 v26, v18, v24, -v26
    v_mul_f32 v27, 0x45000000, v16
    v_max_f32 v27, 0, v27
    v_exp_f32 v27, v27
    v_add_f32 v28, abs(v18), abs(v19)
    v_mul_f32 v27, v27, v28
    v_cmp_gt_u32 vcc, 32, v0
    s_nop 1
    v_cndmask_b32 v26, 0, v26, vcc
    v_cndmask_b32 v27, 0, v27, vcc
    """)
    wave_reduce(a, 26)
    wave_reduce(a, 27)
    if ch == 1: a("s_barrier")
    a(f"""
    s_mul_i32 s78, s50, 9360
    s_add_u32 s78, s78, {X_T}
    v_and_b32 v1, 31, v0
    v_lshlrev_b32 v1, 5, v1
    v_add_u32 v1, s78, v1
    ds_write_b128 v1, v[16:19]
    ds_write_b128 v1, v[20:23] offset:16
    v_readlane_b32 s76, v26, 63
    v_readlane_b32 s77, v27, 63
    s_nop 1
    v_mov_b32 v2, s76
    v_mov_b32 v3, s77
    v_mov_b32 v1, s78
    ds_write_b64 v1, v[2:3] offset:{64*144}
    """)
    ACC = 192
    for i in range(32):
        a(f"v_mov_b32 v{ACC+i}, 0")
    a(f"""
    v_and_b32 v1, 15, v0
    v_cvt_f32_u32 v2, v1
    v_mul_f32 v4, 0x42000000, v2
    v_mov_b32 v3, v2
    v_mov_b32 v5, v4
    v_lshrrev_b32 v6, 4, v0
    v_lshlrev_b32 v6, 7, v6
    v_add_u32 v6, s78, v6
    s_waitcnt lgkmcnt(0)
    """)
    HF = 16; GF = 32
    def eblock(ks, e, TB):
        ops = []
        A = ops.append
        h0, h1, g = TB+8, TB+10, TB+12
        er, t0, t1, t2 = TB+20, TB+22, TB+24, TB+26
        A(f"v_pk_mul_f32 {vr(t0,2)}, {vr(TB,2)}, v[2:3]")
        A(f"v_pk_mul_f32 {vr(t1,2)}, {vr(TB,2)}, v[4:5]")
        A(f"v_exp_f32 v{t0}, v{t0}")
        A(f"v_exp_f32 v{t1}, v{t1}")
        A(f"v_fract_f32 v{t0+1}, v{t0+1}")
        A(f"v_fract_f32 v{t1+1}, v{t1+1}")
        A(f"v_cos_f32 v{h0}, v{t0+1}")
        A(f"v_sin_f32 v{h0+1}, v{t0+1}")
        A(f"v_cos_f32 v{er}, v{t1+1}")
        A(f"v_sin_f32 v{er+1}, v{t1+1}")
        A("s_nop 0")
        A(f"v_pk_mul_f32 {vr(h0,2)}, {vr(h0,2)}, {vr(t0,2)} op_sel_hi:[1,0]")
        A(f"v_pk_mul_f32 {vr(er,2)}, {vr(er,2)}, {vr(t1,2)} op_sel_hi:[1,0]")
        def cm(d, x, y):
            A(f"v_pk_mul_f32 {vr(d,2)}, {vr(x,2)}, {vr(y,2)} op_sel_hi:[1,0]")
            A(f"v_pk_fma_f32 {vr(d,2)}, {vr(x,2)}, {vr(y,2)}, {vr(d,2)} op_sel:[1,1,0] op_sel_hi:[0,1,1] neg_lo:[1,0,0]")
        cm(h1, h0, TB+4)
        cm(g, er, TB+2)
        cm(g+2, g, TB+6)
        cm(g+4, g+2, TB+6)
        cm(g+6, g+4, TB+6)
        def sp(hi, lo, x, t, neg):
            n = "-" if neg else ""
            A(f"v_cvt_pk_bf16_f32 v{hi}, v{x}, {n}v{x+1}")
            A(f"v_lshlrev_b32 v{t}, 16, v{hi}")
            A(f"v_and_b32 v{t+1}, 0xffff0000, v{hi}")
            if neg: A(f"v_pk_add_f32 {vr(t,2)}, {vr(x,2)}, {vr(t,2)} neg_lo:[0,1] neg_hi:[1,1]")
            else:   A(f"v_pk_add_f32 {vr(t,2)}, {vr(x,2)}, {vr(t,2)} neg_lo:[0,1] neg_hi:[0,1]")
            A(f"v_cvt_pk_bf16_f32 v{lo}, v{t}, v{t+1}")
        for ct in range(2):
            sp(HF+(ct*2)*4+e, HF+(ct*2+1)*4+e, h0+2*ct, (t0, t1)[ct], True)
        for rt in range(4):
            sp(GF+(rt*2)*4+e, GF+(rt*2+1)*4+e, g+2*rt, (t2, t0, t1, t2)[rt], False)
        return ops
    TBs = (64, 92, 120, 148)
    for ks in range(2):
        for e in range(4):
            off = (16*ks+e)*32
            a(f"ds_read_b128 {vr(TBs[e],4)}, v6 offset:{off}\n ds_read_b128 {vr(TBs[e]+4,4)}, v6 offset:{off+16}")
        a("s_waitcnt lgkmcnt(0)")
        interleave(a, [eblock(ks, e, TBs[e]) for e in range(4)])
        a("s_nop 1")
        for pas in range(3):
            for rt in range(4):
                for ct in range(2):
                    D = ACC+(rt*2+ct)*4
                    hh = HF+(ct*2)*4; hl = HF+(ct*2+1)*4; gh = GF+(rt*2)*4; gl = GF+(rt*2+1)*4
                    x, y = ((hh, gh), (hl, gh), (hh, gl))[pas]
                    a(f"v_mfma_f32_16x16x32_bf16 {vr(D,4)}, {vr(x,4)}, {vr(y,4)}, {vr(D,4)}")
        if ks == 0 and mid: mid()
    a(f"""
    v_and_b32 v1, 15, v0
    v_mul_u32_u24 v1, 144, v1
    v_lshrrev_b32 v4, 4, v0
    v_lshl_add_u32 v1, v4, 4, v1
    v_add_u32 v1, s78, v1
    s_lshl_b32 s73, s71, 6
    v_add_u32 v7, s73, v0
    v_sub_u32 v2, 2047, v7
    """)
    for e in range(8):
        a(f"""
        v_subrev_u32 v8, {256*e}, v2
        v_cvt_f32_u32 v8, v8
        v_cvt_pk_bf16_f32 v8, v8, v8
        v_lshlrev_b32 v8, 16, v8
        v_cvt_u32_f32 v8, v8
        v_lshrrev_b32 v9, 5, v8
        v_and_b32 v10, 31, v8
        v_mul_u32_u24 v9, 144, v9
        v_lshl_add_u32 v{64+e}, v10, 2, v9
        """)
    for rt in range(4):
        for ct in range(2):
            D = ACC+(rt*2+ct)*4
            a(f"ds_write_b128 v1, {vr(D,4)} offset:{rt*16*144 + ct*64}")
    a("v_mov_b32 v72, 0")
    a("s_waitcnt lgkmcnt(0)\n s_barrier")
    for e in range(8):
        for qq in range(4):
            a(f"ds_read_b32 v{16+e*4+qq}, v{64+e} offset:{X_T + qq*9360}")
    for qq in range(4):
        a(f"ds_read_b32 v{48+qq}, v72 offset:{X_T + qq*9360 + 64*144 + 4}")
    a(f"""
    v_lshlrev_b32 v3, 1, v7
    v_add_u32 v3, {X_R + ch*4224}, v3
    v_mov_b32 v56, 0
    v_mov_b32 v57, 0
    v_mov_b32 v58, 0
    v_mov_b32 v59, 0
    v_mov_b32 v4, {X_R + ch*4224}
    ds_write_b128 v4, v[56:59] offset:4096
    ds_write_b128 v4, v[56:59] offset:4112
    ds_write_b128 v4, v[56:59] offset:4128
    ds_write_b128 v4, v[56:59] offset:4144
    s_waitcnt lgkmcnt(4)
    v_add_f32 v48, v48, v49
    v_add_f32 v50, v50, v51
    v_add_f32 v48, v48, v50
    v_frexp_exp_i32_f32 v49, v48
    v_sub_u32 v50, 14, v49
    v_subrev_u32 v51, 14, v49
    v_ldexp_f32 v50, 1.0, v50
    v_ldexp_f32 v{240+ch}, 1.0, v51
    """)
    for e in range(8):
        b = 16+e*4
        a(f"""
        v_add_f32 v{b}, v{b}, v{b+1}
        v_add_f32 v{b+2}, v{b+2}, v{b+3}
        v_add_f32 v{b}, v{b}, v{b+2}
        v_mul_f32 v{b}, v50, v{b}
        v_cvt_f16_f32 v{b}, v{b}
        ds_write_b16 v3, v{b} offset:{512*e}
        """)

def x_uload(a, vm):
    a(f"""
    s_lshl_b32 s73, s50, 6
    v_add_u32 v1, s73, v0
    s_lshr_b32 s75, s72, 3
    s_lshl_b32 s75, s75, 11
    s_and_b32 s74, s72, 7
    s_lshl_b32 s74, s74, 1
    s_add_u32 s75, s75, s74
    s_add_u32 s74, s{P_WS}, s75
    s_addc_u32 s75, s{P_WS+1}, 0
    v_lshrrev_b32 v2, 7, v1
    v_lshlrev_b32 v2, 17, v2
    v_and_b32 v3, 127, v1
    v_lshl_add_u32 v2, v3, 4, v2
    """)
    for i in range(8):
        a(f"global_load_dword v{8+i}, v2, s[74:75] sc1")
        if i < 7: a("v_add_u32 v2, 0x40000, v2")
    vm.issue("u", 8)
    a(f"""
    v_mov_b32 v56, 0
    v_mov_b32 v57, 0
    v_mov_b32 v58, 0
    v_mov_b32 v59, 0
    v_cmp_gt_u32 vcc, 160, v1
    v_lshlrev_b32 v3, 4, v1
    v_add_u32 v3, {X_U}, v3
    s_and_saveexec_b64 s[76:77], vcc
    ds_write_b128 v3, v[56:59]
    ds_write_b128 v3, v[56:59] offset:7680
    s_mov_b64 exec, s[76:77]
    v_lshrrev_b32 v3, 5, v1
    v_mul_u32_u24 v3, 80, v3
    v_and_b32 v4, 31, v1
    v_lshl_add_u32 v3, v4, 1, v3
    v_add_u32 v3, {X_U+2560}, v3
    """)

def x_uwrite(a, vm):
    vm.wait(a, "u")
    for i in range(8):
        a(f"""
        v_lshlrev_b32 v16, 16, v{8+i}
        v_and_b32 v17, 0xffff0000, v{8+i}
        v_cvt_f16_f32 v16, v16
        v_cvt_f16_f32 v17, v17
        ds_write_b16 v3, v16 offset:{i*8*80}
        ds_write_b16 v3, v17 offset:{7680 + i*8*80}
        """)

def kc_build_one(a, vz, ch):
    a(f"""
    v_lshlrev_b32 v5, 4, v{vz}
    v_add_u32 v4, {X_KC}, v5
    v_add_u32 v5, {X_R + ch*4224}, v5
    ds_read_b128 v[64:67], v5
    ds_read_b128 v[68:71], v5 offset:16
    s_waitcnt lgkmcnt(0)
    """)
    for c in range(8):
        sft = 7-c
        dst = 72+4*c
        for k in range(4):
            if sft % 2 == 0: a(f"v_mov_b32 v{dst+k}, v{64+sft//2+k}")
            else: a(f"v_alignbit_b32 v{dst+k}, v{64+sft//2+k+1}, v{64+sft//2+k}, 16")
        a(f"ds_write_b128 v4, {vr(dst,4)} offset:{c*4160}")

def x_kc(a, ch):
    a(f"s_lshl_b32 s74, s71, 6\n v_add_u32 v1, s74, v0")
    kc_build_one(a, 1, ch)
    Ls = a.newlabel("kcskip")
    a(f"""
    s_cmp_lg_u32 s71, 0
    s_cbranch_scc1 {Ls}
    v_cmp_gt_u32 vcc, 3, v0
    s_and_saveexec_b64 s[76:77], vcc
    v_add_u32 v2, 256, v0
    """)
    kc_build_one(a, 2, ch)
    a("s_mov_b64 exec, s[76:77]")
    a.label(Ls)

def x_conv(a, vm, ch):
    a.comment(f"==== X: conv ch{ch} ====")
    ACC0 = 192; ACC1 = 208
    a(f"""
    v_and_b32 v1, 31, v0
    v_lshrrev_b32 v2, 5, v0
    v_and_b32 v3, 7, v1
    v_lshrrev_b32 v4, 3, v1
    v_mul_u32_u24 v3, 4160, v3
    v_sub_u32 v4, v2, v4
    v_add_u32 v4, 255, v4
    v_lshl_add_u32 v3, v4, 4, v3
    s_lshl_b32 s73, s71, 9
    s_add_u32 s73, s73, {64*7+2048}
    s_sub_u32 s74, {X_KC}, s73
    v_add_u32 v5, s74, v3
    v_mul_u32_u24 v6, 80, v1
    v_lshl_add_u32 v6, v2, 4, v6
    s_lshl_b32 s73, s71, 3
    s_sub_u32 s73, 25, s73
    s_mul_i32 s73, s73, 80
    s_add_u32 s73, s73, {X_U + ch*7680}
    v_add_u32 v6, s73, v6
    """)
    for i in range(32):
        a(f"v_mov_b32 v{ACC0+i}, 0")
    def reads(i, base):
        for ks in range(2):
            a(f"ds_read_b128 {vr(base+ks*16,4)}, v5 offset:{64*(7-i)+32*ks+2048}")
            a(f"ds_read_b128 {vr(base+ks*16+4,4)}, v5 offset:{64*(7-i)+32*ks}")
            a(f"ds_read_b128 {vr(base+ks*16+8,4)}, v6 offset:{(7-i)*80+ks*32}")
            a(f"ds_read_b128 {vr(base+ks*16+12,4)}, v6 offset:{(7-i)*80+2560+ks*32}")
    reads(0, 8)
    for i in range(8):
        base = 8 + 32*(i&1)
        if i < 7:
            reads(i+1, 8+32*((i+1)&1))
            a("s_waitcnt lgkmcnt(8)")
        else:
            a("s_waitcnt lgkmcnt(0)")
        for ks in range(2):
            An = base+ks*16; Af = An+4; B0 = An+8; B1 = An+12
            a(f"v_mfma_f32_32x32x16_f16 {vr(ACC0,16)}, {vr(An,4)}, {vr(B0,4)}, {vr(ACC0,16)}")
            a(f"v_mfma_f32_32x32x16_f16 {vr(ACC1,16)}, {vr(An,4)}, {vr(B1,4)}, {vr(ACC1,16)}")
            a(f"v_mfma_f32_32x32x16_f16 {vr(ACC1,16)}, {vr(Af,4)}, {vr(B0,4)}, {vr(ACC1,16)}")
    a(f"""
    v_lshlrev_b32 v1, 4, v0
    s_nop 7
    """)
    for dq in range(4):
        L = a.newlabel("rs")
        a(f"""
        s_cmp_eq_u32 s71, {dq}
        s_cbranch_scc1 {L}
        s_sub_u32 s73, s71, {dq+1}
        s_and_b32 s73, s73, 3
        s_lshl_b32 s73, s73, 11
        s_add_u32 s73, s73, {X_RED + dq*6144}
        v_add_u32 v2, s73, v1
        ds_write_b128 v2, {vr(ACC0+8*dq,4)}
        ds_write_b128 v2, {vr(ACC0+8*dq+4,4)} offset:1024
        """)
        a.label(L)
    Ld = a.newlabel("mvd")
    for dq in range(4):
        L = a.newlabel("mv")
        a(f"s_cmp_lg_u32 s71, {dq}\n s_cbranch_scc1 {L}")
        for i in range(8): a(f"v_mov_b32 v{8+i}, v{ACC0+8*dq+i}")
        a(f"s_branch {Ld}")
        a.label(L)
    a.label(Ld)
    a(f"""
    s_waitcnt lgkmcnt(0)
    s_barrier
    s_mul_i32 s73, s71, 6144
    s_add_u32 s73, s73, {X_RED}
    v_add_u32 v2, s73, v1
    """)
    for sl in range(3):
        a(f"ds_read_b128 {vr(16+8*sl,4)}, v2 offset:{sl*2048}")
        a(f"ds_read_b128 {vr(20+8*sl,4)}, v2 offset:{sl*2048+1024}")
    a(f"""
    v_and_b32 v3, 31, v0
    v_lshrrev_b32 v4, 5, v0
    s_lshr_b32 s73, s71, 1
    s_lshl_b32 s73, s73, 5
    s_and_b32 s74, s71, 1
    s_lshl_b32 s74, s74, 4
    v_add_u32 v5, s73, v3
    v_mul_u32_u24 v6, 80, v5
    v_lshl_add_u32 v6, v4, 3, v6
    s_lshl_b32 s76, s74, 1
    s_add_u32 s75, s76, {X_U + ch*7680 + 2560}
    v_add_u32 v6, s75, v6
    ds_read_b64 v[40:41], v6
    ds_read_b64 v[42:43], v6 offset:16
    v_lshlrev_b32 v5, 5, v5
    v_lshl_add_u32 v5, v4, 2, v5
    v_add_u32 v5, s74, v5
    v_lshlrev_b32 v5, 1, v5
    s_add_u32 s75, s72, {ch}
    s_lshl_b32 s75, s75, 12
    s_add_u32 s74, s{P_WS}, s75
    s_addc_u32 s75, s{P_WS+1}, 0
    s_add_u32 s74, s74, {ST}
    s_addc_u32 s75, s75, 0
    s_waitcnt lgkmcnt(0)
    """)
    DSK = 224 + 8*ch + 7
    for i in range(8):
        a(f"""
        v_add_f32 v{8+i}, v{8+i}, v{16+i}
        v_add_f32 v{24+i}, v{24+i}, v{32+i}
        v_add_f32 v{8+i}, v{8+i}, v{24+i}
        v_mul_f32 v{8+i}, v{240+ch}, v{8+i}
        """)
    st = []
    for p in range(4):
        st.append(lines(f"""
        v_cvt_f32_f16 v{44+2*p}, v{40+p}
        v_cvt_f32_f16_sdwa v{45+2*p}, v{40+p} dst_sel:DWORD dst_unused:UNUSED_PAD src0_sel:WORD_1
        v_mul_f32 v{44+2*p}, v{DSK}, v{44+2*p}
        v_mul_f32 v{45+2*p}, v{DSK}, v{45+2*p}
        v_cvt_pk_bf16_f32 v{52+p}, v{44+2*p}, v{45+2*p}
        v_cvt_pk_bf16_f32 v{56+p}, v{8+2*p}, v{9+2*p}
        v_lshlrev_b32 v{44+2*p}, 16, v{52+p}
        v_and_b32 v{45+2*p}, 0xffff0000, v{52+p}
        v_lshlrev_b32 v{8+2*p}, 16, v{56+p}
        v_and_b32 v{9+2*p}, 0xffff0000, v{56+p}
        v_add_f32 v{8+2*p}, v{8+2*p}, v{44+2*p}
        v_add_f32 v{9+2*p}, v{9+2*p}, v{45+2*p}
        v_cvt_pk_bf16_f32 v{60+p}, v{8+2*p}, v{9+2*p}"""))
    interleave(a, st)
    a(f"""
    global_store_dwordx2 v5, v[60:61], s[74:75] sc1
    global_store_dwordx2 v5, v[62:63], s[74:75] offset:16 sc1
    """)
    vm.issue("sst", 2)

def prog_x(a):
    vm = Vm()
    stamp_begin(a)
    if "xprio" in OPTS: a("s_setprio 2")
    x_early(a, vm)
    if "xskip" in OPTS:
        nonce_get(a)
        a("s_waitcnt vmcnt(0)\n s_barrier")
        flag_set(a, 2)
        a("s_waitcnt vmcnt(0)")
        stamp(a)
        stamp_flush(a)
        return
    x_kgen(a, vm, 0, mid=lambda: x_touch_w(a, vm))
    stamp(a)
    if "xprio3" in OPTS: a("s_setprio 0")
    x_kgen(a, vm, 1, mid=lambda: x_touch_wd(a, vm))
    stamp(a)
    if "xprio2" in OPTS: a("s_setprio 2")
    nonce_get(a)
    a("s_waitcnt lgkmcnt(0)")
    poll(a, 0)
    stamp(a)
    x_uload(a, vm)
    x_kc(a, 0)
    x_uwrite(a, vm)
    a("s_waitcnt lgkmcnt(0)\n s_barrier")
    stamp(a)
    x_conv(a, vm, 0)
    stamp(a)
    a("s_barrier")
    x_kc(a, 1)
    a("s_waitcnt lgkmcnt(0)\n s_barrier")
    x_conv(a, vm, 1)
    stamp(a)
    vm.wait(a, "sst")
    a("s_barrier")
    flag_set(a, 2)
    a("s_waitcnt vmcnt(0)")
    stamp(a)
    stamp_flush(a)

def build():
    a = Asm()
    prologue(a)
    prog_g(a)
    a.label("LprogX")
    prog_x(a)
    a.label("Lend")
    a("s_endpgm")
    hdr = HEADER_COMMENT + f"; @launch grid=(512,1,1) block=(256,1,1) lds={LDS_BYTES}\n"
    txt = hdr + '.amdgcn_target "amdgcn-amd-amdhsa--gfx950"\n.text\n' + kernel_header(KNAME) + a.text()
    txt += '.section .rodata,"a"\n' + kernel_desc(KNAME)
    return txt

if __name__ == "__main__":
    opts = sys.argv[2].split(",") if len(sys.argv) > 2 else []
    OPTS = opts
    if "stamps" in opts: STAMPS = True
    if "fine" in opts: FINE = True
    if "dbgx" in opts: DBGWG[0] = 264
    open(sys.argv[1], "w").write(build())
```

```python
import sys, copy
from asmlib import *

XQ = 0
HQ = 0x200000
ST = 0x900000
FLG = 0xC00000
P_X, P_ARE, P_AIM, P_BRE, P_BIM, P_CRE, P_CIM, P_LDT = 16,18,20,22,24,26,28,30
P_DSK, P_BX, P_WG, P_WU, P_WD, P_OUT, P_DBG, P_WS = 32,34,36,38,40,42,44,46
KNAME = "recurrent_scan__ssm_conv_s4__glu_gated_glu__prompt_kernel"
LDS_BYTES = 81920
OPTS = []
DBGWG = [8]
SLEEP = 4
FINE = False
STAMPS = False
_stamp_n = [0]
def stamp(a, name=""):
    if not STAMPS: return
    i = _stamp_n[0]; _stamp_n[0] += 1
    a(f"s_memtime s[98:99]\n s_waitcnt lgkmcnt(0)\n v_writelane_b32 v255, s98, {i}")
def stamp_begin(a):
    _stamp_n[0] = 0
    if STAMPS: a("s_memrealtime s[98:99]\n s_waitcnt lgkmcnt(0)\n v_writelane_b32 v255, s98, 62")
    stamp(a)
def stamp_flush(a):
    if not STAMPS: return
    if "dbgst" in OPTS:
        L = a.newlabel("dbs")
        a(f"""
        s_cmp_lg_u32 s2, {DBGWG[0]}
        s_cbranch_scc1 {L}
        s_cmp_lg_u32 s50, 0
        s_cbranch_scc1 {L}
        v_readlane_b32 s98, v255, 0
        s_nop 3
        v_subrev_u32 v254, s98, v255
        v_lshlrev_b32 v253, 2, v0
        v_add_u32 v253, 4, v253
        v_cmp_gt_u32 vcc, 15, v0
        v_cmp_lt_u32 s[96:97], 0, v0
        s_nop 1
        s_and_b64 vcc, vcc, s[96:97]
        s_and_saveexec_b64 s[96:97], vcc
        global_store_dword v253, v254, s[{P_DBG}:{P_DBG+1}]
        s_mov_b64 exec, s[96:97]
        """)
        a.label(L)
        return
    a("s_memrealtime s[98:99]\n s_waitcnt lgkmcnt(0)\n v_writelane_b32 v255, s98, 63")
    a(f"v_writelane_b32 v255, 0, {_stamp_n[0]}")
    a(f"""
    s_lshl_b32 s98, s2, 2
    s_add_u32 s98, s98, s50
    s_lshl_b32 s98, s98, 8
    s_add_u32 s98, s98, 0x2000000
    s_add_u32 s96, s{P_WS}, s98
    s_addc_u32 s97, s{P_WS+1}, 0
    v_lshlrev_b32 v254, 2, v0
    global_store_dword v254, v255, s[96:97]
    """)

class Vm:
    STORES = ("xqst", "hst", "hsta", "hstb", "sst")
    def __init__(self): self.ops = []
    def issue(self, tag, n=1):
        for _ in range(n): self.ops.append(tag)
    def wait(self, a, tags):
        if isinstance(tags, str): tags = [tags]
        if any(t in self.STORES for t in tags):
            a("s_waitcnt vmcnt(0)")
            return
        last = -1
        for i, t in enumerate(self.ops):
            if t in tags: last = i
        assert last >= 0, tags
        n = sum(1 for t in self.ops[last+1:] if t not in self.STORES)
        a(f"s_waitcnt vmcnt({min(n,63)})")

def lgk(n): return f"s_waitcnt lgkmcnt({min(n,15)})"

def wave_reduce(a, v, op="add"):
    for sh in (1,2,4,8):
        a(f"s_nop 1\n v_{op}_f32_dpp v{v}, v{v}, v{v} row_shr:{sh} row_mask:0xf bank_mask:0xf bound_ctrl:0")
    a(f"s_nop 1\n v_{op}_f32_dpp v{v}, v{v}, v{v} row_bcast:15 row_mask:0xa bank_mask:0xf")
    a(f"s_nop 1\n v_{op}_f32_dpp v{v}, v{v}, v{v} row_bcast:31 row_mask:0xc bank_mask:0xf")
    a("s_nop 1")
def bf16_round(a, dst, src):
    a(f"v_cvt_pk_bf16_f32 v{dst}, v{src}, v{src}\n v_lshlrev_b32 v{dst}, 16, v{dst}")
def make_srd(a, s, ptr, nbytes):
    a(f"""
    s_mov_b32 s{s}, s{ptr}
    s_and_b32 s{s+1}, s{ptr+1}, 0xffff
    s_mov_b32 s{s+2}, {nbytes}
    s_mov_b32 s{s+3}, 0x00020000
    """)
def interleave(a, streams):
    n = max(len(s) for s in streams)
    for k in range(n):
        for s in streams:
            if k < len(s): a(s[k])
def lines(s): return [l.strip() for l in s.strip("\n").split("\n") if l.strip()]

PT = (246, 248, 250, 252)
def nonce_publish(a):
    L = a.newlabel("np")
    a(f"""
    s_or_b32 s6, s2, s50
    s_cmp_lg_u32 s6, 0
    s_cbranch_scc1 {L}
    s_memrealtime s[6:7]
    s_waitcnt lgkmcnt(0)
    s_or_b32 s6, s6, 1
    v_mov_b32 v244, 0
    v_mov_b32 v246, s6
    v_mov_b32 v247, s7
    s_mov_b64 s[6:7], exec
    s_mov_b64 exec, 1
    global_store_dwordx2 v244, v[246:247], s[{P_DBG}:{P_DBG+1}] sc1
    s_mov_b64 exec, s[6:7]
    """)
    a.label(L)
def nonce_get(a):
    L = a.newlabel("ng"); Lp = a.newlabel("ngp"); Ld = a.newlabel("ngd")
    a(f"""
    s_cmp_lg_u32 s50, 0
    s_cbranch_scc1 {L}
    v_mov_b32 v244, 0
    s_mov_b32 s6, 0
    """)
    a.label(Lp)
    a(f"""
    global_load_dwordx2 v[246:247], v244, s[{P_DBG}:{P_DBG+1}] sc1
    s_waitcnt vmcnt(0)
    v_cmp_eq_u32 vcc, 0, v246
    s_add_u32 s6, s6, 1
    s_cmp_gt_u32 s6, 200000
    s_cbranch_scc1 {Ld}
    s_cbranch_vccz {Ld}
    s_sleep 2
    s_branch {Lp}
    """)
    a.label(Ld)
    a("v_readfirstlane_b32 s8, v246\n v_readfirstlane_b32 s9, v247")
    a.label(L)
def flag_set(a, phase):
    L = a.newlabel("fs")
    a(f"s_cmp_lg_u32 s50, 0\n s_cbranch_scc1 {L}")
    if phase != 2: a("s_lshl_b32 s6, s48, 4\n s_add_u32 s6, s6, s49")
    else: a("s_lshl_b32 s6, s4, 5\n s_add_u32 s6, s6, s5")
    a(f"""
    s_lshl_b32 s6, s6, 3
    s_add_u32 s6, s6, {FLG + phase*2048}
    v_mov_b32 v244, s6
    v_mov_b32 v246, s8
    v_mov_b32 v247, s9
    s_mov_b64 s[6:7], exec
    s_mov_b64 exec, 1
    global_store_dwordx2 v244, v[246:247], s[{P_WS}:{P_WS+1}] sc1
    s_mov_b64 exec, s[6:7]
    """)
    a.label(L)
def poll(a, phase, group_sreg=None, nflags=256):
    L = a.newlabel("pl"); Lp = a.newlabel("plp"); Ld = a.newlabel("pld")
    a(f"s_cmp_lg_u32 s50, 0\n s_cbranch_scc1 {L}")
    if group_sreg is None:
        a(f"v_lshlrev_b32 v244, 3, v0\n v_add_u32 v244, {FLG + phase*2048}, v244")
        nl = 4
    else:
        a(f"""
        v_and_b32 v244, {nflags-1}, v0
        v_lshlrev_b32 v244, 3, v244
        s_mul_i32 s6, s{group_sreg}, {nflags*8}
        s_add_u32 s6, s6, {FLG + phase*2048}
        v_add_u32 v244, s6, v244
        """)
        nl = 1
    a("s_mov_b32 s6, 0")
    a.label(Lp)
    for k in range(nl):
        a(f"global_load_dwordx2 v[{PT[k]}:{PT[k]+1}], v244, s[{P_WS}:{P_WS+1}] offset:{k*512} sc1")
    a("s_waitcnt vmcnt(0)")
    for k in range(nl):
        a(f"v_xor_b32 v{PT[k]}, s8, v{PT[k]}\n v_xor_b32 v{PT[k]+1}, s9, v{PT[k]+1}")
    for k in range(nl):
        if k > 0: a(f"v_or_b32 v{PT[0]}, v{PT[0]}, v{PT[k]}")
        a(f"v_or_b32 v{PT[0]}, v{PT[0]}, v{PT[k]+1}")
    a(f"""
    v_cmp_ne_u32 vcc, 0, v{PT[0]}
    s_add_u32 s6, s6, 1
    s_cmp_gt_u32 s6, 200000
    s_cbranch_scc1 {Ld}
    s_cbranch_vccz {Ld}
    s_sleep {SLEEP}
    s_branch {Lp}
    """)
    a.label(Ld)
    a.label(L)
    a("s_barrier")

def prologue(a):
    a(f"""
    s_cmp_ge_u32 s2, 512
    s_cbranch_scc1 Lend
    s_load_dwordx16 s[16:31], s[0:1], 0
    s_load_dwordx16 s[32:47], s[0:1], 64
    v_lshrrev_b32 v1, 6, v0
    v_and_b32 v0, 63, v0
    v_readfirstlane_b32 s50, v1
    s_and_b32 s3, s2, 255
    s_and_b32 s4, s3, 7
    s_lshr_b32 s5, s3, 3
    s_lshr_b32 s6, s4, 1
    s_lshl_b32 s6, s6, 2
    s_and_b32 s7, s5, 3
    s_add_u32 s48, s6, s7
    s_and_b32 s6, s4, 1
    s_lshl_b32 s6, s6, 3
    s_lshr_b32 s7, s5, 2
    s_add_u32 s49, s6, s7
    s_waitcnt lgkmcnt(0)
    """)
    if "codepf" in OPTS:
        L = a.newlabel("cpf")
        a(f"""
        s_cmp_gt_u32 s5, 5
        s_cbranch_scc1 {L}
        s_cmp_lg_u32 s50, 3
        s_cbranch_scc1 {L}
        s_getpc_b64 s[6:7]
        s_and_b32 s6, s6, 0xffffff00
        v_lshlrev_b32 v4, 7, v0
        s_lshl_b32 s10, s5, 13
        v_add_u32 v4, s10, v4
        v_min_u32 v4, (Lend-{KNAME}-256), v4
        global_load_dword v243, v4, s[6:7]
        """)
        a.label(L)
    a("""
    s_cmp_ge_u32 s2, 256
    s_cbranch_scc1 LprogX
    """)

G1_R = 10
def g_ln(a, vm):
    a.comment("==== G: LN (2 rows per wave) ====")
    a(f"""
    s_lshl_b32 s51, s48, 7
    s_lshl_b32 s52, s49, 3
    s_add_u32 s91, s51, s52
    s_lshl_b32 s51, s50, 1
    s_add_u32 s51, s51, s91
    s_lshl_b32 s52, s51, 10
    s_add_u32 s92, s{P_X}, s52
    s_addc_u32 s93, s{P_X+1}, 0
    v_lshlrev_b32 v3, 4, v0
    global_load_dwordx4 v[4:7], v3, s[92:93]
    global_load_dwordx4 v[44:47], v3, s[92:93] offset:1024
    """)
    vm.issue("x", 2)
    nonce_publish(a)
    g1_dma_setup(a)
    vm.wait(a, "x")
    def row(B, sreg):
        o = []
        for i in range(4):
            o += [f"v_lshlrev_b32 v{B+4+2*i}, 16, v{B+i}", f"v_and_b32 v{B+5+2*i}, 0xffff0000, v{B+i}"]
        o += lines(f"""
        v_add_f32 v{B+12}, v{B+4}, v{B+5}
        v_add_f32 v{B+13}, v{B+6}, v{B+7}
        v_add_f32 v{B+14}, v{B+8}, v{B+9}
        v_add_f32 v{B+15}, v{B+10}, v{B+11}
        v_add_f32 v{B+12}, v{B+12}, v{B+13}
        v_add_f32 v{B+14}, v{B+14}, v{B+15}
        v_add_f32 v{B+12}, v{B+12}, v{B+14}""")
        def red(v):
            r = []
            for sh in (1,2,4,8):
                r += ["s_nop 0", f"v_add_f32_dpp v{v}, v{v}, v{v} row_shr:{sh} row_mask:0xf bank_mask:0xf bound_ctrl:0"]
            r += ["s_nop 0", f"v_add_f32_dpp v{v}, v{v}, v{v} row_bcast:15 row_mask:0xa bank_mask:0xf"]
            r += ["s_nop 0", f"v_add_f32_dpp v{v}, v{v}, v{v} row_bcast:31 row_mask:0xc bank_mask:0xf", "s_nop 0"]
            return r
        o += red(B+12)
        o += [f"v_readlane_b32 s{sreg}, v{B+12}, 63", "s_nop 1", f"v_mov_b32 v{B+13}, s{sreg}", f"v_mul_f32 v{B+13}, 0x3b000000, v{B+13}"]
        for i in range(8): o.append(f"v_sub_f32 v{B+16+i}, v{B+4+i}, v{B+13}")
        o.append(f"v_mul_f32 v{B+12}, v{B+16}, v{B+16}")
        for i in range(1,8): o.append(f"v_fmac_f32 v{B+12}, v{B+16+i}, v{B+16+i}")
        o += red(B+12)
        o += [f"v_readlane_b32 s{sreg+1}, v{B+12}, 63", "s_nop 1", f"v_mov_b32 v{B+14}, s{sreg+1}", f"v_mul_f32 v{B+14}, 0x3b000000, v{B+14}"]
        def rnd(v): return [f"v_cvt_pk_bf16_f32 v{v}, v{v}, v{v}", f"v_lshlrev_b32 v{v}, 16, v{v}"]
        o += rnd(B+14) + [f"v_add_f32 v{B+14}, 0x3727c5ac, v{B+14}"] + rnd(B+14) + [f"v_sqrt_f32 v{B+14}, v{B+14}", "s_nop 0"] + rnd(B+14)
        o += [f"v_rcp_f32 v{B+15}, v{B+14}"] + rnd(B+13)
        for i in range(8): o.append(f"v_sub_f32 v{B+16+i}, v{B+4+i}, v{B+13}")
        for i in range(4): o.append(f"v_cvt_pk_bf16_f32 v{B+24+i}, v{B+16+2*i}, v{B+17+2*i}")
        for i in range(4): o += [f"v_lshlrev_b32 v{B+16+2*i}, 16, v{B+24+i}", f"v_and_b32 v{B+17+2*i}, 0xffff0000, v{B+24+i}"]
        for i in range(8):
            o += [f"v_mul_f32 v{B+4+i}, v{B+16+i}, v{B+15}", f"v_fma_f32 v{B+28+i}, -v{B+4+i}, v{B+14}, v{B+16+i}", f"v_fma_f32 v{B+4+i}, v{B+28+i}, v{B+15}, v{B+4+i}"]
        for i in range(4): o.append(f"v_cvt_pk_bf16_f32 v{B+i}, v{B+4+2*i}, v{B+5+2*i}")
        return o
    interleave(a, [row(4, 94), row(44, 96)])
    LN_SCR = 65536
    a(f"""
    s_mul_i32 s94, s50, 2080
    s_add_u32 s94, s94, {LN_SCR}
    v_lshlrev_b32 v3, 4, v0
    v_add_u32 v3, s94, v3
    ds_write_b128 v3, v[4:7]
    ds_write_b128 v3, v[44:47] offset:1040
    v_and_b32 v8, 7, v0
    v_lshrrev_b32 v9, 3, v0
    s_lshl_b32 s94, s50, 4
    v_add_u32 v9, s94, v9             ; group g = 16w + (lane>>3)  (+8 second)
    v_mul_u32_u24 v10, 1040, v8
    v_lshl_add_u32 v10, v9, 4, v10
    v_add_u32 v10, {LN_SCR}, v10
    s_waitcnt lgkmcnt(0)
    s_barrier
    ds_read_b128 v[4:7], v10
    ds_read_b128 v[12:15], v10 offset:128
    v_lshlrev_b32 v11, 11, v9
    s_lshl_b32 s94, s49, 3
    v_add_u32 v12+0, s94, v8
    """.replace("v12+0", "v16"))
    a(f"""
    v_lshl_add_u32 v11, v16, 4, v11
    s_lshl_b32 s94, s48, 17
    s_add_u32 s92, s{P_WS}, s94
    s_addc_u32 s93, s{P_WS+1}, 0
    v_add_u32 v17, 16384, v11
    s_waitcnt lgkmcnt(0)
    global_store_dwordx4 v11, v[4:7], s[92:93] sc1
    global_store_dwordx4 v17, v[12:15], s[92:93] sc1
    """)
    vm.issue("xqst", 2)

def g1_dma_setup(a):
    make_srd(a, 52, P_WG, 512*3584)
    make_srd(a, 56, P_WU, 512*3584)
    a("""
    v_lshrrev_b32 v242, 3, v0          ; r_local
    v_bfe_u32 v243, v0, 1, 2           ; chunk'
    v_and_b32 v238, 1, v0
    v_bfe_u32 v239, v242, 1, 1
    v_xor_b32 v239, v243, v239
    v_xor_b32 v243, 2, v239
    v_mul_u32_u24 v242, 3584, v242
    v_lshl_add_u32 v242, v238, 4, v242
    v_lshl_add_u32 v240, v239, 5, v242
    v_lshl_add_u32 v241, v243, 5, v242
    s_mul_i32 s60, s49, 224
    s_mul_i32 s61, s50, 28672
    s_add_u32 s60, s60, s61
    s_lshl_b32 s62, s50, 10
    """)
def g1_dma_ops(stage):
    slot = stage % G1_R
    so = (stage % 16)*32*3584 + (stage // 16)*128
    return [f"""s_add_u32 s61, s60, {so}
            s_add_u32 m0, s62, {slot*8192}
            s_nop 0
            buffer_load_dwordx4 v240, s[52:55], s61 offen lds""",
            f"""s_add_u32 m0, s62, {slot*8192 + 4096}
            s_nop 0
            buffer_load_dwordx4 v241, s[56:59], s61 offen lds"""]
def g1_dma_issue(a, vm, stage):
    for o in g1_dma_ops(stage): a(o)
    vm.issue(f"w{stage}", 2)

def g_gemm1(a, vm):
    a.comment("==== G: GEMM1 (F-split) ====")
    if "gprio" in OPTS: a("s_setprio 3")
    BF = 8; ACC = 136; AX = 200; AY = 216; AD = 232
    AT = [2,3,4,5]
    a(f"""
    s_lshl_b32 s63, s50, 5
    s_lshl_b32 s64, s48, 7
    s_add_u32 s63, s63, s64
    s_lshl_b32 s64, s50, 5
    v_and_b32 v1, 31, v0
    v_add_u32 v1, s64, v1
    v_lshrrev_b32 v2, 5, v0
    v_lshlrev_b32 v2, 11, v2
    v_lshl_add_u32 v1, v1, 4, v2
    s_lshl_b32 s65, s48, 17
    s_add_u32 s64, s{P_WS}, s65
    s_addc_u32 s65, s{P_WS+1}, 0
    """)
    def bload(ks):
        a(f"global_load_dwordx4 {vr(BF+4*ks,4)}, v1, s[64:65] sc1")
        a("s_add_u32 s64, s64, 4096\n s_addc_u32 s65, s65, 0")
        vm.issue(f"b{ks}")
    PF = 12
    for ks in range(PF): bload(ks)
    a(f"""
    v_lshrrev_b32 v2, 4, v0
    v_and_b32 v3, 1, v2                ; region
    v_lshrrev_b32 v2, 1, v2            ; khalf
    v_bfe_u32 v4, v0, 2, 2             ; r4
    v_and_b32 v5, 3, v0                ; cq
    v_lshrrev_b32 v6, 1, v4
    v_lshl_add_u32 v6, v3, 1, v6       ; e = (r4>>1) | region<<1
    v_lshlrev_b32 v6, 5, v6
    v_lshl_add_u32 v7, v2, 3, v4
    v_lshlrev_b32 v7, 7, v7            ; (8khalf + r4)*128
    v_lshl_add_u32 v7, v3, 12, v7
    v_lshl_add_u32 v7, v5, 3, v7
    """)
    for t in range(4):
        a(f"v_xor_b32 v{AD+t}, {t*32}, v6\n v_add_u32 v{AD+t}, v{AD+t}, v7")
    a(f"""
    s_and_b32 s66, s63, 63
    v_and_b32 v6, 31, v0
    v_add_u32 v6, s66, v6
    v_lshrrev_b32 v7, 5, v0
    s_mul_i32 s68, s49, 14
    v_add_u32 v7, s68, v7
    v_lshlrev_b32 v7, 10, v7
    v_lshl_add_u32 v6, v6, 4, v7
    s_lshr_b32 s68, s63, 6
    s_mul_i32 s68, s68, 229376
    s_add_u32 s68, s68, {HQ}
    s_add_u32 s88, s{P_WS}, s68
    s_addc_u32 s89, s{P_WS+1}, 0
    s_mov_b32 s69, 0xbfb8aa3b
    """)
    def rd(k2, dst, t):
        return [f"ds_read_b64_tr_b16 {vr(dst+4*t+2*h2,2)}, v{AT[t]} offset:{k2*2048+h2*512}" for h2 in range(2)]
    def mf(src, ks, t):
        return f"v_mfma_f32_32x32x16_bf16 {vr(ACC+16*t,16)}, {vr(src+4*t,4)}, {vr(BF+4*ks,4)}, {vr(ACC+16*t,16)}"
    def ntiles(stage): return 4 if stage < 16 else 3
    def epilogue(nt, tag):
        for t in range(nt):
            A = ACC+16*t
            R = (236, 248)[t & 1]
            st = []
            for p in range(4):
                g0 = A+2*p; u0 = A+8+2*p
                b = 200 + 8*p
                st.append(lines(f"""
                v_cvt_pk_bf16_f32 v{b}, v{g0}, v{g0+1}
                v_cvt_pk_bf16_f32 v{b+1}, v{u0}, v{u0+1}
                v_lshlrev_b32 v{b+2}, 16, v{b}
                v_and_b32 v{b+3}, 0xffff0000, v{b}
                v_mul_f32 v{b+2}, s69, v{b+2}
                v_mul_f32 v{b+3}, s69, v{b+3}
                v_exp_f32 v{b+2}, v{b+2}
                v_exp_f32 v{b+3}, v{b+3}
                v_lshlrev_b32 v{b+4}, 16, v{b+1}
                v_and_b32 v{b+5}, 0xffff0000, v{b+1}
                v_add_f32 v{b+2}, 1.0, v{b+2}
                v_add_f32 v{b+3}, 1.0, v{b+3}
                v_rcp_f32 v{b+2}, v{b+2}
                v_rcp_f32 v{b+3}, v{b+3}
                v_cvt_pk_bf16_f32 v{b+6}, v{b+2}, v{b+3}
                v_lshlrev_b32 v{b+2}, 16, v{b+6}
                v_and_b32 v{b+3}, 0xffff0000, v{b+6}
                v_pk_mul_f32 {vr(b+2,2)}, {vr(b+2,2)}, {vr(b+4,2)}
                v_cvt_pk_bf16_f32 v{R+p}, v{b+2}, v{b+3}"""))
            interleave(a, st)
            a(f"""
            s_nop 1
            v_permlane32_swap_b32 v{R}, v{R+2}
            v_permlane32_swap_b32 v{R+1}, v{R+3}
            global_store_dwordx4 v6, {vr(R,4)}, s[88:89] sc1
            s_add_u32 s88, s88, 2048
            s_addc_u32 s89, s89, 0
            """)
            vm.issue(tag)
    NSG = 32
    for pas in range(2):
        nt = 4 if pas == 0 else 3
        s0 = 16*pas
        for i in range(16*nt): a(f"v_mov_b32 v{ACC+i}, 0")
        vm.wait(a, [f"w{s0}", "b0", "b1"] if pas == 0 else [f"w{s0}"])
        a("s_barrier")
        for t in range(nt): a(f"v_add_u32 v{AT[t]}, {(s0 % G1_R)*8192}, v{AD+t}")
        for t in range(nt):
            for l in rd(0, AX, t): a(l)
        a("s_waitcnt lgkmcnt(4)")
        for t in range(nt):
            for l in rd(1, AY, t): a(l)
        for sl in range(16):
            s = s0 + sl
            last = (sl == 15)
            even = (sl % 2 == 0)
            if last and pas == 0: vm.wait(a, ["b31", "b30"])
            if not last:
                tags = []
                if even: tags += [f"w{s+1}"] + ([f"w{s+2}"] if s+2 < NSG and sl+2 < 16+1 and (s+2) < s0+16 else [])
                if pas == 0: tags += [f"b{2*sl+2}", f"b{2*sl+1}"]
                if pas == 1 and sl == 6: tags.append("hsta")
                if tags: vm.wait(a, tags)
                if even:
                    a("s_barrier")
                    if pas == 1 and sl == 6: flag_set(a, 1)
                if sl % 8 == 6: stamp(a)
                for t in range(nt): a(f"v_add_u32 v{AT[t]}, {((s+1) % G1_R)*8192}, v{AD+t}")
            extra = []
            if even:
                for nd in (s+8, s+9):
                    if nd < NSG: extra += [("dma", o, nd) for o in g1_dma_ops(nd)]
            if pas == 0:
                for ks in (2*sl+PF, 2*sl+PF+1):
                    if ks < 32: extra.append(("b", ks, None))
            for half, buf in ((0, AX), (1, AY)):
                for t in range(nt):
                    if not last: a(lgk(4*nt - 4))
                    else: a(lgk(2*(nt-1-t) + (2*nt if half == 0 else 0)))
                    a(mf(buf, 2*sl+half, t))
                    if not last:
                        for l in rd(half, buf, t): a(l)
                    if extra:
                        kind, o, tg = extra.pop(0)
                        if kind == "dma": a(o); vm.issue(f"w{tg}")
                        else: bload(o)
            assert not extra
        stamp(a)
        if pas == 1:
            a("s_barrier")
            g2_setup(a)
            for k in range(8): g2_dma_issue(a, vm, k)
        else:
            a("s_nop 7\n s_nop 3")
        epilogue(nt, "hsta" if pas == 0 else "hstb")

G2_RK = 10
def g2_korder():
    ks = []
    for j in range(4):
        for i in range(4): ks.append((j, 16*i))
    for j in range(4):
        for i in range(3): ks.append((j, 64+16*i))
    return ks
KORD = g2_korder()
def g2_setup(a):
    make_srd(a, 52, P_WD, 1792*1024)
    a("""
    s_lshr_b32 s80, s4, 1
    s_lshl_b32 s80, s80, 3
    s_and_b32 s81, s5, 7
    s_add_u32 s80, s80, s81
    s_and_b32 s81, s4, 1
    s_lshl_b32 s81, s81, 2
    s_lshr_b32 s82, s5, 3
    s_add_u32 s81, s81, s82
    s_lshr_b32 s90, s80, 1
    v_lshrrev_b32 v242, 3, v0
    v_bfe_u32 v243, v0, 1, 2
    v_and_b32 v238, 1, v0
    v_and_b32 v239, 2, v242
    v_xor_b32 v243, v243, v239
    v_lshlrev_b32 v242, 10, v242
    v_lshl_add_u32 v242, v238, 4, v242
    v_lshl_add_u32 v240, v243, 5, v242
    s_mul_i32 s84, s50, 458752
    s_lshl_b32 s85, s81, 7
    s_add_u32 s84, s84, s85
    s_mul_i32 s85, s50, 20480
    """)
def g2_dma_ops(k):
    j, fl = KORD[k]
    row = 112*j + fl
    slot = k % G2_RK
    return [f"""s_add_u32 s86, s84, {(row + 8*jj)*1024}
            s_add_u32 m0, s85, {slot*2048 + jj*1024}
            s_nop 0
            buffer_load_dwordx4 v240, s[52:55], s86 offen lds""" for jj in range(2)]
def g2_dma_issue(a, vm, k):
    for o in g2_dma_ops(k): a(o)
    vm.issue(f"d{k}", 2)

def g_gemm2(a, vm):
    a.comment("==== G: GEMM2 ====")
    if "gprio" in OPTS: a("s_setprio 0")
    if "gprio2" in OPTS: a("s_setprio 3")
    ACC = 8; AB = 72; NA = 4; BF = 104; NBK = 10; AD = 232; AT = 234
    NK = 28
    a(f"""
    v_and_b32 v1, 31, v0
    v_lshrrev_b32 v2, 5, v0
    s_mul_i32 s88, s50, 56
    v_add_u32 v2, s88, v2
    v_lshlrev_b32 v2, 10, v2
    v_lshl_add_u32 v1, v1, 4, v2
    s_mul_i32 s88, s80, 229376
    s_add_u32 s88, s88, {HQ}
    s_add_u32 s92, s{P_WS}, s88
    s_addc_u32 s93, s{P_WS+1}, 0
    """)
    def bload(k):
        j, fl = KORD[k]
        off = (14*j + fl//8)*1024
        b = BF + 8*(k % NBK)
        a(f"s_add_u32 s66, s92, {off}\n s_addc_u32 s67, s93, 0")
        a(f"global_load_dwordx4 {vr(b,4)}, v1, s[66:67] sc1")
        a(f"global_load_dwordx4 {vr(b+4,4)}, v1, s[66:67] offset:512 sc1")
        vm.issue(f"c{k}", 2)
    PF = NBK - 2
    for k in range(PF): bload(k)
    a(f"""
    s_and_b32 s82, s50, 1
    s_lshr_b32 s83, s50, 1
    s_lshl_b32 s87, s80, 6
    s_lshl_b32 s88, s82, 5
    s_add_u32 s87, s87, s88
    v_and_b32 v3, 31, v0
    v_add_u32 v3, s87, v3
    v_lshrrev_b32 v4, 5, v0
    s_lshl_b32 s88, s83, 5
    s_lshl_b32 s89, s81, 6
    s_add_u32 s88, s88, s89
    v_lshlrev_b32 v4, 2, v4
    v_add_u32 v4, s88, v4
    v_lshlrev_b32 v236, 10, v3
    v_lshl_add_u32 v236, v4, 1, v236
    v_lshlrev_b32 v237, 12, v4
    v_lshl_add_u32 v237, v3, 1, v237
    """)
    for g in range(4):
        a(f"global_load_dwordx2 {vr(184+2*g,2)}, v236, s[{P_X}:{P_X+1}] offset:{16*g}")
    vm.issue("xe", 4)
    a(f"""
    v_lshrrev_b32 v2, 4, v0
    v_and_b32 v3, 1, v2
    v_lshrrev_b32 v2, 1, v2
    v_bfe_u32 v4, v0, 2, 2
    v_and_b32 v5, 3, v0
    v_and_b32 v6, 2, v4
    v_lshl_add_u32 v7, v2, 3, v4
    v_lshlrev_b32 v7, 7, v7
    v_lshl_add_u32 v7, v5, 3, v7
    v_add_u32 v7, s85, v7
    """)
    for mt in range(2):
        a(f"""
        v_add_u32 v2, {2*mt}, v3
        v_xor_b32 v2, v2, v6
        v_lshl_add_u32 v{AD+mt}, v2, 5, v7
        """)
    for i in range(64):
        a(f"v_mov_b32 v{ACC+i}, 0")
    def rd(k, mt):
        dst = AB + 8*(k % NA) + 4*mt
        return [f"ds_read_b64_tr_b16 {vr(dst+2*h2,2)}, v{AD+mt} offset:{(k % G2_RK)*2048+h2*512}" for h2 in range(2)]
    vm.wait(a, ["d0", "d1"])
    for k in range(2):
        for mt in range(2):
            for l in rd(k, mt): a(l)
    nd = 8
    for k in range(NK):
        if k == 8:
            poll(a, 3, group_sreg=90, nflags=16)
        if k == 22:
            poll(a, 2, group_sreg=81, nflags=32)
            a(f"s_add_u32 s64, s{P_WS}, {ST}\n s_addc_u32 s65, s{P_WS+1}, 0")
            for i in range(16):
                dd = (i&3) + 8*(i>>2)
                a(f"v_add_u32 v{208+i}, {dd*4096}, v237")
                a(f"global_load_ushort v{192+i}, v{208+i}, s[64:65] sc1")
            vm.issue("sv", 16)
        tags = [f"c{k}"]
        if k+2 < NK: tags.append(f"d{k+2}")
        vm.wait(a, tags)
        if k % 8 == 7: stamp(a)
        b = BF + 8*(k % NBK)
        fill = []
        if k+2 < NK: fill = [rd(k+2, 0), rd(k+2, 1)]
        post = []
        if nd < NK and nd <= k + 7:
            post += [("dma", o) for o in g2_dma_ops(nd)]
        if k + PF < NK: post.append(("b", k+PF))
        rem_new = 0
        for mt in range(2):
            later = (1-mt)*2 + (4 if k+1 < NK else 0) + rem_new
            a(lgk(later))
            for nt in range(2):
                D = ACC + 16*(2*mt+nt)
                a(f"v_mfma_f32_32x32x16_bf16 {vr(D,16)}, {vr(AB+8*(k%NA)+4*mt,4)}, {vr(b+4*nt,4)}, {vr(D,16)}")
                if nt == 0 and fill:
                    for l in fill.pop(0): a(l)
                    rem_new += 2
                elif post:
                    kind, o = post.pop(0)
                    if kind == "dma": a(o); vm.issue(f"d{nd}")
                    else: bload(o)
        while post:
            kind, o = post.pop(0)
            if kind == "dma": a(o); vm.issue(f"d{nd}")
            else: bload(o)
        if nd < NK and nd <= k + 7: nd += 1
    stamp(a)
    a("s_barrier\n s_nop 7")
    a(f"""
    s_lshl_b32 s88, s50, 14
    v_lshlrev_b32 v1, 4, v0
    v_add_u32 v2, s88, v1
    """)
    for dst in range(4):
        for k in range(4):
            a(f"ds_write_b128 v2, {vr(ACC+16*dst+4*k,4)} offset:{dst*4096+k*1024}")
    a("s_waitcnt lgkmcnt(0)")

def g_epi(a, vm):
    a.comment("==== G: final epilogue ====")
    a(f"""
    s_lshl_b32 s88, s50, 12
    v_lshlrev_b32 v1, 4, v0
    v_add_u32 v2, s88, v1
    """)
    for src in range(4):
        for k in range(4):
            a(f"ds_read_b128 {vr(72+16*src+4*k,4)}, v2 offset:{src*16384+k*1024}")
    a("s_waitcnt lgkmcnt(0)")
    for i in range(16):
        a(f"""
        v_add_f32 v{72+i}, v{72+i}, v{88+i}
        v_add_f32 v{104+i}, v{104+i}, v{120+i}
        v_add_f32 v{72+i}, v{72+i}, v{104+i}
        """)
    a("s_mov_b32 s69, 0xbfb8aa3b")
    st = []
    for p in range(8):
        x = 72+2*p; t = 88+2*p; c = 104+p
        st.append(lines(f"""
        v_cvt_pk_bf16_f32 v{c}, v{x}, v{x+1}
        v_lshlrev_b32 v{x}, 16, v{c}
        v_and_b32 v{x+1}, 0xffff0000, v{c}
        v_mul_f32 v{t}, s69, v{x}
        v_mul_f32 v{t+1}, s69, v{x+1}
        v_exp_f32 v{t}, v{t}
        v_exp_f32 v{t+1}, v{t+1}
        v_add_f32 v{t}, 1.0, v{t}
        v_add_f32 v{t+1}, 1.0, v{t+1}
        v_rcp_f32 v{t}, v{t}
        v_rcp_f32 v{t+1}, v{t+1}
        v_mul_f32 v{x}, v{x}, v{t}
        v_mul_f32 v{x+1}, v{x+1}, v{t+1}
        v_cvt_pk_bf16_f32 v{c}, v{x}, v{x+1}
        v_lshlrev_b32 v{x}, 16, v{c}
        v_and_b32 v{x+1}, 0xffff0000, v{c}"""))
    interleave(a, st)
    a("s_waitcnt vmcnt(0)")
    st = []
    for p in range(8):
        x = 72+2*p; t = 88+2*p; c = 104+p; sv = 192+2*p
        st.append(lines(f"""
        v_lshlrev_b32 v{sv}, 16, v{sv}
        v_lshlrev_b32 v{sv+1}, 16, v{sv+1}
        v_mul_f32 v{x}, v{x}, v{sv}
        v_mul_f32 v{x+1}, v{x+1}, v{sv+1}
        v_cvt_pk_bf16_f32 v{c}, v{x}, v{x+1}
        v_lshlrev_b32 v{x}, 16, v{c}
        v_and_b32 v{x+1}, 0xffff0000, v{c}
        v_lshlrev_b32 v{t}, 16, v{184+p}
        v_and_b32 v{t+1}, 0xffff0000, v{184+p}
        v_add_f32 v{x}, v{x}, v{t}
        v_add_f32 v{x+1}, v{x+1}, v{t+1}
        v_cvt_pk_bf16_f32 v{112+p}, v{x}, v{x+1}"""))
    interleave(a, st)
    for g in range(4):
        a(f"global_store_dwordx2 v236, {vr(112+2*g,2)}, s[{P_OUT}:{P_OUT+1}] offset:{16*g}")

def prog_g(a):
    vm = Vm()
    stamp_begin(a)
    g_ln(a, vm)
    stamp(a)
    nonce_get(a)
    if FINE: stamp(a)
    vm.wait(a, "xqst")
    if FINE: stamp(a)
    a("s_barrier")
    flag_set(a, 0)
    if FINE: stamp(a)
    Le = a.newlabel("edone"); L1 = a.newlabel("e1")
    a(f"s_cmp_eq_u32 s50, 0\n s_cbranch_scc1 {Le}")
    a(f"s_cmp_lg_u32 s50, 1\n s_cbranch_scc1 {L1}")
    for s in range(8):
        slot = s % G1_R
        so = (s % 16)*32*3584
        a(f"""
        s_add_u32 s61, s60, {so}
        s_sub_u32 s61, s61, 28672
        s_mov_b32 m0, {slot*8192}
        s_nop 0
        buffer_load_dwordx4 v240, s[52:55], s61 offen lds
        s_mov_b32 m0, {slot*8192 + 4096}
        s_nop 0
        buffer_load_dwordx4 v241, s[56:59], s61 offen lds
        """)
    a.label(L1)
    for s in range(8): g1_dma_issue(a, vm, s)
    a.label(Le)
    stamp(a)
    poll(a, 0, group_sreg=48, nflags=16)
    stamp(a)
    g_gemm1(a, vm)
    stamp(a)
    poll(a, 1, group_sreg=90, nflags=16)
    vm.wait(a, "hstb")
    a("s_barrier")
    flag_set(a, 3)
    stamp(a)
    g_gemm2(a, vm)
    a("s_barrier")
    stamp(a)
    g_epi(a, vm)
    a("s_waitcnt vmcnt(0)")
    stamp(a)
    stamp_flush(a)
    a("s_branch Lend")

X_T = 0; X_KC = 0; X_U = 33280; X_R = 48640; X_RED = 57088
INV2PI = 0x3e22f983
def x_early(a, vm):
    a(f"""
    s_mov_b32 s71, s50
    s_lshl_b32 s72, s4, 6
    s_lshl_b32 s73, s5, 1
    s_add_u32 s72, s72, s73            ; d0
    v_and_b32 v1, 31, v0
    s_lshl_b32 s73, s72, 7
    s_lshl_b32 s74, s71, 5
    s_add_u32 s73, s73, s74
    v_add_u32 v1, s73, v1
    v_lshlrev_b32 v1, 1, v1
    s_lshl_b32 s73, s72, 1
    v_mov_b32 v2, s73
    """)
    for ch in range(2):
        B = 224 + 8*ch
        for i, p in enumerate((P_ARE, P_AIM, P_BRE, P_BIM, P_CRE, P_CIM)):
            a(f"global_load_ushort v{B+i}, v1, s[{p}:{p+1}] offset:{256*ch}")
        a(f"global_load_ushort v{B+6}, v2, s[{P_LDT}:{P_LDT+1}] offset:{2*ch}")
        a(f"global_load_ushort v{B+7}, v2, s[{P_DSK}:{P_DSK+1}] offset:{2*ch}")
        vm.issue(f"par{ch}", 8)
    a(f"""
    v_min_u32 v4, 55, v0
    v_lshlrev_b32 v4, 7, v4
    s_mul_i32 s6, s3, 7168
    v_add_u32 v4, s6, v4
    s_cmp_eq_u32 s50, 0
    s_cselect_b32 s6, s{P_WG}, s{P_WU}
    s_cselect_b32 s7, s{P_WG+1}, s{P_WU+1}
    s_cmp_eq_u32 s50, 2
    s_cselect_b32 s6, s{P_WD}, s6
    s_cselect_b32 s7, s{P_WD+1}, s7
    global_load_dword v243, v4, s[6:7]
    """)
    vm.issue("t1", 1)

def x_touch_w(a, vm):
    for dj in range(2):
        a(f"""
        s_and_b32 s6, s5, 3
        s_lshl_b32 s6, s6, 7
        s_lshl_b32 s7, s50, 5
        s_add_u32 s6, s6, s7
        s_add_u32 s6, s6, {16*dj}
        v_lshrrev_b32 v180, 2, v0
        v_add_u32 v180, s6, v180
        v_mul_u32_u24 v180, 3584, v180
        v_and_b32 v181, 3, v0
        v_mul_u32_u24 v181, 72, v181
        v_and_b32 v181, 0xfc, v181
        v_add_u32 v180, v180, v181
        s_mul_i32 s6, s49, 224
        v_add_u32 v180, s6, v180
        global_load_dword v243, v180, s[{P_WG}:{P_WG+1}]
        global_load_dword v243, v180, s[{P_WU}:{P_WU+1}]
        """)
    vm.issue("tw", 4)

def x_touch_wd(a, vm):
    a(f"""
    s_and_b32 s6, s5, 7
    s_mul_i32 s6, s6, 224
    s_mul_i32 s7, s50, 56
    s_add_u32 s6, s6, s7
    v_min_u32 v180, 55, v0
    v_add_u32 v180, s6, v180
    v_lshlrev_b32 v180, 10, v180
    s_and_b32 s6, s4, 1
    s_lshl_b32 s6, s6, 2
    s_lshr_b32 s7, s5, 3
    s_add_u32 s6, s6, s7
    s_lshl_b32 s6, s6, 7
    v_add_u32 v180, s6, v180
    global_load_dword v243, v180, s[{P_WD}:{P_WD+1}]
    """)
    vm.issue("twd", 1)

def cmul(a, d, x, y):
    a(f"""
    v_pk_mul_f32 {vr(d,2)}, {vr(x,2)}, {vr(y,2)} op_sel_hi:[1,0]
    v_pk_fma_f32 {vr(d,2)}, {vr(x,2)}, {vr(y,2)}, {vr(d,2)} op_sel:[1,1,0] op_sel_hi:[0,1,1] neg_lo:[1,0,0]
    """)

def x_kgen(a, vm, ch, mid=None):
    a.comment(f"==== X: Kgen ch{ch} ====")
    B = 224 + 8*ch
    vm.wait(a, f"par{ch}")
    for r in range(B, B+8):
        a(f"v_lshlrev_b32 v{r}, 16, v{r}")
    a(f"""
    s_mov_b32 s74, 0x3fb8aa3b
    s_mov_b32 s75, 0x32a57060
    v_mul_f32 v15, s74, v{B+6}
    v_fma_f32 v16, v{B+6}, s74, -v15
    v_fma_f32 v16, v{B+6}, s75, v16
    v_exp_f32 v15, v15
    v_mul_f32 v16, 0x3f317218, v16
    v_fma_f32 v15, v15, v16, v15
    """)
    bf16_round(a, 15, 15)
    a(f"""
    v_mul_f32 v8, v15, v{B}
    v_mul_f32 v9, v15, v{B+1}
    v_mul_f32 v10, v15, v{B+2}
    v_mul_f32 v11, v15, v{B+3}
    """)
    cmul(a, 18, B+4, 10)
    a(f"v_mul_f32 v16, s74, v8\n v_mul_f32 v17, 0x{INV2PI:08x}, v9")
    def cexp_lit(d, p, t):
        return lines(f"""
        v_mul_f32 v{t}, {p}, v16
        v_mul_f32 v{t+1}, {p}, v17
        v_exp_f32 v{t}, v{t}
        v_fract_f32 v{t+1}, v{t+1}
        v_cos_f32 v{d}, v{t+1}
        v_sin_f32 v{d+1}, v{t+1}
        s_nop 0
        v_mul_f32 v{d}, v{d}, v{t}
        v_mul_f32 v{d+1}, v{d+1}, v{t}""")
    interleave(a, [cexp_lit(20, "0x41800000", 30), cexp_lit(22, "0x44000000", 32), cexp_lit(24, "0x45000000", 34)])
    a(f"""
    v_mul_f32 v26, v19, v25
    v_fma_f32 v26, v18, v24, -v26
    v_mul_f32 v27, 0x45000000, v16
    v_max_f32 v27, 0, v27
    v_exp_f32 v27, v27
    v_add_f32 v28, abs(v18), abs(v19)
    v_mul_f32 v27, v27, v28
    v_cmp_gt_u32 vcc, 32, v0
    s_nop 1
    v_cndmask_b32 v26, 0, v26, vcc
    v_cndmask_b32 v27, 0, v27, vcc
    """)
    wave_reduce(a, 26)
    wave_reduce(a, 27)
    if ch == 1: a("s_barrier")
    a(f"""
    s_mul_i32 s78, s50, 9360
    s_add_u32 s78, s78, {X_T}
    v_and_b32 v1, 31, v0
    v_lshlrev_b32 v1, 5, v1
    v_add_u32 v1, s78, v1
    ds_write_b128 v1, v[16:19]
    ds_write_b128 v1, v[20:23] offset:16
    v_readlane_b32 s76, v26, 63
    v_readlane_b32 s77, v27, 63
    s_nop 1
    v_mov_b32 v2, s76
    v_mov_b32 v3, s77
    v_mov_b32 v1, s78
    ds_write_b64 v1, v[2:3] offset:{64*144}
    """)
    ACC = 192
    for i in range(32):
        a(f"v_mov_b32 v{ACC+i}, 0")
    a(f"""
    v_and_b32 v1, 15, v0
    v_cvt_f32_u32 v2, v1
    v_mul_f32 v4, 0x42000000, v2
    v_mov_b32 v3, v2
    v_mov_b32 v5, v4
    v_lshrrev_b32 v6, 4, v0
    v_lshlrev_b32 v6, 7, v6
    v_add_u32 v6, s78, v6
    s_waitcnt lgkmcnt(0)
    """)
    HF = 16; GF = 32
    def eblock(ks, e, TB):
        ops = []
        A = ops.append
        h0, h1, g = TB+8, TB+10, TB+12
        er, t0, t1, t2 = TB+20, TB+22, TB+24, TB+26
        A(f"v_pk_mul_f32 {vr(t0,2)}, {vr(TB,2)}, v[2:3]")
        A(f"v_pk_mul_f32 {vr(t1,2)}, {vr(TB,2)}, v[4:5]")
        A(f"v_exp_f32 v{t0}, v{t0}")
        A(f"v_exp_f32 v{t1}, v{t1}")
        A(f"v_fract_f32 v{t0+1}, v{t0+1}")
        A(f"v_fract_f32 v{t1+1}, v{t1+1}")
        A(f"v_cos_f32 v{h0}, v{t0+1}")
        A(f"v_sin_f32 v{h0+1}, v{t0+1}")
        A(f"v_cos_f32 v{er}, v{t1+1}")
        A(f"v_sin_f32 v{er+1}, v{t1+1}")
        A("s_nop 0")
        A(f"v_pk_mul_f32 {vr(h0,2)}, {vr(h0,2)}, {vr(t0,2)} op_sel_hi:[1,0]")
        A(f"v_pk_mul_f32 {vr(er,2)}, {vr(er,2)}, {vr(t1,2)} op_sel_hi:[1,0]")
        def cm(d, x, y):
            A(f"v_pk_mul_f32 {vr(d,2)}, {vr(x,2)}, {vr(y,2)} op_sel_hi:[1,0]")
            A(f"v_pk_fma_f32 {vr(d,2)}, {vr(x,2)}, {vr(y,2)}, {vr(d,2)} op_sel:[1,1,0] op_sel_hi:[0,1,1] neg_lo:[1,0,0]")
        cm(h1, h0, TB+4)
        cm(g, er, TB+2)
        cm(g+2, g, TB+6)
        cm(g+4, g+2, TB+6)
        cm(g+6, g+4, TB+6)
        def sp(hi, lo, x, t, neg):
            n = "-" if neg else ""
            A(f"v_cvt_pk_bf16_f32 v{hi}, v{x}, {n}v{x+1}")
            A(f"v_lshlrev_b32 v{t}, 16, v{hi}")
            A(f"v_and_b32 v{t+1}, 0xffff0000, v{hi}")
            if neg: A(f"v_pk_add_f32 {vr(t,2)}, {vr(x,2)}, {vr(t,2)} neg_lo:[0,1] neg_hi:[1,1]")
            else:   A(f"v_pk_add_f32 {vr(t,2)}, {vr(x,2)}, {vr(t,2)} neg_lo:[0,1] neg_hi:[0,1]")
            A(f"v_cvt_pk_bf16_f32 v{lo}, v{t}, v{t+1}")
        for ct in range(2):
            sp(HF+(ct*2)*4+e, HF+(ct*2+1)*4+e, h0+2*ct, (t0, t1)[ct], True)
        for rt in range(4):
            sp(GF+(rt*2)*4+e, GF+(rt*2+1)*4+e, g+2*rt, (t2, t0, t1, t2)[rt], False)
        return ops
    TBs = (64, 92, 120, 148)
    for ks in range(2):
        for e in range(4):
            off = (16*ks+e)*32
            a(f"ds_read_b128 {vr(TBs[e],4)}, v6 offset:{off}\n ds_read_b128 {vr(TBs[e]+4,4)}, v6 offset:{off+16}")
        a("s_waitcnt lgkmcnt(0)")
        interleave(a, [eblock(ks, e, TBs[e]) for e in range(4)])
        a("s_nop 1")
        for pas in range(3):
            for rt in range(4):
                for ct in range(2):
                    D = ACC+(rt*2+ct)*4
                    hh = HF+(ct*2)*4; hl = HF+(ct*2+1)*4; gh = GF+(rt*2)*4; gl = GF+(rt*2+1)*4
                    x, y = ((hh, gh), (hl, gh), (hh, gl))[pas]
                    a(f"v_mfma_f32_16x16x32_bf16 {vr(D,4)}, {vr(x,4)}, {vr(y,4)}, {vr(D,4)}")
        if ks == 0 and mid: mid()
    a(f"""
    v_and_b32 v1, 15, v0
    v_mul_u32_u24 v1, 144, v1
    v_lshrrev_b32 v4, 4, v0
    v_lshl_add_u32 v1, v4, 4, v1
    v_add_u32 v1, s78, v1
    s_lshl_b32 s73, s71, 6
    v_add_u32 v7, s73, v0
    v_sub_u32 v2, 2047, v7
    """)
    for e in range(8):
        a(f"""
        v_subrev_u32 v8, {256*e}, v2
        v_cvt_f32_u32 v8, v8
        v_cvt_pk_bf16_f32 v8, v8, v8
        v_lshlrev_b32 v8, 16, v8
        v_cvt_u32_f32 v8, v8
        v_lshrrev_b32 v9, 5, v8
        v_and_b32 v10, 31, v8
        v_mul_u32_u24 v9, 144, v9
        v_lshl_add_u32 v{64+e}, v10, 2, v9
        """)
    for rt in range(4):
        for ct in range(2):
            D = ACC+(rt*2+ct)*4
            a(f"ds_write_b128 v1, {vr(D,4)} offset:{rt*16*144 + ct*64}")
    a("v_mov_b32 v72, 0")
    a("s_waitcnt lgkmcnt(0)\n s_barrier")
    for e in range(8):
        for qq in range(4):
            a(f"ds_read_b32 v{16+e*4+qq}, v{64+e} offset:{X_T + qq*9360}")
    for qq in range(4):
        a(f"ds_read_b32 v{48+qq}, v72 offset:{X_T + qq*9360 + 64*144 + 4}")
    a(f"""
    v_lshlrev_b32 v3, 1, v7
    v_add_u32 v3, {X_R + ch*4224}, v3
    v_mov_b32 v56, 0
    v_mov_b32 v57, 0
    v_mov_b32 v58, 0
    v_mov_b32 v59, 0
    v_mov_b32 v4, {X_R + ch*4224}
    ds_write_b128 v4, v[56:59] offset:4096
    ds_write_b128 v4, v[56:59] offset:4112
    ds_write_b128 v4, v[56:59] offset:4128
    ds_write_b128 v4, v[56:59] offset:4144
    s_waitcnt lgkmcnt(4)
    v_add_f32 v48, v48, v49
    v_add_f32 v50, v50, v51
    v_add_f32 v48, v48, v50
    v_frexp_exp_i32_f32 v49, v48
    v_sub_u32 v50, 14, v49
    v_subrev_u32 v51, 14, v49
    v_ldexp_f32 v50, 1.0, v50
    v_ldexp_f32 v{240+ch}, 1.0, v51
    """)
    for e in range(8):
        b = 16+e*4
        a(f"""
        v_add_f32 v{b}, v{b}, v{b+1}
        v_add_f32 v{b+2}, v{b+2}, v{b+3}
        v_add_f32 v{b}, v{b}, v{b+2}
        v_mul_f32 v{b}, v50, v{b}
        v_cvt_f16_f32 v{b}, v{b}
        ds_write_b16 v3, v{b} offset:{512*e}
        """)

def x_uload(a, vm):
    a(f"""
    s_lshl_b32 s73, s50, 6
    v_add_u32 v1, s73, v0
    s_lshr_b32 s75, s72, 3
    s_lshl_b32 s75, s75, 11
    s_and_b32 s74, s72, 7
    s_lshl_b32 s74, s74, 1
    s_add_u32 s75, s75, s74
    s_add_u32 s74, s{P_WS}, s75
    s_addc_u32 s75, s{P_WS+1}, 0
    v_lshrrev_b32 v2, 7, v1
    v_lshlrev_b32 v2, 17, v2
    v_and_b32 v3, 127, v1
    v_lshl_add_u32 v2, v3, 4, v2
    """)
    for i in range(8):
        a(f"global_load_dword v{8+i}, v2, s[74:75] sc1")
        if i < 7: a("v_add_u32 v2, 0x40000, v2")
    vm.issue("u", 8)
    a(f"""
    v_mov_b32 v56, 0
    v_mov_b32 v57, 0
    v_mov_b32 v58, 0
    v_mov_b32 v59, 0
    v_cmp_gt_u32 vcc, 160, v1
    v_lshlrev_b32 v3, 4, v1
    v_add_u32 v3, {X_U}, v3
    s_and_saveexec_b64 s[76:77], vcc
    ds_write_b128 v3, v[56:59]
    ds_write_b128 v3, v[56:59] offset:7680
    s_mov_b64 exec, s[76:77]
    v_lshrrev_b32 v3, 5, v1
    v_mul_u32_u24 v3, 80, v3
    v_and_b32 v4, 31, v1
    v_lshl_add_u32 v3, v4, 1, v3
    v_add_u32 v3, {X_U+2560}, v3
    """)

def x_uwrite(a, vm):
    vm.wait(a, "u")
    for i in range(8):
        a(f"""
        v_lshlrev_b32 v16, 16, v{8+i}
        v_and_b32 v17, 0xffff0000, v{8+i}
        v_cvt_f16_f32 v16, v16
        v_cvt_f16_f32 v17, v17
        ds_write_b16 v3, v16 offset:{i*8*80}
        ds_write_b16 v3, v17 offset:{7680 + i*8*80}
        """)

def kc_build_one(a, vz, ch):
    a(f"""
    v_lshlrev_b32 v5, 4, v{vz}
    v_add_u32 v4, {X_KC}, v5
    v_add_u32 v5, {X_R + ch*4224}, v5
    ds_read_b128 v[64:67], v5
    ds_read_b128 v[68:71], v5 offset:16
    s_waitcnt lgkmcnt(0)
    """)
    for c in range(8):
        sft = 7-c
        dst = 72+4*c
        for k in range(4):
            if sft % 2 == 0: a(f"v_mov_b32 v{dst+k}, v{64+sft//2+k}")
            else: a(f"v_alignbit_b32 v{dst+k}, v{64+sft//2+k+1}, v{64+sft//2+k}, 16")
        a(f"ds_write_b128 v4, {vr(dst,4)} offset:{c*4160}")

def x_kc(a, ch):
    a(f"s_lshl_b32 s74, s71, 6\n v_add_u32 v1, s74, v0")
    kc_build_one(a, 1, ch)
    Ls = a.newlabel("kcskip")
    a(f"""
    s_cmp_lg_u32 s71, 0
    s_cbranch_scc1 {Ls}
    v_cmp_gt_u32 vcc, 3, v0
    s_and_saveexec_b64 s[76:77], vcc
    v_add_u32 v2, 256, v0
    """)
    kc_build_one(a, 2, ch)
    a("s_mov_b64 exec, s[76:77]")
    a.label(Ls)

def x_conv(a, vm, ch):
    a.comment(f"==== X: conv ch{ch} ====")
    ACC0 = 192; ACC1 = 208
    a(f"""
    v_and_b32 v1, 31, v0
    v_lshrrev_b32 v2, 5, v0
    v_and_b32 v3, 7, v1
    v_lshrrev_b32 v4, 3, v1
    v_mul_u32_u24 v3, 4160, v3
    v_sub_u32 v4, v2, v4
    v_add_u32 v4, 255, v4
    v_lshl_add_u32 v3, v4, 4, v3
    s_lshl_b32 s73, s71, 9
    s_add_u32 s73, s73, {64*7+2048}
    s_sub_u32 s74, {X_KC}, s73
    v_add_u32 v5, s74, v3
    v_mul_u32_u24 v6, 80, v1
    v_lshl_add_u32 v6, v2, 4, v6
    s_lshl_b32 s73, s71, 3
    s_sub_u32 s73, 25, s73
    s_mul_i32 s73, s73, 80
    s_add_u32 s73, s73, {X_U + ch*7680}
    v_add_u32 v6, s73, v6
    """)
    for i in range(32):
        a(f"v_mov_b32 v{ACC0+i}, 0")
    def reads(i, base):
        for ks in range(2):
            a(f"ds_read_b128 {vr(base+ks*16,4)}, v5 offset:{64*(7-i)+32*ks+2048}")
            a(f"ds_read_b128 {vr(base+ks*16+4,4)}, v5 offset:{64*(7-i)+32*ks}")
            a(f"ds_read_b128 {vr(base+ks*16+8,4)}, v6 offset:{(7-i)*80+ks*32}")
            a(f"ds_read_b128 {vr(base+ks*16+12,4)}, v6 offset:{(7-i)*80+2560+ks*32}")
    reads(0, 8)
    for i in range(8):
        base = 8 + 32*(i&1)
        if i < 7:
            reads(i+1, 8+32*((i+1)&1))
            a("s_waitcnt lgkmcnt(8)")
        else:
            a("s_waitcnt lgkmcnt(0)")
        for ks in range(2):
            An = base+ks*16; Af = An+4; B0 = An+8; B1 = An+12
            a(f"v_mfma_f32_32x32x16_f16 {vr(ACC0,16)}, {vr(An,4)}, {vr(B0,4)}, {vr(ACC0,16)}")
            a(f"v_mfma_f32_32x32x16_f16 {vr(ACC1,16)}, {vr(An,4)}, {vr(B1,4)}, {vr(ACC1,16)}")
            a(f"v_mfma_f32_32x32x16_f16 {vr(ACC1,16)}, {vr(Af,4)}, {vr(B0,4)}, {vr(ACC1,16)}")
    a(f"""
    v_lshlrev_b32 v1, 4, v0
    s_nop 7
    """)
    for dq in range(4):
        L = a.newlabel("rs")
        a(f"""
        s_cmp_eq_u32 s71, {dq}
        s_cbranch_scc1 {L}
        s_sub_u32 s73, s71, {dq+1}
        s_and_b32 s73, s73, 3
        s_lshl_b32 s73, s73, 11
        s_add_u32 s73, s73, {X_RED + dq*6144}
        v_add_u32 v2, s73, v1
        ds_write_b128 v2, {vr(ACC0+8*dq,4)}
        ds_write_b128 v2, {vr(ACC0+8*dq+4,4)} offset:1024
        """)
        a.label(L)
    Ld = a.newlabel("mvd")
    for dq in range(4):
        L = a.newlabel("mv")
        a(f"s_cmp_lg_u32 s71, {dq}\n s_cbranch_scc1 {L}")
        for i in range(8): a(f"v_mov_b32 v{8+i}, v{ACC0+8*dq+i}")
        a(f"s_branch {Ld}")
        a.label(L)
    a.label(Ld)
    a(f"""
    s_waitcnt lgkmcnt(0)
    s_barrier
    s_mul_i32 s73, s71, 6144
    s_add_u32 s73, s73, {X_RED}
    v_add_u32 v2, s73, v1
    """)
    for sl in range(3):
        a(f"ds_read_b128 {vr(16+8*sl,4)}, v2 offset:{sl*2048}")
        a(f"ds_read_b128 {vr(20+8*sl,4)}, v2 offset:{sl*2048+1024}")
    a(f"""
    v_and_b32 v3, 31, v0
    v_lshrrev_b32 v4, 5, v0
    s_lshr_b32 s73, s71, 1
    s_lshl_b32 s73, s73, 5
    s_and_b32 s74, s71, 1
    s_lshl_b32 s74, s74, 4
    v_add_u32 v5, s73, v3
    v_mul_u32_u24 v6, 80, v5
    v_lshl_add_u32 v6, v4, 3, v6
    s_lshl_b32 s76, s74, 1
    s_add_u32 s75, s76, {X_U + ch*7680 + 2560}
    v_add_u32 v6, s75, v6
    ds_read_b64 v[40:41], v6
    ds_read_b64 v[42:43], v6 offset:16
    v_lshlrev_b32 v5, 5, v5
    v_lshl_add_u32 v5, v4, 2, v5
    v_add_u32 v5, s74, v5
    v_lshlrev_b32 v5, 1, v5
    s_add_u32 s75, s72, {ch}
    s_lshl_b32 s75, s75, 12
    s_add_u32 s74, s{P_WS}, s75
    s_addc_u32 s75, s{P_WS+1}, 0
    s_add_u32 s74, s74, {ST}
    s_addc_u32 s75, s75, 0
    s_waitcnt lgkmcnt(0)
    """)
    DSK = 224 + 8*ch + 7
    for i in range(8):
        a(f"""
        v_add_f32 v{8+i}, v{8+i}, v{16+i}
        v_add_f32 v{24+i}, v{24+i}, v{32+i}
        v_add_f32 v{8+i}, v{8+i}, v{24+i}
        v_mul_f32 v{8+i}, v{240+ch}, v{8+i}
        """)
    st = []
    for p in range(4):
        st.append(lines(f"""
        v_cvt_f32_f16 v{44+2*p}, v{40+p}
        v_cvt_f32_f16_sdwa v{45+2*p}, v{40+p} dst_sel:DWORD dst_unused:UNUSED_PAD src0_sel:WORD_1
        v_mul_f32 v{44+2*p}, v{DSK}, v{44+2*p}
        v_mul_f32 v{45+2*p}, v{DSK}, v{45+2*p}
        v_cvt_pk_bf16_f32 v{52+p}, v{44+2*p}, v{45+2*p}
        v_cvt_pk_bf16_f32 v{56+p}, v{8+2*p}, v{9+2*p}
        v_lshlrev_b32 v{44+2*p}, 16, v{52+p}
        v_and_b32 v{45+2*p}, 0xffff0000, v{52+p}
        v_lshlrev_b32 v{8+2*p}, 16, v{56+p}
        v_and_b32 v{9+2*p}, 0xffff0000, v{56+p}
        v_add_f32 v{8+2*p}, v{8+2*p}, v{44+2*p}
        v_add_f32 v{9+2*p}, v{9+2*p}, v{45+2*p}
        v_cvt_pk_bf16_f32 v{60+p}, v{8+2*p}, v{9+2*p}"""))
    interleave(a, st)
    a(f"""
    global_store_dwordx2 v5, v[60:61], s[74:75] sc1
    global_store_dwordx2 v5, v[62:63], s[74:75] offset:16 sc1
    """)
    vm.issue("sst", 2)

def prog_x(a):
    vm = Vm()
    stamp_begin(a)
    if "xprio" in OPTS: a("s_setprio 2")
    x_early(a, vm)
    if "xskip" in OPTS:
        nonce_get(a)
        a("s_waitcnt vmcnt(0)\n s_barrier")
        flag_set(a, 2)
        a("s_waitcnt vmcnt(0)")
        stamp(a)
        stamp_flush(a)
        return
    x_kgen(a, vm, 0, mid=lambda: x_touch_w(a, vm))
    stamp(a)
    if "xprio3" in OPTS: a("s_setprio 0")
    x_kgen(a, vm, 1, mid=lambda: x_touch_wd(a, vm))
    stamp(a)
    if "xprio2" in OPTS: a("s_setprio 2")
    nonce_get(a)
    a("s_waitcnt lgkmcnt(0)")
    poll(a, 0)
    stamp(a)
    x_uload(a, vm)
    x_kc(a, 0)
    x_uwrite(a, vm)
    a("s_waitcnt lgkmcnt(0)\n s_barrier")
    stamp(a)
    x_conv(a, vm, 0)
    stamp(a)
    a("s_barrier")
    x_kc(a, 1)
    a("s_waitcnt lgkmcnt(0)\n s_barrier")
    x_conv(a, vm, 1)
    stamp(a)
    vm.wait(a, "sst")
    a("s_barrier")
    flag_set(a, 2)
    a("s_waitcnt vmcnt(0)")
    stamp(a)
    stamp_flush(a)

def build():
    a = Asm()
    prologue(a)
    prog_g(a)
    a.label("LprogX")
    prog_x(a)
    a.label("Lend")
    a("s_endpgm")
    hdr = HEADER_COMMENT + f"; @launch grid=(512,1,1) block=(256,1,1) lds={LDS_BYTES}\n"
    txt = hdr + '.amdgcn_target "amdgcn-amd-amdhsa--gfx950"\n.text\n' + kernel_header(KNAME) + a.text()
    txt += '.section .rodata,"a"\n' + kernel_desc(KNAME)
    return txt

if __name__ == "__main__":
    opts = sys.argv[2].split(",") if len(sys.argv) > 2 else []
    OPTS = opts
    if "stamps" in opts: STAMPS = True
    if "fine" in opts: FINE = True
    if "dbgx" in opts: DBGWG[0] = 264
    open(sys.argv[1], "w").write(build())
```
